```python
import torch

def _softmax(x, axis=-1):
    return torch.softmax(x, dim=axis)
def _gelu(x):
    return torch.nn.functional.gelu(x, approximate="tanh")
def _silu(x):
    return torch.nn.functional.silu(x)
def _sigmoid(x):
    return torch.sigmoid(x)
def _layernorm(x, axis=-1, eps=1e-5):
    m = x.mean(dim=axis, keepdim=True)
    v = x.var(dim=axis, keepdim=True, unbiased=False)
    return (x - m) / torch.sqrt(v + eps)
def _scatter_add(tgt, idx, src, axis=0):
    return tgt.clone().index_add_(axis, idx, src)
def _segment_sum(src, seg, n):
    out = torch.zeros((n,) + src.shape[1:], dtype=src.dtype)
    return out.index_add_(0, seg, src)
def _pad(x, pw):
    flat = tuple(v for pair in reversed(pw) for v in pair)
    return torch.nn.functional.pad(x, flat)

kernel_name = 'sequential_preLN__mha_block__dense_activation_relu__prompt'

def setup_inputs():

    _w = (lambda a: (lambda t: t.to(torch.bfloat16) if t.is_floating_point() else t)(torch.as_tensor(a)))
    def _A_setup():
        B, S, D, H = 1, 2048, 640, 32
        return {
            "x": _w((lambda *s: torch.randn(*s, dtype=torch.bfloat16) * 0.05)(B, S, D)),
            "wqkv": _w((lambda *s: torch.randn(*s, dtype=torch.bfloat16) * 0.05)(D, 3 * D)),
            "wo": _w((lambda *s: torch.randn(*s, dtype=torch.bfloat16) * 0.05)(D, D)),
        }
    _A_in = _A_setup()

    def _B_setup():
        B, S, D, Dff = 1, 2048, 640, 1728
        return {
            "x": _w((lambda *s: torch.randn(*s, dtype=torch.bfloat16) * 0.05)(B, S, D)),
            "w1": _w((lambda *s: torch.randn(*s, dtype=torch.bfloat16) * 0.05)(D, Dff)),
            "w2": _w((lambda *s: torch.randn(*s, dtype=torch.bfloat16) * 0.05)(Dff, D)),
        }
    _B_in = _B_setup()

    return {
        "A_x": _A_in["x"],
        "A_wqkv": _A_in["wqkv"],
        "A_wo": _A_in["wo"],
        "B_x": _B_in["x"],
        "B_w1": _B_in["w1"],
        "B_w2": _B_in["w2"],
    }

def reference(A_x, A_wqkv, A_wo, B_x, B_w1, B_w2):
    def _A_ref(x, wqkv, wo):
        B, S, D = x.shape
        H = 32
        Dh = D // H
        qkv = (lambda x, *d: x.permute(*d))((x @ wqkv).reshape(B, S, 3, H, Dh), 2, 0, 3, 1, 4)
        q, k, v = qkv[0], qkv[1], qkv[2]
        scores = torch.einsum("bhqd,bhkd->bhqk", q, k) * (Dh ** -0.5)
        p = _softmax(scores, axis=-1)
        o = torch.einsum("bhqk,bhkd->bhqd", p, v)
        return (lambda x, *d: x.permute(*d))(o, 0, 2, 1, 3).reshape(B, S, D) @ wo

    def _B_ref(x, w1, w2):
        h = torch.einsum("bsd,df->bsf", x, w1)
        zero = torch.zeros_like(h)
        h = torch.maximum(h, zero)
        return torch.einsum("bsf,fd->bsd", h, w2)

    x = A_x
    h = x + _A_ref(_layernorm(x, axis=-1), A_wqkv, A_wo)
    h2 = h + _B_ref(_layernorm(h, axis=-1), B_w1, B_w2)
    return h2
```

```python
class Asm:
    def __init__(self):
        self.lines = []
        self._lab = 0
    def __call__(self, s, *a):
        for ln in s.split("\n"):
            ln = ln.strip()
            if ln:
                self.lines.append("    " + ln)
    def label(self, name):
        self.lines.append(name + ":")
    def newlabel(self, p="L"):
        self._lab += 1
        return f"{p}_{self._lab}"
    def raw(self, s):
        self.lines.append(s)
    def c(self, s):
        self.lines.append("    ; " + s)
    def text(self):
        return "\n".join(self.lines) + "\n"

def vr(b, n=1):
    return f"v{b}" if n == 1 else f"v[{b}:{b+n-1}]"
def sr(b, n=1):
    return f"s{b}" if n == 1 else f"s[{b}:{b+n-1}]"

class Regs:
    def __init__(self, start=0, limit=256):
        self.n = start
        self.limit = limit
        self.hi = start
    def alloc(self, n=1, align=1):
        if n >= 2 and align < 2: align = 2
        b = (self.n + align - 1) // align * align
        self.n = b + n
        self.hi = max(self.hi, self.n)
        assert self.n <= self.limit, f"out of regs {self.n}"
        return b

def kernel_header(a, name):
    a.raw(".text")
    a.raw(f".globl {name}")
    a.raw(".p2align 8")
    a.raw(f".type {name},@function")
    a.label(name)

def kernel_desc(name, nvgpr, nsgpr=96, accum=None):
    if accum is None:
        accum = (nvgpr + 3) // 4 * 4
    return f""".section .rodata,"a"
.p2align 6
.amdhsa_kernel {name}
  .amdhsa_next_free_vgpr {nvgpr}
  .amdhsa_next_free_sgpr {nsgpr}
  .amdhsa_accum_offset {accum}
  .amdhsa_group_segment_fixed_size 0
  .amdhsa_kernarg_size 72
  .amdhsa_user_sgpr_count 2
  .amdhsa_user_sgpr_kernarg_segment_ptr 1
  .amdhsa_system_sgpr_workgroup_id_x 1
.end_amdhsa_kernel
"""

def srd(a, d, base_lo, base_hi, nbytes, off_sgpr=None, off_imm=0):
    if off_sgpr is not None:
        a(f"s_add_u32 s{d}, s{base_lo}, s{off_sgpr}")
        a(f"s_addc_u32 s{d+1}, s{base_hi}, 0")
        if off_imm:
            a(f"s_add_u32 s{d}, s{d}, {off_imm}")
            a(f"s_addc_u32 s{d+1}, s{d+1}, 0")
    elif off_imm:
        a(f"s_add_u32 s{d}, s{base_lo}, {off_imm}")
        a(f"s_addc_u32 s{d+1}, s{base_hi}, 0")
    else:
        a(f"s_mov_b32 s{d}, s{base_lo}")
        a(f"s_mov_b32 s{d+1}, s{base_hi}")
    a(f"s_mov_b32 s{d+2}, {nbytes}")
    a(f"s_mov_b32 s{d+3}, 0x20000")
```

```python
from asmlib import *
from layout import *

def gen_k1(a, name):
    kernel_header(a, name)
    END = f"{name}_end"
    sW_, sI, sJ, sC, sXo, sWo, sSt, sT, sCnt, sMask = 20, 21, 22, 23, 24, 25, 26, 27, 28, 29
    sWf, sWt, sXb, sWb, sRot, sT2, sHS = 30, 31, 36, 37, 38, 39, 40
    SX, SWq, SO = 12, 16, 32
    a(f"s_cmp_ge_u32 s2, 240")
    a(f"s_cbranch_scc1 {END}")
    a("s_load_dwordx4 s[4:7], s[0:1], 0")
    a("s_load_dwordx2 s[8:9], s[0:1], 64")
    R = Regs(1)
    vL = R.alloc()
    vT = [R.alloc() for _ in range(8)]
    vXo, vXo2, vWo, vWo2 = [R.alloc() for _ in range(4)]
    vXa = [R.alloc() for _ in range(4)]
    vWa = [R.alloc() for _ in range(4)]
    vSum = [R.alloc() for _ in range(4)]
    vSq = [R.alloc() for _ in range(4)]
    vOne = R.alloc(4, 4)
    F = [[R.alloc(4, 4) for _ in range(3)] for _ in range(4)]
    acc = [R.alloc(16, 4) for _ in range(2)]
    vCs = R.alloc(16, 4)
    a(f"v_lshrrev_b32 v{vT[0]}, 6, v0")
    a(f"v_and_b32 v{vL}, 63, v0")
    a(f"v_readfirstlane_b32 s{sW_}, v{vT[0]}")
    a(f"s_and_b32 s{sT}, s2, 1")
    a(f"s_mul_i32 s{sT}, s{sT}, 30")
    a(f"s_lshr_b32 s{sC}, s2, 3")
    a(f"s_add_u32 s{sT}, s{sT}, s{sC}")
    a(f"s_lshr_b32 s{sJ}, s{sT}, 2")
    a(f"s_and_b32 s{sT}, s{sT}, 3")
    a(f"s_bfe_u32 s{sI}, s2, 0x20001")
    a(f"s_lshl_b32 s{sI}, s{sI}, 2")
    a(f"s_add_u32 s{sI}, s{sI}, s{sT}")
    a(f"s_mul_i32 s{sT}, s{sT}, 3")
    a(f"s_add_u32 s{sC}, s{sJ}, s{sT}")
    for _ in range(2):
        a(f"s_sub_u32 s{sT}, s{sC}, 10")
        a(f"s_cmp_ge_u32 s{sC}, 10")
        a(f"s_cselect_b32 s{sC}, s{sT}, s{sC}")
    a(f"s_mul_i32 s{sXb}, s{sI}, 163840")
    a(f"s_lshl_b32 s{sWb}, s{sJ}, 8")
    a(f"s_lshl_b32 s{sSt}, s{sW_}, 10")
    a(f"s_and_b32 s{sWf}, s{sW_}, 3")
    a(f"s_lshr_b32 s{sWt}, s{sW_}, 2")
    a(f"v_lshrrev_b32 v{vT[0]}, 3, v0")
    a(f"v_mul_u32_u24 v{vXo}, 1280, v{vT[0]}")
    a(f"v_lshrrev_b32 v{vT[1]}, 4, v0")
    a(f"v_xor_b32 v{vT[2]}, v0, v{vT[1]}")
    a(f"v_and_b32 v{vT[2]}, 7, v{vT[2]}")
    a(f"v_lshl_add_u32 v{vXo}, v{vT[2]}, 4, v{vXo}")
    a(f"v_add_u32 v{vXo2}, 81920, v{vXo}")
    a(f"v_mul_u32_u24 v{vWo}, 3840, v{vT[1]}")
    a(f"v_lshlrev_b32 v{vT[2]}, 2, v{vT[1]}")
    a(f"v_xor_b32 v{vT[2]}, v0, v{vT[2]}")
    a(f"v_and_b32 v{vT[2]}, 15, v{vT[2]}")
    a(f"v_lshl_add_u32 v{vWo}, v{vT[2]}, 4, v{vWo}")
    a(f"v_add_u32 v{vWo2}, 122880, v{vWo}")
    a("s_waitcnt lgkmcnt(0)")
    srd(a, SX, 4, 5, S*D*2)
    srd(a, SWq, 6, 7, D*3*D*2)

    def dma_chunk():
        a(f"s_lshl_b32 s{sXo}, s{sC}, 7")
        a(f"s_mov_b32 m0, s{sSt}")
        a(f"s_add_u32 s{sXo}, s{sXo}, s{sXb}")
        a(f"buffer_load_dwordx4 v{vXo}, s[{SX}:{SX+3}], s{sXo} offen lds")
        a(f"s_add_u32 m0, s{sSt}, 8192")
        a(f"s_mul_i32 s{sWo}, s{sC}, 245760")
        a(f"buffer_load_dwordx4 v{vXo2}, s[{SX}:{SX+3}], s{sXo} offen lds")
        a(f"s_add_u32 m0, s{sSt}, 16384")
        a(f"s_add_u32 s{sWo}, s{sWo}, s{sWb}")
        a(f"buffer_load_dwordx4 v{vWo}, s[{SWq}:{SWq+3}], s{sWo} offen lds")
        a(f"s_add_u32 m0, s{sSt}, 24576")
        a(f"s_add_u32 s{sC}, s{sC}, 1")
        a(f"buffer_load_dwordx4 v{vWo2}, s[{SWq}:{SWq+3}], s{sWo} offen lds")
        a(f"s_cmp_eq_u32 s{sC}, 10")
        a(f"s_cselect_b32 s{sC}, 0, s{sC}")
        a(f"s_add_u32 s{sSt}, s{sSt}, 32768")
        a(f"s_and_b32 s{sSt}, s{sSt}, 0x1ffff")
    Lp = a.newlabel("k1p")
    a(f"s_mov_b32 s{sCnt}, 0")
    a.label(Lp)
    dma_chunk()
    a(f"s_add_u32 s{sCnt}, s{sCnt}, 1")
    a(f"s_cmp_lt_u32 s{sCnt}, 4")
    a(f"s_cbranch_scc1 {Lp}")
    a(f"s_lshl_b32 s{sRot}, s{sWt}, 1")
    a(f"s_add_u32 s{sRot}, s{sRot}, s{sWf}")
    a(f"v_and_b32 v{vT[0]}, 31, v{vL}")
    a(f"v_lshrrev_b32 v{vT[1]}, 5, v{vL}")
    a(f"v_bfe_u32 v{vT[2]}, v{vL}, 1, 3")
    a(f"v_xor_b32 v{vT[2]}, v{vT[2]}, v{vT[1]}")
    a(f"s_lshl_b32 s{sT}, s{sWt}, 13")
    a(f"v_lshl_add_u32 v{vT[0]}, v{vT[0]}, 7, s{sT}")
    a(f"v_bfe_u32 v{vT[3]}, v{vL}, 2, 2")
    a(f"v_lshl_add_u32 v{vT[4]}, v{vT[1]}, 3, v{vT[3]}")
    a(f"v_lshlrev_b32 v{vT[4]}, 8, v{vT[4]}")
    a(f"v_xor_b32 v{vT[3]}, s{sWf}, v{vT[3]}")
    a(f"v_lshl_add_u32 v{vT[4]}, v{vT[3]}, 6, v{vT[4]}")
    a(f"v_bfe_u32 v{vT[3]}, v{vL}, 4, 1")
    a(f"v_lshl_add_u32 v{vT[4]}, v{vT[3]}, 5, v{vT[4]}")
    a(f"v_and_b32 v{vT[3]}, 3, v{vL}")
    a(f"v_lshl_add_u32 v{vT[4]}, v{vT[3]}, 3, v{vT[4]}")
    for sp in range(4):
        a(f"s_add_u32 s{sT}, s{sRot}, {sp}")
        a(f"s_and_b32 s{sT}, s{sT}, 3")
        a(f"s_lshl_b32 s{sT2}, s{sT}, 1")
        a(f"v_xor_b32 v{vT[3]}, s{sT2}, v{vT[2]}")
        a(f"v_lshl_add_u32 v{vXa[sp]}, v{vT[3]}, 4, v{vT[0]}")
        a(f"s_lshl_b32 s{sT}, s{sT}, 12")
        a(f"s_add_u32 s{sT}, s{sT}, 16384")
        a(f"v_add_u32 v{vWa[sp]}, s{sT}, v{vT[4]}")
    for r in range(4):
        a(f"v_mov_b32 v{vOne+r}, 0x3f803f80")
        a(f"v_mov_b32 v{vSum[r]}, 0")
        a(f"v_mov_b32 v{vSq[r]}, 0")
    for r in range(16):
        a(f"v_mov_b32 v{acc[0]+r}, 0")
        a(f"v_mov_b32 v{acc[1]+r}, 0")
        a(f"v_mov_b32 v{vCs+r}, 0")
    a(f"s_mov_b32 s{sMask}, 0xffff0000")
    a(f"s_mov_b32 s{sCnt}, 0")

    def reads(sp, off):
        W, X0, X1 = F[sp]
        a(f"ds_read_b64_tr_b16 v[{W}:{W+1}], v{vWa[sp]} offset:{off}")
        a(f"ds_read_b64_tr_b16 v[{W+2}:{W+3}], v{vWa[sp]} offset:{off+1024}")
        a(f"ds_read_b128 v[{X0}:{X0+3}], v{vXa[sp]} offset:{off}")
        a(f"ds_read_b128 v[{X1}:{X1+3}], v{vXa[sp]} offset:{off+4096}")
    def stat(tb, r):
        x = F[0][1+tb] + r
        t0, t1 = vT[(2*r) % 8], vT[(2*r+1) % 8]
        return [f"v_lshlrev_b32 v{t0}, 16, v{x}", f"v_and_b32 v{t1}, s{sMask}, v{x}",
                f"v_add_f32 v{vSum[tb]}, v{vSum[tb]}, v{t0}", f"v_fmac_f32 v{vSq[tb]}, v{t0}, v{t0}",
                f"v_add_f32 v{vSum[2+tb]}, v{vSum[2+tb]}, v{t1}", f"v_fmac_f32 v{vSq[2+tb]}, v{t1}, v{t1}"]
    def mf(d, x, y, vtype):
        p, q = (x, y) if not vtype else (y, x)
        return f"v_mfma_f32_32x32x16_bf16 v[{d}:{d+15}], v[{p}:{p+3}], v[{q}:{q+3}], v[{d}:{d+15}]"

    a("s_waitcnt vmcnt(12)")
    a("s_barrier")
    reads(0, 0)
    LV = a.newlabel("k1v")
    a(f"s_cmp_ge_u32 s{sJ}, 10")
    a(f"s_cbranch_scc1 {LV}")

    def mainloop(vtype):
        Lm = a.newlabel("k1m")
        a.label(Lm)
        for half in range(2):
            off = half*32768
            sv = []
            for tb in range(2):
                for r in range(4):
                    sv += stat(tb, r)
            for sp in range(4):
                W, X0, X1 = F[sp]
                if sp < 3:
                    reads(sp+1, off)
                    a("s_waitcnt lgkmcnt(4)")
                else:
                    a("s_waitcnt lgkmcnt(0) vmcnt(8)")
                    a("s_barrier")
                    if half == 0:
                        a(f"s_cmp_ge_u32 s{sCnt}, 3")
                        a(f"s_cselect_b32 s{SX+2}, 0, s{SX+2}")
                        a(f"s_cselect_b32 s{SWq+2}, 0, s{SWq+2}")
                    else:
                        for q in range(4):
                            a(f"v_xor_b32 v{vXa[q]}, 0x10000, v{vXa[q]}")
                            a(f"v_xor_b32 v{vWa[q]}, 0x10000, v{vWa[q]}")
                    reads(0, 32768 - off)
                ms = [mf(acc[0], W, X0, vtype), mf(acc[1], W, X1, vtype)]
                if sp in (1, 2):
                    ms.append(mf(vCs, W, vOne, vtype))
                if sp < 3:
                    chunk = sv[sp*16:(sp+1)*16]
                    per = (len(chunk) + len(ms) - 1)//len(ms)
                    for k, m in enumerate(ms):
                        a(m)
                        for x in chunk[k*per:(k+1)*per]:
                            a(x)
                else:
                    a(ms[0])
                    dma_chunk()
                    a(ms[1])
        a(f"s_add_u32 s{sCnt}, s{sCnt}, 1")
        a(f"s_cmp_lt_u32 s{sCnt}, 5")
        a(f"s_cbranch_scc1 {Lm}")

    XB = 131072
    def stats_exchange(vtype):
        a(f"v_add_f32 v{vSum[0]}, v{vSum[0]}, v{vSum[2]}")
        a(f"v_add_f32 v{vSum[1]}, v{vSum[1]}, v{vSum[3]}")
        a(f"v_add_f32 v{vSq[0]}, v{vSq[0]}, v{vSq[2]}")
        a(f"v_add_f32 v{vSq[1]}, v{vSq[1]}, v{vSq[3]}")
        a("s_nop 1")
        a(f"v_permlane32_swap_b32 v{vSum[0]}, v{vSum[1]}")
        a(f"v_permlane32_swap_b32 v{vSq[0]}, v{vSq[1]}")
        p = F[1][0]
        a(f"v_add_f32 v{p}, v{vSum[0]}, v{vSum[1]}")
        a(f"v_add_f32 v{p+1}, v{vSq[0]}, v{vSq[1]}")
        a(f"s_lshl_b32 s{sT}, s{sWt}, 9")
        a(f"s_add_u32 s{sT}, s{sT}, {XB}")
        a(f"v_lshl_add_u32 v{vT[0]}, v{vL}, 3, s{sT}")
        a(f"s_lshl_b32 s{sT2}, s{sWf}, 10")
        a(f"v_add_u32 v{vT[1]}, s{sT2}, v{vT[0]}")
        a(f"ds_write_b64 v{vT[1]}, v[{p}:{p+1}]")
        a(f"s_lshl_b32 s{sT}, s{sW_}, 7")
        a(f"s_add_u32 s{sT}, s{sT}, {XB+4096}")
        if vtype:
            a(f"v_and_b32 v{vT[2]}, 31, v{vL}")
            a(f"v_lshl_add_u32 v{vT[2]}, v{vT[2]}, 2, s{sT}")
            a(f"ds_write_b32 v{vT[2]}, v{vCs}")
        else:
            a(f"v_lshrrev_b32 v{vT[2]}, 5, v{vL}")
            a(f"v_lshl_add_u32 v{vT[2]}, v{vT[2]}, 6, s{sT}")
            a(f"s_mov_b64 exec, 0x100000001" if False else "s_mov_b32 exec_lo, 1\ns_mov_b32 exec_hi, 1")
            for g in range(4):
                a(f"ds_write_b128 v{vT[2]}, v[{vCs+4*g}:{vCs+4*g+3}] offset:{16*g}")
            a("s_mov_b64 exec, -1")
        a(f"v_xor_b32 v{vT[2]}, 512, v{vT[2]}")
        a("s_waitcnt lgkmcnt(0)")
        a("s_barrier")
        q = F[2][0]
        for k in range(4):
            a(f"ds_read_b64 v[{q+2*k}:{q+2*k+1}], v{vT[0]} offset:{1024*k}")
        cs2 = q + 8
        if vtype:
            a(f"ds_read_b32 v{cs2}, v{vT[2]}")
        else:
            for g in range(4):
                a(f"ds_read_b128 v[{cs2+4*g}:{cs2+4*g+3}], v{vT[2]} offset:{16*g}")
        a("s_waitcnt lgkmcnt(0)")
        a(f"v_add_f32 v{q}, v{q}, v{q+2}")
        a(f"v_add_f32 v{q+1}, v{q+1}, v{q+3}")
        a(f"v_add_f32 v{q+4}, v{q+4}, v{q+6}")
        a(f"v_add_f32 v{q+5}, v{q+5}, v{q+7}")
        a(f"v_add_f32 v{q}, v{q}, v{q+4}")
        a(f"v_add_f32 v{q+1}, v{q+1}, v{q+5}")
        a(f"v_mul_f32 v{q}, {f2u(1.0/D):#x}, v{q}")
        a(f"v_mul_f32 v{q+1}, {f2u(1.0/D):#x}, v{q+1}")
        a(f"v_fma_f32 v{q+1}, -v{q}, v{q}, v{q+1}")
        a(f"v_max_f32 v{q+1}, 0, v{q+1}")
        a(f"v_add_f32 v{q+1}, {f2u(EPS):#x}, v{q+1}")
        a(f"v_rsq_f32 v{q+1}, v{q+1}")
        for r in range(1 if vtype else 16):
            a(f"v_add_f32 v{vCs+r}, v{vCs+r}, v{cs2+r}")
        return q

    mainloop(False)
    a("s_nop 7")
    a("s_nop 7")
    q = stats_exchange(False)
    a(f"s_cmp_lt_u32 s{sJ}, 5")
    a(f"s_cselect_b32 s{sT}, {f2u(QSCALE):#x}, 1.0")
    a(f"v_mul_f32 v{q+1}, s{sT}, v{q+1}")
    a(f"v_mul_f32 v{q}, -v{q}, v{q+1}" .replace("v_mul_f32", "v_mul_f32_e64"))
    a(f"v_mov_b32 v{q+2}, v{q}")
    a(f"v_mov_b32 v{q+3}, v{q+1}")
    a("s_nop 1")
    a(f"v_permlane32_swap_b32 v{q}, v{q+2}")
    a(f"v_permlane32_swap_b32 v{q+1}, v{q+3}")
    a(f"s_lshl_b32 s{sT}, s{sI}, 2")
    a(f"s_lshl_b32 s{sT2}, s{sWt}, 1")
    a(f"s_add_u32 s{sT}, s{sT}, s{sT2}")
    a(f"s_mul_i32 s{sXo}, s{sT}, 1280")
    a(f"s_lshr_b32 s{sT}, s{sT}, 3")
    a(f"s_mul_i32 s{sT}, s{sT}, 10240")
    a(f"s_add_u32 s{sT}, s{sT}, {OFF_KV}")
    a(f"s_cmp_lt_u32 s{sJ}, 5")
    a(f"s_cselect_b32 s{sT}, {OFF_Q}, s{sT}")
    a(f"s_mov_b32 s{sHS}, 163840")
    a(f"s_cselect_b32 s{sHS}, 81920, s{sHS}")
    a(f"s_cselect_b32 s{sT2}, 0, 5")
    a(f"s_add_u32 s{sXo}, s{sXo}, s{sT}")
    srd(a, SO, 8, 9, OFF_KV + SZ_KV)
    a(f"s_sub_u32 s{sT2}, s{sJ}, s{sT2}")
    a(f"s_lshl_b32 s{sT2}, s{sT2}, 5")
    a(f"s_lshl_b32 s{sT}, s{sWf}, 3")
    a(f"s_add_u32 s{sT2}, s{sT2}, s{sT}")
    a(f"v_lshrrev_b32 v{vT[0]}, 5, v{vL}")
    a(f"v_add_u32 v{vT[0]}, s{sT2}, v{vT[0]}")
    a(f"v_and_b32 v{vT[1]}, 31, v{vL}")
    a(f"v_lshlrev_b32 v{vT[1]}, 3, v{vT[1]}")
    P = F[0][0]
    for g in range(4):
        qd, hd, r5, ad = vT[2], vT[3], vT[4], vXa[g]
        a(f"v_add_u32 v{qd}, {2*g}, v{vT[0]}")
        a(f"v_mul_u32_u24 v{hd}, 13108, v{qd}")
        a(f"v_lshrrev_b32 v{hd}, 16, v{hd}")
        a(f"v_mad_i32_i24 v{r5}, v{hd}, -5, v{qd}")
        a(f"v_mul_lo_u32 v{ad}, v{hd}, s{sHS}")
        a(f"v_add_u32 v{ad}, v{ad}, v{vT[1]}")
        a(f"v_lshrrev_b32 v{qd}, 1, v{r5}")
        a(f"v_lshl_add_u32 v{ad}, v{qd}, 9, v{ad}")
        a(f"v_and_b32 v{qd}, 1, v{r5}")
        a(f"v_lshl_add_u32 v{qd}, v{qd}, 3, v{vT[1]}")
        a(f"v_cmp_gt_u32 vcc, 4, v{r5}")
        a("s_nop 1")
        a(f"v_cndmask_b32 v{qd}, 0, v{qd}, vcc")
        a(f"v_add_u32 v{ad}, v{ad}, v{qd}")
    for tb in range(2):
        nm, rs = q + 2*tb, q + 2*tb + 1
        for g in range(4):
            for i in range(4):
                r = 4*g + i
                a(f"v_mul_f32 v{vT[i]}, v{nm}, v{vCs+r}")
            for i in range(4):
                r = 4*g + i
                a(f"v_fmac_f32 v{vT[i]}, v{rs}, v{acc[tb]+r}")
            pp = P + 2*((tb*4+g) % 6)
            a(f"v_cvt_pk_bf16_f32 v{pp}, v{vT[0]}, v{vT[1]}")
            a(f"v_cvt_pk_bf16_f32 v{pp+1}, v{vT[2]}, v{vT[3]}")
            a(f"buffer_store_dwordx2 v[{pp}:{pp+1}], v{vXa[g]}, s[{SO}:{SO+3}], s{sXo} offen offset:{1280*tb}")
    a("s_endpgm")

    a.label(LV)
    mainloop(True)
    a("s_nop 7")
    a("s_nop 7")
    q = stats_exchange(True)
    a(f"v_mul_f32_e64 v{q}, -v{q}, v{q+1}")
    a(f"s_lshl_b32 s{sT}, s{sW_}, 9")
    a(f"s_add_u32 s{sT}, s{sT}, {XB+8192}")
    a(f"v_lshl_add_u32 v{vT[0]}, v{vL}, 2, s{sT}")
    a(f"ds_write_b32 v{vT[0]}, v{q}")
    a(f"ds_write_b32 v{vT[0]}, v{q+1} offset:256")
    a(f"v_lshrrev_b32 v{vT[1]}, 5, v{vL}")
    a(f"v_lshl_add_u32 v{vT[0]}, v{vT[1]}, 4, s{sT}")
    a(f"s_sub_u32 s{sT2}, s{sJ}, 10")
    a(f"s_lshl_b32 s{sT2}, s{sT2}, 7")
    a(f"s_lshl_b32 s{sT}, s{sWf}, 5")
    a(f"s_add_u32 s{sT2}, s{sT2}, s{sT}")
    a(f"v_and_b32 v{vT[2]}, 31, v{vL}")
    a(f"v_add_u32 v{vT[2]}, s{sT2}, v{vT[2]}")
    a(f"v_mul_u32_u24 v{vT[3]}, 3277, v{vT[2]}")
    a(f"v_lshrrev_b32 v{vT[3]}, 16, v{vT[3]}")
    a(f"v_mul_u32_u24 v{vT[4]}, 20, v{vT[3]}")
    a(f"v_sub_u32 v{vT[2]}, v{vT[2]}, v{vT[4]}")
    a(f"v_mul_u32_u24 v{vT[3]}, 163840, v{vT[3]}")
    a(f"v_lshl_add_u32 v{vT[3]}, v{vT[2]}, 4, v{vT[3]}")
    a(f"v_mul_u32_u24 v{vT[1]}, 320, v{vT[1]}")
    a(f"v_add_u32 v{vXa[0]}, v{vT[3]}, v{vT[1]}")
    a(f"s_lshr_b32 s{sT}, s{sI}, 1")
    a(f"s_mul_i32 s{sT}, s{sT}, 20480")
    a(f"s_and_b32 s{sT2}, s{sI}, 1")
    a(f"s_lshl_b32 s{sT2}, s{sT2}, 1")
    a(f"s_add_u32 s{sT2}, s{sT2}, s{sWt}")
    a(f"s_mul_i32 s{sT2}, s{sT2}, 2560")
    a(f"s_add_u32 s{sXo}, s{sT}, s{sT2}")
    a(f"s_add_u32 s{sXo}, s{sXo}, {OFF_KV+10240}")
    srd(a, SO, 8, 9, OFF_KV + SZ_KV)
    a("s_waitcnt lgkmcnt(0)")
    NM = F[0][0]
    RS = NM + 16
    P = F[3][0]
    for tb in range(2):
        for g in range(4):
            a(f"ds_read_b128 v[{NM+4*g}:{NM+4*g+3}], v{vT[0]} offset:{tb*128 + g*32}")
            a(f"ds_read_b128 v[{RS+4*g}:{RS+4*g+3}], v{vT[0]} offset:{256 + tb*128 + g*32}")
        a("s_waitcnt lgkmcnt(0)")
        for r in range(16):
            a(f"v_mul_f32 v{NM+r}, v{NM+r}, v{vCs}")
        for r in range(16):
            a(f"v_fmac_f32 v{NM+r}, v{RS+r}, v{acc[tb]+r}")
        for gp in range(2):
            pp = P + 4*gp
            for k in range(4):
                a(f"v_cvt_pk_bf16_f32 v{pp+k}, v{NM+8*gp+2*k}, v{NM+8*gp+2*k+1}")
            a("s_nop 1")
            a(f"v_permlane32_swap_b32 v{pp}, v{pp+2}")
            a(f"v_permlane32_swap_b32 v{pp+1}, v{pp+3}")
            a(f"buffer_store_dwordx4 v[{pp}:{pp+3}], v{vXa[0]}, s[{SO}:{SO+3}], s{sXo} offen offset:{tb*1280 + gp*640}")
        a("s_nop 1")
    a.label(END)
    a("s_endpgm")
    return R.hi, 131072 + 8192 + 4096

assert all((q*13108) >> 16 == q//5 for q in range(200))
assert all((f*3277) >> 16 == f//20 for f in range(700))
```

```python
from asmlib import *
from layout import *

def gen_prep(a, R0, sTask, sb, wsl, wsh, vL, skip):
    vS, vD, vCg, vKg = R0, R0+1, R0+2, R0+3
    vIn = R0 + 4
    vOut = vIn + 32
    SS, SD = sb, sb+4
    sP, sE, sB, sT, sU, sSel0, sSel1 = sb+8, sb+9, sb+10, sb+11, sb+12, sb+13, sb+14
    sPtr = sb+16
    Lw2, Lw1, Lgo, Lw = [a.newlabel("prep") for _ in range(4)]
    a(f"s_cmp_ge_u32 s{sTask}, 650")
    a(f"s_cbranch_scc1 {skip}")
    a(f"s_cmp_lt_u32 s{sTask}, 100")
    a(f"s_cbranch_scc0 {Lw2}")
    a(f"s_load_dwordx2 s[{sPtr}:{sPtr+1}], s[0:1], 16")
    a(f"s_mov_b32 s{SS+2}, {D*D*2}")
    a(f"s_mov_b32 s{sE}, 0")
    a(f"s_mov_b32 s{sU}, 20")
    a(f"s_mov_b32 s{sSel0}, {OFF_WO}")
    a(f"v_lshrrev_b32 v{vKg}, 4, v{vL}")
    a(f"v_lshlrev_b32 v{vS}, 3, v{vKg}")
    a(f"s_branch {Lw}")
    a.label(Lw2)
    a(f"s_cmp_lt_u32 s{sTask}, 370")
    a(f"s_cbranch_scc0 {Lw1}")
    a(f"s_load_dwordx2 s[{sPtr}:{sPtr+1}], s[0:1], 40")
    a(f"s_sub_u32 s{sTask}, s{sTask}, 100")
    a(f"s_mov_b32 s{SS+2}, {DFF*D*2}")
    a(f"s_mov_b32 s{sE}, {4*1280}")
    a(f"s_mov_b32 s{sU}, 54")
    a(f"s_mov_b32 s{sSel0}, {OFF_W2}")
    a(f"v_lshrrev_b32 v{vKg}, 4, v{vL}")
    a(f"v_lshrrev_b32 v{vS}, 5, v{vL}")
    a(f"v_lshlrev_b32 v{vS}, 4, v{vS}")
    a(f"v_and_b32 v{vD}, 1, v{vKg}")
    a(f"v_lshl_add_u32 v{vS}, v{vD}, 2, v{vS}")
    a.label(Lw)
    a(f"s_mov_b32 s{sP}, 1280")
    a(f"s_mul_i32 s{sT}, s{sTask}, 13108")
    a(f"s_lshr_b32 s{sT}, s{sT}, 16")
    a(f"s_mul_i32 s{sB}, s{sT}, 5")
    a(f"s_sub_u32 s{sTask}, s{sTask}, s{sB}")
    a(f"s_mul_i32 s{sSel1}, s{sT}, 5120")
    a(f"s_add_u32 s{sSel0}, s{sSel0}, s{sSel1}")
    a(f"s_mul_i32 s{sB}, s{sT}, {32*1280}")
    a(f"s_lshl_b32 s{sT}, s{sTask}, 8")
    a(f"s_add_u32 s{sB}, s{sB}, s{sT}")
    a(f"v_and_b32 v{vCg}, 15, v{vL}")
    a(f"s_lshl_b32 s{sT}, s{sTask}, 3")
    a(f"v_lshrrev_b32 v{vD}, 1, v{vCg}")
    a(f"v_add_u32 v{vD}, s{sT}, v{vD}")
    a(f"v_mul_u32_u24 v{vIn}, 13108, v{vD}")
    a(f"v_lshrrev_b32 v{vIn}, 16, v{vIn}")
    a(f"v_mad_i32_i24 v{vD}, v{vIn}, -5, v{vD}")
    a(f"s_mul_i32 s{sU}, s{sU}, 5")
    a(f"v_mad_u32_u24 v{vD}, v{vIn}, s{sU}, v{vD}")
    a(f"v_lshlrev_b32 v{vD}, 10, v{vD}")
    a(f"v_lshl_add_u32 v{vD}, v{vKg}, 8, v{vD}")
    a(f"v_and_b32 v{vIn}, 1, v{vCg}")
    a(f"v_lshl_add_u32 v{vD}, v{vIn}, 7, v{vD}")
    a(f"s_branch {Lgo}")
    a.label(Lw1)
    a(f"s_load_dwordx2 s[{sPtr}:{sPtr+1}], s[0:1], 32")
    a(f"s_sub_u32 s{sTask}, s{sTask}, 370")
    a(f"s_mov_b32 s{SS+2}, {DFF*D*2}")
    a(f"s_mov_b32 s{sE}, 0")
    a(f"s_mov_b32 s{sP}, 3456")
    a(f"s_mul_i32 s{sT}, s{sTask}, 4682")
    a(f"s_lshr_b32 s{sT}, s{sT}, 16")
    a(f"s_mul_i32 s{sB}, s{sT}, 14")
    a(f"s_sub_u32 s{sTask}, s{sTask}, s{sB}")
    a(f"s_mul_i32 s{sSel0}, s{sTask}, {40*4096}")
    a(f"s_lshl_b32 s{sSel1}, s{sT}, 13")
    a(f"s_add_u32 s{sSel0}, s{sSel0}, s{sSel1}")
    a(f"s_add_u32 s{sSel0}, s{sSel0}, {OFF_W1}")
    a(f"s_mul_i32 s{sB}, s{sT}, {32*3456}")
    a(f"s_lshl_b32 s{sT}, s{sTask}, 8")
    a(f"s_add_u32 s{sB}, s{sB}, s{sT}")
    a(f"v_lshrrev_b32 v{vKg}, 4, v{vL}")
    a(f"v_lshlrev_b32 v{vS}, 3, v{vKg}")
    a(f"v_and_b32 v{vCg}, 15, v{vL}")
    a(f"v_lshrrev_b32 v{vD}, 5, v{vL}")
    a(f"v_lshlrev_b32 v{vD}, 12, v{vD}")
    a(f"v_lshrrev_b32 v{vIn}, 2, v{vCg}")
    a(f"v_lshl_add_u32 v{vD}, v{vIn}, 10, v{vD}")
    a(f"v_and_b32 v{vIn}, 1, v{vKg}")
    a(f"v_lshl_add_u32 v{vD}, v{vIn}, 9, v{vD}")
    a(f"v_and_b32 v{vIn}, 3, v{vCg}")
    a(f"v_lshl_add_u32 v{vD}, v{vIn}, 7, v{vD}")
    a.label(Lgo)
    a(f"v_mul_lo_u32 v{vS}, v{vS}, s{sP}")
    a(f"v_lshl_add_u32 v{vS}, v{vCg}, 4, v{vS}")
    a(f"v_add_u32 v{vD}, s{sSel0}, v{vD}")
    a("s_waitcnt lgkmcnt(0)")
    a(f"s_mov_b32 s{SS}, s{sPtr}")
    a(f"s_mov_b32 s{SS+1}, s{sPtr+1}")
    a(f"s_mov_b32 s{SS+3}, 0x20000")
    srd(a, SD, wsl, wsh, WS_END)
    for j in range(8):
        a(f"buffer_load_dwordx4 v[{vIn+4*j}:{vIn+4*j+3}], v{vS}, s[{SS}:{SS+3}], s{sB} offen")
        if j < 7:
            a(f"s_add_u32 s{sB}, s{sB}, s{sP}")
        if j == 3:
            a(f"s_add_u32 s{sB}, s{sB}, s{sE}")
    a(f"s_mov_b32 s{sSel0}, 0x05040100")
    a(f"s_mov_b32 s{sSel1}, 0x07060302")
    a("s_waitcnt vmcnt(0)")
    for c in range(8):
        for jp in range(4):
            A_ = vIn + 4*(2*jp) + c//2
            B_ = vIn + 4*(2*jp+1) + c//2
            a(f"v_perm_b32 v{vOut+4*c+jp}, v{B_}, v{A_}, s{sSel1 if c & 1 else sSel0}")
        a(f"buffer_store_dwordx4 v[{vOut+4*c}:{vOut+4*c+3}], v{vD}, s[{SD}:{SD+3}], 0 offen offset:{16*c}")

assert all((t*13108) >> 16 == t//5 for t in range(300))
assert all((t*4682) >> 16 == t//14 for t in range(300))

def gen_k2(a, name):
    kernel_header(a, name)
    END = f"{name}_end"
    sW_, sQg, sKh, sHead, sQb, sT, sT2, sTrip, sSlotN, sSlotD, sTg, sWoff = range(20, 32)
    SKV, SQ, SO = 8, 12, 16
    sVm = 32
    sTask = 34
    SLOT = 20480
    NSLOT = 3
    XB = NSLOT*SLOT
    a("s_cmp_ge_u32 s2, 256")
    a(f"s_cbranch_scc1 {END}")
    a("s_load_dwordx2 s[4:5], s[0:1], 64")
    R = Regs(1)
    vL = R.alloc()
    vT = [R.alloc() for _ in range(6)]
    vDma = R.alloc()
    vK1b, vK2b, vVb, vK1a, vK2a, vVa = [R.alloc() for _ in range(6)]
    Q1 = [R.alloc(4, 4) for _ in range(2)]
    Q2 = [R.alloc(2, 2) for _ in range(2)]
    K1 = R.alloc(4, 4)
    V = [R.alloc(4, 4) for _ in range(2)]
    K2 = R.alloc(2, 2)
    O = [R.alloc(16, 4) for _ in range(2)]
    P = [R.alloc(8, 4) for _ in range(2)]
    Sx = [R.alloc(16, 4) for _ in range(2)]
    PREP = R.alloc(68, 4)
    a(f"v_lshrrev_b32 v{vT[0]}, 6, v0")
    a(f"v_and_b32 v{vL}, 63, v0")
    a(f"v_readfirstlane_b32 s{sW_}, v{vT[0]}")
    a(f"s_and_b32 s{sHead}, s2, 7")
    a(f"s_lshl_b32 s{sHead}, s{sHead}, 2")
    a(f"s_lshr_b32 s{sT}, s2, 6")
    a(f"s_add_u32 s{sHead}, s{sHead}, s{sT}")
    a(f"s_bfe_u32 s{sQb}, s2, 0x30003")
    a(f"s_and_b32 s{sQg}, s{sW_}, 3")
    a(f"s_lshr_b32 s{sKh}, s{sW_}, 2")
    a(f"s_mul_i32 s{sWoff}, s{sW_}, 2560")
    a(f"v_lshl_add_u32 v{vDma}, v{vL}, 4, s{sWoff}")
    a(f"s_mul_i32 s{sT}, s{sHead}, 163840")
    a(f"s_mul_i32 s{sT2}, s{sHead}, 81920")
    a("s_waitcnt lgkmcnt(0)")
    srd(a, SKV, 4, 5, 163840, off_sgpr=sT, off_imm=OFF_KV)
    srd(a, SQ, 4, 5, 81920, off_sgpr=sT2, off_imm=OFF_Q)
    a(f"s_mov_b32 s{sTg}, s{sQb}")
    a(f"s_mov_b32 s{sSlotD}, s{sWoff}")
    def dma_trip():
        a(f"s_mul_i32 s{sT}, s{sTg}, {SLOT}")
        a(f"s_mov_b32 m0, s{sSlotD}")
        a(f"s_add_u32 s{sTg}, s{sTg}, 1")
        a(f"buffer_load_dwordx4 v{vDma}, s[{SKV}:{SKV+3}], s{sT} offen lds")
        a(f"buffer_load_dwordx4 v{vDma}, s[{SKV}:{SKV+3}], s{sT} offen offset:1024 lds")
        a(f"s_mov_b32 exec_hi, 0")
        a(f"buffer_load_dwordx4 v{vDma}, s[{SKV}:{SKV+3}], s{sT} offen offset:2048 lds")
        a(f"s_mov_b32 exec_hi, -1")
        a(f"s_and_b32 s{sTg}, s{sTg}, 7")
        a(f"s_add_u32 s{sSlotD}, s{sSlotD}, {SLOT}")
        a(f"s_cmp_ge_u32 s{sSlotD}, {NSLOT*SLOT}")
        a(f"s_cselect_b32 s{sSlotD}, s{sWoff}, s{sSlotD}")
    dma_trip()
    a(f"s_lshl_b32 s{sT}, s{sQb}, 3")
    a(f"s_lshl_b32 s{sT2}, s{sQg}, 1")
    a(f"s_add_u32 s{sT}, s{sT}, s{sT2}")
    a(f"s_add_u32 s{sQb}, s{sT}, s{sKh}")
    a(f"s_mul_i32 s{sT}, s{sQb}, 1280")
    a(f"s_xor_b32 s{sT2}, s{sQb}, 1")
    a(f"s_mul_i32 s{sT2}, s{sT2}, 1280")
    a(f"v_lshlrev_b32 v{vT[0]}, 4, v{vL}")
    a(f"v_lshlrev_b32 v{vT[1]}, 3, v{vL}")
    for k in range(2):
        a(f"v_mov_b32 v{Q2[k]}, 0")
        a(f"v_mov_b32 v{Q2[k]+1}, 0")
    a(f"buffer_load_dwordx4 v[{Q1[0]}:{Q1[0]+3}], v{vT[0]}, s[{SQ}:{SQ+3}], s{sT} offen")
    a(f"buffer_load_dwordx4 v[{Q1[1]}:{Q1[1]+3}], v{vT[0]}, s[{SQ}:{SQ+3}], s{sT2} offen")
    a(f"s_mov_b32 exec_hi, 0")
    a(f"buffer_load_dwordx2 v[{Q2[0]}:{Q2[0]+1}], v{vT[1]}, s[{SQ}:{SQ+3}], s{sT} offen offset:1024")
    a(f"buffer_load_dwordx2 v[{Q2[1]}:{Q2[1]+1}], v{vT[1]}, s[{SQ}:{SQ+3}], s{sT2} offen offset:1024")
    a(f"s_mov_b32 exec_hi, -1")
    dma_trip()
    a(f"v_and_b32 v{vT[0]}, 0x13, v{vL}")
    a(f"v_bfe_u32 v{vT[1]}, v{vL}, 2, 1")
    a(f"v_lshl_add_u32 v{vT[0]}, v{vT[1]}, 3, v{vT[0]}")
    a(f"v_bfe_u32 v{vT[1]}, v{vL}, 3, 1")
    a(f"v_lshl_add_u32 v{vT[0]}, v{vT[1]}, 2, v{vT[0]}")
    a(f"v_lshrrev_b32 v{vT[1]}, 5, v{vL}")
    a(f"s_mul_i32 s{sT}, s{sKh}, 1280")
    a(f"v_lshl_add_u32 v{vK2b}, v{vT[0]}, 3, s{sT}")
    a(f"v_add_u32 v{vK2b}, 1024, v{vK2b}")
    a(f"v_lshl_add_u32 v{vK1b}, v{vT[0]}, 4, s{sT}")
    a(f"v_lshl_add_u32 v{vK1b}, v{vT[1]}, 9, v{vK1b}")
    a(f"v_and_b32 v{vT[0]}, 31, v{vL}")
    a(f"v_lshl_add_u32 v{vVb}, v{vT[0]}, 4, s{sT}")
    a(f"v_mul_u32_u24 v{vT[1]}, 320, v{vT[1]}")
    a(f"v_add_u32 v{vVb}, v{vVb}, v{vT[1]}")
    a(f"v_add_u32 v{vVb}, 10240, v{vVb}")
    a(f"v_mov_b32 v{vK1a}, v{vK1b}")
    a(f"v_mov_b32 v{vK2a}, v{vK2b}")
    a(f"v_mov_b32 v{vVa}, v{vVb}")
    a(f"s_mov_b32 s{sVm}, 0xfffff")
    a(f"s_mov_b32 s{sVm+1}, 0xfffff")
    for r in range(8):
        a(f"v_mov_b32 v{V[0]+r}, 0x3f803f80")
        a(f"v_mov_b32 v{P[1]+r}, 0")
    for r in range(16):
        a(f"v_mov_b32 v{O[0]+r}, 0")
        a(f"v_mov_b32 v{O[1]+r}, 0")
    Lskip = a.newlabel("k2noprep")
    a(f"s_lshl_b32 s{sTask}, s{sW_}, 8")
    a(f"s_add_u32 s{sTask}, s{sTask}, s2")
    gen_prep(a, PREP, sTask, 36, 4, 5, vL, Lskip)
    a.label(Lskip)
    a(f"s_mov_b32 s{sSlotN}, 0")
    a(f"s_mov_b32 s{sTrip}, 0")
    a("s_waitcnt vmcnt(0)")
    a("s_barrier")
    def kread(off):
        a(f"ds_read_b128 v[{K1}:{K1+3}], v{vK1a} offset:{off}")
        a(f"ds_read_b64 v[{K2}:{K2+1}], v{vK2a} offset:{off}")
    def vread(off):
        a(f"s_mov_b64 exec, s[{sVm}:{sVm+1}]")
        a(f"ds_read_b128 v[{V[0]}:{V[0]+3}], v{vVa} offset:{off}")
        a(f"ds_read_b128 v[{V[1]}:{V[1]+3}], v{vVa} offset:{off+640}")
        a(f"s_mov_b64 exec, -1")
    def qk1(x): return f"v_mfma_f32_32x32x16_bf16 v[{Sx[x]}:{Sx[x]+15}], v[{K1}:{K1+3}], v[{Q1[x]}:{Q1[x]+3}], 0"
    def qk2(x): return f"v_mfma_f32_32x32x8_bf16 v[{Sx[x]}:{Sx[x]+15}], v[{K2}:{K2+1}], v[{Q2[x]}:{Q2[x]+1}], v[{Sx[x]}:{Sx[x]+15}]"
    def pv(x, k): return f"v_mfma_f32_32x32x16_bf16 v[{O[x]}:{O[x]+15}], v[{V[k]}:{V[k]+3}], v[{P[x]+4*k}:{P[x]+4*k+3}], v[{O[x]}:{O[x]+15}]"
    def vgroup(x, g):
        s = Sx[x] + 4*g
        for i in range(4):
            a(f"v_exp_f32 v{s+i}, v{s+i}")
        a(f"v_cvt_pk_bf16_f32 v{P[x]+2*g}, v{s}, v{s+1}")
        a(f"v_cvt_pk_bf16_f32 v{P[x]+2*g+1}, v{s+2}, v{s+3}")
    kread(0)
    a("s_waitcnt lgkmcnt(0)")
    a(qk1(0)); a(qk2(0))
    a("s_nop 7"); a("s_nop 3")
    Lm = a.newlabel("k2m")
    Lnd = a.newlabel("k2nd")
    a.label(Lm)
    for u in range(4):
        a(qk1(1))
        vgroup(0, 0)
        a(qk2(1))
        if u == 3:
            a("s_waitcnt vmcnt(0)")
            a("s_barrier")
            a(f"s_add_u32 s{sSlotN}, s{sSlotN}, {SLOT}")
            a(f"s_cmp_ge_u32 s{sSlotN}, {NSLOT*SLOT}")
            a(f"s_cselect_b32 s{sSlotN}, 0, s{sSlotN}")
            a(f"v_add_u32 v{vK1a}, s{sSlotN}, v{vK1b}")
            a(f"v_add_u32 v{vK2a}, s{sSlotN}, v{vK2b}")
            kread(0)
            a(f"s_cmp_ge_u32 s{sTrip}, 6")
            a(f"s_cbranch_scc1 {Lnd}")
            dma_trip()
            a.label(Lnd)
        else:
            kread((u+1)*2560)
        vgroup(0, 1)
        a(pv(1, 0))
        vgroup(0, 2)
        a(pv(1, 1))
        vread(u*2560)
        vgroup(0, 3)
        a("s_waitcnt lgkmcnt(2)")
        a(qk1(0))
        vgroup(1, 0)
        a(qk2(0))
        vgroup(1, 1)
        a("s_waitcnt lgkmcnt(0)")
        a(pv(0, 0))
        vgroup(1, 2)
        a(pv(0, 1))
        if u == 3:
            a(f"v_add_u32 v{vVa}, s{sSlotN}, v{vVb}")
            a(f"s_add_u32 s{sTrip}, s{sTrip}, 1")
            a(f"s_cmp_lt_u32 s{sTrip}, 8")
        vgroup(1, 3)
    a(f"s_cbranch_scc1 {Lm}")
    a("s_nop 0")
    a(pv(1, 0))
    a(pv(1, 1))
    a(f"s_lshl_b32 s{sT}, s{sW_}, 12")
    a(f"s_add_u32 s{sT}, s{sT}, {XB}")
    a(f"v_lshl_add_u32 v{vT[0]}, v{vL}, 4, s{sT}")
    a(f"s_xor_b32 s{sT}, s{sW_}, 4")
    a(f"s_lshl_b32 s{sT}, s{sT}, 12")
    a(f"s_add_u32 s{sT}, s{sT}, {XB}")
    a(f"v_lshl_add_u32 v{vT[1]}, v{vL}, 4, s{sT}")
    a("s_nop 7")
    for g in range(4):
        a(f"ds_write_b128 v{vT[0]}, v[{O[1]+4*g}:{O[1]+4*g+3}] offset:{1024*g}")
    srd(a, SO, 4, 5, SZ_O, off_imm=OFF_O)
    a(f"s_mul_i32 s{sT2}, s{sQb}, {2*20*1024}")
    a(f"v_bfe_u32 v{vT[2]}, v{vL}, 4, 1")
    a(f"v_mul_u32_u24 v{vT[2]}, {20*1024}, v{vT[2]}")
    a(f"v_and_b32 v{vT[3]}, 15, v{vL}")
    a(f"v_lshl_add_u32 v{vT[2]}, v{vT[3]}, 4, v{vT[2]}")
    a(f"s_mul_i32 s{sT}, s{sHead}, 5")
    a(f"v_lshrrev_b32 v{vT[3]}, 5, v{vL}")
    a(f"v_add_u32 v{vT[3]}, s{sT}, v{vT[3]}")
    a(f"v_lshrrev_b32 v{vT[4]}, 1, v{vT[3]}")
    a(f"v_lshl_add_u32 v{vT[2]}, v{vT[4]}, 8, v{vT[2]}")
    a(f"v_and_b32 v{vT[4]}, 1, v{vT[3]}")
    a(f"v_lshl_add_u32 v{vT[2]}, v{vT[4]}, 3, v{vT[2]}")
    a("s_waitcnt lgkmcnt(0)")
    a("s_barrier")
    for g in range(4):
        a(f"ds_read_b128 v[{O[1]+4*g}:{O[1]+4*g+3}], v{vT[1]} offset:{1024*g}")
    a("s_waitcnt lgkmcnt(0)")
    for r in range(13):
        a(f"v_add_f32 v{O[0]+r}, v{O[0]+r}, v{O[1]+r}")
    a(f"v_mov_b32 v{vT[3]}, 0")
    for r in range(12):
        a(f"v_fma_f32 v{vT[3]}, v{O[0]+r}, 0, v{vT[3]}")
    a(f"v_add_f32 v{vT[3]}, v{vT[3]}, v{O[0]+12}")
    a(f"v_cmp_nge_f32 vcc, v{vT[3]}, v{vT[3]}") if False else None
    a(f"s_mov_b32 s{sT}, {f2u(2.0**-64):#x}")
    a(f"v_cmp_nle_f32 s[36:37], s{sT}, v{vT[3]}")
    a(f"s_mov_b32 s{sT}, {f2u(2.0**64):#x}")
    a(f"v_cmp_nge_f32 vcc, s{sT}, v{vT[3]}")
    a("s_nop 1")
    a(f"s_or_b64 vcc, vcc, s[36:37]")
    Lslow, Lfin = a.newlabel("k2slow"), a.newlabel("k2fin")
    a(f"s_cbranch_vccnz {Lslow}")
    a.label(Lfin)
    a(f"v_rcp_f32 v{vT[3]}, v{O[0]+12}")
    a("s_nop 0")
    for r in range(12):
        a(f"v_mul_f32 v{O[0]+r}, v{O[0]+r}, v{vT[3]}")
    for k in range(6):
        a(f"v_cvt_pk_bf16_f32 v{P[0]+k}, v{O[0]+2*k}, v{O[0]+2*k+1}")
    a(f"buffer_store_dwordx2 v[{P[0]}:{P[0]+1}], v{vT[2]}, s[{SO}:{SO+3}], s{sT2} offen")
    a(f"buffer_store_dwordx2 v[{P[0]+2}:{P[0]+3}], v{vT[2]}, s[{SO}:{SO+3}], s{sT2} offen offset:256")
    a(f"s_mov_b32 exec_hi, 0")
    a(f"buffer_store_dwordx2 v[{P[0]+4}:{P[0]+5}], v{vT[2]}, s[{SO}:{SO+3}], s{sT2} offen offset:512")
    a.label(END)
    a("s_endpgm")
    a.label(Lslow)
    vM, vMn, vAl = vT[0], vT[1], vT[4]
    a(f"s_mul_i32 s{sT}, s{sKh}, 1280")
    a(f"v_subrev_u32 v{vK1a}, s{sT}, v{vK1b}")
    a(f"v_subrev_u32 v{vK2a}, s{sT}, v{vK2b}")
    a(f"v_subrev_u32 v{vVa}, s{sT}, v{vVb}")
    a(f"v_mov_b32 v{vM}, {f2u(-3.0e38):#x}")
    for r in range(16):
        a(f"v_mov_b32 v{O[0]+r}, 0")
    a(f"s_mov_b32 s{sTrip}, 0")
    Ls = a.newlabel("k2sl")
    a.label(Ls)
    a(f"s_mul_i32 s{sT}, s{sTrip}, 1280")
    a(f"s_lshr_b32 s{sTg}, s{sTrip}, 3")
    a(f"s_mul_i32 s{sTg}, s{sTg}, 10240")
    a(f"s_add_u32 s{sT}, s{sT}, s{sTg}")
    a(f"buffer_load_dwordx4 v[{K1}:{K1+3}], v{vK1a}, s[{SKV}:{SKV+3}], s{sT} offen")
    a(f"buffer_load_dwordx2 v[{K2}:{K2+1}], v{vK2a}, s[{SKV}:{SKV+3}], s{sT} offen")
    a(f"s_mov_b64 exec, s[{sVm}:{sVm+1}]")
    a(f"buffer_load_dwordx4 v[{V[0]}:{V[0]+3}], v{vVa}, s[{SKV}:{SKV+3}], s{sT} offen")
    a(f"buffer_load_dwordx4 v[{V[1]}:{V[1]+3}], v{vVa}, s[{SKV}:{SKV+3}], s{sT} offen offset:640")
    a(f"s_mov_b64 exec, -1")
    a("s_waitcnt vmcnt(0)")
    a(qk1(0)); a(qk2(0))
    a("s_nop 7"); a("s_nop 4")
    s0 = Sx[0]
    a(f"v_max3_f32 v{vMn}, v{s0}, v{s0+1}, v{vM}")
    for r in range(2, 16, 2):
        a(f"v_max3_f32 v{vMn}, v{s0+r}, v{s0+r+1}, v{vMn}")
    a(f"v_mov_b32 v{vAl}, v{vMn}")
    a("s_nop 1")
    a(f"v_permlane32_swap_b32 v{vMn}, v{vAl}")
    a(f"v_max_f32 v{vMn}, v{vMn}, v{vAl}")
    a(f"v_sub_f32 v{vAl}, v{vM}, v{vMn}")
    a(f"v_exp_f32 v{vAl}, v{vAl}")
    a(f"v_mov_b32 v{vM}, v{vMn}")
    for r in range(16):
        a(f"v_sub_f32 v{s0+r}, v{s0+r}, v{vMn}")
        a(f"v_mul_f32 v{O[0]+r}, v{O[0]+r}, v{vAl}")
    for g in range(4):
        vgroup(0, g)
    a("s_nop 1")
    a(pv(0, 0)); a(pv(0, 1))
    a(f"s_add_u32 s{sTrip}, s{sTrip}, 1")
    a(f"s_cmp_lt_u32 s{sTrip}, 64")
    a("s_nop 7"); a("s_nop 3")
    a(f"s_cbranch_scc1 {Ls}")
    a(f"s_branch {Lfin}")
    return R.hi, XB + 8*4096
```

```python
from asmlib import *
from layout import *

def gen_gemm(a, name, kind):
    kernel_header(a, name)
    END = f"{name}_end"
    big = kind == 'f1'
    NF = 4 if big else 5
    AR = 16 if big else 4
    nsteps = {'o': 20, 'f1': 40, 'f2': 54}[kind]
    NCH = (nsteps + 3)//4
    NWG = 224 if big else 256
    NS = 4
    CHB = NF*4096
    n = NF + 4
    sW_, sRt, sCt, sC, sT, sT2, sCnt, sWo, sXo, sSt, sT3 = range(28, 39)
    SW, SX, SR, SO, SS = 8, 12, 16, 20, 24
    a(f"s_cmp_ge_u32 s2, {NWG}")
    a(f"s_cbranch_scc1 {END}")
    a("s_load_dwordx2 s[4:5], s[0:1], 64")
    if kind == 'o':
        a("s_load_dwordx2 s[6:7], s[0:1], 0")
    elif kind == 'f2':
        a("s_load_dwordx2 s[6:7], s[0:1], 48")
    R = Regs(1)
    vL = R.alloc()
    vT = [R.alloc() for _ in range(8)]
    vWo, vXo, vRo = R.alloc(), R.alloc(), R.alloc()
    vA = [R.alloc() for _ in range(4 if big else 2)]
    X = [[R.alloc(4, 4) for _ in range(4)] for _ in range(NS)]
    Wf = [[R.alloc(4, 4) for _ in range(NF)] for _ in range(2)]
    acc = [R.alloc(AR, 4) for _ in range(NF)]
    if big:
        vCs = R.alloc(16, 4)
        vOne = R.alloc(4, 4)
        vSt = R.alloc(8, 4)
    else:
        vRes = R.alloc(10, 2)
    a(f"v_lshrrev_b32 v{vT[0]}, 6, v0")
    a(f"v_and_b32 v{vL}, 63, v0")
    a(f"v_readfirstlane_b32 s{sW_}, v{vT[0]}")
    if big:
        a(f"s_bfe_u32 s{sRt}, s2, 0x20001")
        a(f"s_lshl_b32 s{sRt}, s{sRt}, 2")
        a(f"s_bfe_u32 s{sT}, s2, 0x20003")
        a(f"s_add_u32 s{sRt}, s{sRt}, s{sT}")
        a(f"s_and_b32 s{sCt}, s2, 1")
        a(f"s_mul_i32 s{sCt}, s{sCt}, 7")
        a(f"s_lshr_b32 s{sT2}, s2, 5")
        a(f"s_add_u32 s{sCt}, s{sCt}, s{sT2}")
        a(f"s_mul_i32 s{sT}, s{sT}, 3")
        a(f"s_add_u32 s{sC}, s{sT}, s{sT2}")
        a(f"s_sub_u32 s{sT}, s{sC}, {NCH}")
        a(f"s_cmp_ge_u32 s{sC}, {NCH}")
        a(f"s_cselect_b32 s{sC}, s{sT}, s{sC}")
    else:
        a(f"s_bfe_u32 s{sRt}, s2, 0x20001")
        a(f"s_lshl_b32 s{sRt}, s{sRt}, 3")
        a(f"s_bfe_u32 s{sT}, s2, 0x30003")
        a(f"s_add_u32 s{sRt}, s{sRt}, s{sT}")
        a(f"s_and_b32 s{sCt}, s2, 1")
        a(f"s_lshl_b32 s{sCt}, s{sCt}, 2")
        a(f"s_lshr_b32 s{sT2}, s2, 6")
        a(f"s_add_u32 s{sCt}, s{sCt}, s{sT2}")
        if kind == 'f2':
            a(f"s_mul_i32 s{sT2}, s{sT2}, 3")
            a(f"s_lshl_b32 s{sT}, s{sT}, 1")
        a(f"s_add_u32 s{sC}, s{sT}, s{sT2}")
        for _ in range(2):
            a(f"s_sub_u32 s{sT}, s{sC}, {NCH}")
            a(f"s_cmp_ge_u32 s{sC}, {NCH}")
            a(f"s_cselect_b32 s{sC}, s{sT}, s{sC}")
    WOFF = {'o': OFF_WO, 'f1': OFF_W1, 'f2': OFF_W2}[kind]
    XOFF = {'o': OFF_O, 'f1': OFF_H, 'f2': OFF_H1}[kind]
    a(f"s_mul_i32 s{sT}, s{sCt}, {nsteps*NF*1024}")
    a(f"s_lshl_b32 s{sRt}, s{sRt}, 2")
    a(f"s_add_u32 s{sRt}, s{sRt}, s{sW_}")
    a(f"s_mul_i32 s{sT2}, s{sRt}, {nsteps*1024}")
    a(f"s_mul_i32 s{sSt}, s{sW_}, {NF*1024}")
    a(f"v_lshlrev_b32 v{vXo}, 4, v{vL}")
    a(f"v_add_u32 v{vWo}, s{sSt}, v{vXo}")
    a("s_waitcnt lgkmcnt(0)")
    srd(a, SW, 4, 5, nsteps*NF*1024, off_sgpr=sT, off_imm=WOFF)
    srd(a, SX, 4, 5, nsteps*1024, off_sgpr=sT2, off_imm=XOFF)

    def issue_w(stage):
        a(f"s_mul_i32 s{sWo}, s{sC}, {CHB}")
        a(f"s_add_u32 m0, s{sSt}, {stage*CHB}")
        a(f"s_lshl_b32 s{sXo}, s{sC}, 12")
        for f in range(min(NF, 4)):
            a(f"buffer_load_dwordx4 v{vWo}, s[{SW}:{SW+3}], s{sWo} offen offset:{f*1024} lds")
        if NF == 5:
            a(f"s_add_u32 m0, s{sSt}, {stage*CHB + 4096}")
            a(f"s_add_u32 s{sWo}, s{sWo}, 4096")
            a(f"buffer_load_dwordx4 v{vWo}, s[{SW}:{SW+3}], s{sWo} offen lds")
        a(f"s_add_u32 s{sC}, s{sC}, 1")
        a(f"s_cmp_eq_u32 s{sC}, {NCH}")
        a(f"s_cselect_b32 s{sC}, 0, s{sC}")
    def issue_x(stage):
        for s in range(4):
            x = X[stage][s]
            a(f"buffer_load_dwordx4 v[{x}:{x+3}], v{vXo}, s[{SX}:{SX+3}], s{sXo} offen offset:{s*1024}")
    issue_w(0); issue_x(0)
    nside = 0
    if kind == 'o':
        srd(a, SR, 6, 7, S*D*2)
        a(f"v_and_b32 v{vT[0]}, 15, v{vL}")
        a(f"v_mul_u32_u24 v{vRo}, 1280, v{vT[0]}")
        a(f"v_lshrrev_b32 v{vT[0]}, 4, v{vL}")
        a(f"v_lshl_add_u32 v{vRo}, v{vT[0]}, 3, v{vRo}")
        a(f"s_mul_i32 s{sT}, s{sRt}, {16*1280}")
        a(f"s_mul_i32 s{sT2}, s{sCt}, 160")
        a(f"s_add_u32 s{sT3}, s{sT}, s{sT2}")
        for f in range(5):
            a(f"buffer_load_dwordx2 v[{vRes+2*f}:{vRes+2*f+1}], v{vRo}, s[{SR}:{SR+3}], s{sT3} offen offset:{32*f}")
        nside = 5
    def h_addr(v, s):
        a(f"v_and_b32 v{vT[0]}, 15, v{vL}")
        a(f"v_lshlrev_b32 v{v}, 4, v{vT[0]}")
        a(f"v_lshrrev_b32 v{vT[0]}, 5, v{vL}")
        a(f"v_lshl_add_u32 v{v}, v{vT[0]}, 9, v{v}")
        a(f"v_bfe_u32 v{vT[0]}, v{vL}, 4, 1")
        a(f"v_lshl_add_u32 v{v}, v{vT[0]}, 3, v{v}")
        a(f"s_lshr_b32 s{sT}, s{sRt}, 1")
        a(f"s_mul_i32 s{sT}, s{sT}, 40960")
        a(f"s_and_b32 s{sT2}, s{sRt}, 1")
        a(f"s_lshl_b32 s{sT2}, s{sT2}, 8")
        a(f"s_add_u32 s{sT}, s{sT}, s{sT2}")
        a(f"s_mul_i32 s{sT2}, s{sCt}, 5120")
        a(f"s_add_u32 s{s}, s{sT}, s{sT2}")
    if kind == 'f2':
        srd(a, SR, 4, 5, SZ_H, off_imm=OFF_H)
        h_addr(vRo, sT3)
        for f in range(5):
            if f == 4:
                a(f"s_add_u32 s{sT3}, s{sT3}, 4096")
            a(f"buffer_load_dwordx2 v[{vRes+2*f}:{vRes+2*f+1}], v{vRo}, s[{SR}:{SR+3}], s{sT3} offen offset:{1024*(f%4)}")
        nside = 5
    if big:
        srd(a, SR, 4, 5, SZ_ST, off_imm=OFF_ST)
        a(f"v_and_b32 v{vT[0]}, 31, v{vL}")
        a(f"v_lshlrev_b32 v{vRo}, 3, v{vT[0]}")
        a(f"v_lshrrev_b32 v{vT[0]}, 5, v{vL}")
        a(f"v_lshl_add_u32 v{vRo}, v{vT[0]}, 16, v{vRo}")
        a(f"s_lshl_b32 s{sT3}, s{sRt}, 8")
        for k in range(4):
            a(f"buffer_load_dwordx2 v[{vSt+2*k}:{vSt+2*k+1}], v{vRo}, s[{SR}:{SR+3}], s{sT3} offen")
            if k < 3:
                a(f"s_add_u32 s{sT3}, s{sT3}, 16384")
        nside = 4
    for st in range(1, NS):
        issue_w(st); issue_x(st)
    if big:
        for f in range(4):
            a(f"s_add_u32 s{sT}, s{sW_}, {f}")
            a(f"s_and_b32 s{sT}, s{sT}, 3")
            a(f"s_lshl_b32 s{sT}, s{sT}, 10")
            a(f"v_add_u32 v{vA[f]}, s{sT}, v{vXo}")
        for r in range(16):
            a(f"v_mov_b32 v{vCs+r}, 0")
        for r in range(4):
            a(f"v_mov_b32 v{vOne+r}, 0x3f803f80")
    else:
        a(f"v_mov_b32 v{vA[0]}, v{vXo}")
        a(f"v_add_u32 v{vA[1]}, {2*CHB}, v{vXo}")
    for f in range(NF):
        for r in range(AR):
            a(f"v_mov_b32 v{acc[f]+r}, 0")
    def reads(stage, s, buf):
        for f in range(NF):
            w = Wf[buf][f]
            if big:
                a(f"ds_read_b128 v[{w}:{w+3}], v{vA[f]} offset:{stage*CHB + s*4096}")
            else:
                a(f"ds_read_b128 v[{w}:{w+3}], v{vA[stage//2]} offset:{(stage%2)*CHB + s*5120 + f*1024}")
    def mf(d, w, x):
        if big:
            return f"v_mfma_f32_32x32x16_bf16 v[{d}:{d+15}], v[{w}:{w+3}], v[{x}:{x+3}], v[{d}:{d+15}]"
        return f"v_mfma_f32_16x16x32_bf16 v[{d}:{d+3}], v[{w}:{w+3}], v[{x}:{x+3}], v[{d}:{d+3}]"
    a(f"s_mov_b32 s{sCnt}, 0")
    a(f"s_waitcnt vmcnt({3*n + nside})")
    a("s_barrier")
    reads(0, 0, 0)
    Lm, Lx = a.newlabel("gm"), a.newlabel("gx")
    a.label(Lm)
    for st in range(NS):
        for s in range(4):
            buf = s & 1
            if s < 3:
                reads(st, s+1, buf ^ 1)
                a(f"s_waitcnt lgkmcnt({NF})")
            else:
                a(f"s_waitcnt lgkmcnt(0) vmcnt({2*n})")
                a("s_barrier")
                reads((st+1) % NS, 0, buf ^ 1)
                a(f"s_cmp_ge_u32 s{sCnt}, {NCH-NS}")
                a(f"s_cselect_b32 s{SW+2}, 0, s{SW+2}")
                a(f"s_cselect_b32 s{SX+2}, 0, s{SX+2}")
            for f in range(NF):
                a(mf(acc[f], Wf[buf][f], X[st][s]))
                if s == 3 and f == 0:
                    issue_w(st)
            if big:
                a(mf(vCs, Wf[buf][0], vOne))
        issue_x(st)
        a(f"s_add_u32 s{sCnt}, s{sCnt}, 1")
        a(f"s_cmp_lt_u32 s{sCnt}, {NCH}")
        if st < NS-1:
            if (NCH - 1) % NS == st:
                a(f"s_cbranch_scc0 {Lx}")
        else:
            a(f"s_cbranch_scc1 {Lm}")
    a.label(Lx)
    if kind in ('o', 'f2'):
        T = X[0][0]
        a("s_waitcnt vmcnt(0) lgkmcnt(0)")
        a("s_nop 4")
        for f in range(5):
            for k in range(2):
                r = vRes + 2*f + k
                a(f"v_lshlrev_b32 v{vT[0]}, 16, v{r}")
                a(f"v_and_b32 v{vT[1]}, 0xffff0000, v{r}")
                a(f"v_add_f32 v{vT[0]}, v{vT[0]}, v{acc[f]+2*k}")
                a(f"v_add_f32 v{vT[1]}, v{vT[1]}, v{acc[f]+2*k+1}")
                a(f"v_cvt_pk_bf16_f32 v{r}, v{vT[0]}, v{vT[1]}")
        if kind == 'o':
            srd(a, SO, 4, 5, SZ_H, off_imm=OFF_H)
            h_addr(vRo, sT3)
            for f in range(5):
                if f == 4:
                    a(f"s_add_u32 s{sT3}, s{sT3}, 4096")
                a(f"buffer_store_dwordx2 v[{vRes+2*f}:{vRes+2*f+1}], v{vRo}, s[{SO}:{SO+3}], s{sT3} offen offset:{1024*(f%4)}")
            su, sq = T, T+1
            a(f"v_mov_b32 v{su}, 0")
            a(f"v_mov_b32 v{sq}, 0")
            for r in range(vRes, vRes+10):
                a(f"v_lshlrev_b32 v{vT[0]}, 16, v{r}")
                a(f"v_and_b32 v{vT[1]}, 0xffff0000, v{r}")
                a(f"v_add_f32 v{su}, v{su}, v{vT[0]}")
                a(f"v_fmac_f32 v{sq}, v{vT[0]}, v{vT[0]}")
                a(f"v_add_f32 v{su}, v{su}, v{vT[1]}")
                a(f"v_fmac_f32 v{sq}, v{vT[1]}, v{vT[1]}")
            for op in ("v_permlane32_swap_b32", "v_permlane16_swap_b32"):
                a(f"v_mov_b32 v{T+2}, v{su}")
                a(f"v_mov_b32 v{T+3}, v{sq}")
                a("s_nop 1")
                a(f"{op} v{su}, v{T+2}")
                a(f"{op} v{sq}, v{T+3}")
                a(f"v_add_f32 v{su}, v{su}, v{T+2}")
                a(f"v_add_f32 v{sq}, v{sq}, v{T+3}")
            srd(a, SS, 4, 5, SZ_ST, off_imm=OFF_ST)
            a(f"v_lshlrev_b32 v{vT[0]}, 3, v{vL}")
            a(f"s_lshl_b32 s{sT}, s{sCt}, 14")
            a(f"s_lshl_b32 s{sT2}, s{sRt}, 7")
            a(f"s_add_u32 s{sT}, s{sT}, s{sT2}")
            a(f"s_mov_b64 exec, 0xffff")
            a(f"buffer_store_dwordx2 v[{su}:{su+1}], v{vT[0]}, s[{SS}:{SS+3}], s{sT} offen")
        else:
            srd(a, SO, 6, 7, S*D*2)
            a(f"v_and_b32 v{vT[0]}, 15, v{vL}")
            a(f"v_mul_u32_u24 v{vRo}, 1280, v{vT[0]}")
            a(f"v_lshrrev_b32 v{vT[0]}, 4, v{vL}")
            a(f"v_lshl_add_u32 v{vRo}, v{vT[0]}, 3, v{vRo}")
            a(f"s_mul_i32 s{sT}, s{sRt}, {16*1280}")
            a(f"s_mul_i32 s{sT2}, s{sCt}, 160")
            a(f"s_add_u32 s{sT3}, s{sT}, s{sT2}")
            for f in range(5):
                a(f"buffer_store_dwordx2 v[{vRes+2*f}:{vRes+2*f+1}], v{vRo}, s[{SO}:{SO+3}], s{sT3} offen offset:{32*f}")
        lds = NS*CHB
    else:
        XB = NS*CHB
        a(f"s_lshl_b32 s{sT}, s{sW_}, 7")
        a(f"s_add_u32 s{sT}, s{sT}, {XB}")
        a(f"v_lshrrev_b32 v{vT[0]}, 5, v{vL}")
        a(f"v_lshl_add_u32 v{vT[1]}, v{vT[0]}, 6, s{sT}")
        a(f"v_add_f32 v{vSt}, v{vSt}, v{vSt+2}")
        a(f"v_add_f32 v{vSt+1}, v{vSt+1}, v{vSt+3}")
        a(f"v_add_f32 v{vSt+4}, v{vSt+4}, v{vSt+6}")
        a(f"v_add_f32 v{vSt+5}, v{vSt+5}, v{vSt+7}")
        a(f"v_add_f32 v{vSt}, v{vSt}, v{vSt+4}")
        a(f"v_add_f32 v{vSt+1}, v{vSt+1}, v{vSt+5}")
        a(f"v_mov_b32 v{vSt+2}, v{vSt}")
        a(f"v_mov_b32 v{vSt+3}, v{vSt+1}")
        a("s_nop 1")
        a(f"v_permlane32_swap_b32 v{vSt}, v{vSt+2}")
        a(f"v_permlane32_swap_b32 v{vSt+1}, v{vSt+3}")
        a("s_mov_b32 exec_lo, 1\ns_mov_b32 exec_hi, 1")
        for g in range(4):
            a(f"ds_write_b128 v{vT[1]}, v[{vCs+4*g}:{vCs+4*g+3}] offset:{16*g}")
        a("s_mov_b64 exec, -1")
        a(f"v_add_f32 v{vSt}, v{vSt}, v{vSt+2}")
        a(f"v_add_f32 v{vSt+1}, v{vSt+1}, v{vSt+3}")
        q = vSt
        a(f"v_mul_f32 v{q}, {f2u(1.0/D):#x}, v{q}")
        a(f"v_mul_f32 v{q+1}, {f2u(1.0/D):#x}, v{q+1}")
        a(f"v_fma_f32 v{q+1}, -v{q}, v{q}, v{q+1}")
        a(f"v_max_f32 v{q+1}, 0, v{q+1}")
        a(f"v_add_f32 v{q+1}, {f2u(EPS):#x}, v{q+1}")
        a(f"v_rsq_f32 v{q+1}, v{q+1}")
        srd(a, SO, 4, 5, SZ_H1, off_imm=OFF_H1)
        a(f"v_mul_f32_e64 v{q}, -v{q}, v{q+1}")
        a(f"v_bfe_u32 v{vT[2]}, v{vL}, 4, 1")
        a(f"v_mul_u32_u24 v{vRo}, {54*1024}, v{vT[2]}")
        a(f"v_lshl_add_u32 v{vRo}, v{vT[0]}, 8, v{vRo}")
        a(f"v_and_b32 v{vT[2]}, 15, v{vL}")
        a(f"v_lshl_add_u32 v{vRo}, v{vT[2]}, 4, v{vRo}")
        a(f"s_mul_i32 s{sT3}, s{sRt}, {2*54*1024}")
        a(f"v_lshlrev_b32 v{vT[1]}, 6, v{vT[0]}")
        a("s_waitcnt vmcnt(0) lgkmcnt(0)")
        a("s_barrier")
        C = X[0][0]
        for f in range(4):
            a(f"s_add_u32 s{sT}, s{sW_}, {f}")
            a(f"s_and_b32 s{sT}, s{sT}, 3")
            a(f"s_lshl_b32 s{sT}, s{sT}, 7")
            a(f"s_add_u32 s{sT}, s{sT}, {XB}")
            a(f"v_add_u32 v{vT[2]}, s{sT}, v{vT[1]}")
            for g in range(4):
                a(f"ds_read_b128 v[{C+16*f+4*g}:{C+16*f+4*g+3}], v{vT[2]} offset:{16*g}")
        PK = Wf[0][0]
        for f in range(4):
            a(f"s_waitcnt lgkmcnt({12-4*f})")
            for r in range(16):
                a(f"v_mul_f32 v{C+16*f+r}, v{q}, v{C+16*f+r}")
            for r in range(16):
                a(f"v_fma_f32 v{C+16*f+r}, v{q+1}, v{acc[f]+r}, v{C+16*f+r}")
            for r in range(16):
                a(f"v_max_f32 v{C+16*f+r}, 0, v{C+16*f+r}")
            pk = PK + 8*(f % 4)
            for k in range(8):
                a(f"v_cvt_pk_bf16_f32 v{pk+k}, v{C+16*f+2*k}, v{C+16*f+2*k+1}")
            a(f"s_add_u32 s{sT}, s{sW_}, {f}")
            a(f"s_and_b32 s{sT}, s{sT}, 3")
            a(f"s_lshl_b32 s{sT2}, s{sCt}, 2")
            a(f"s_add_u32 s{sT}, s{sT}, s{sT2}")
            Lsk = a.newlabel("gsk")
            a(f"s_cmp_ge_u32 s{sT}, 54")
            a(f"s_cbranch_scc1 {Lsk}")
            a(f"s_lshl_b32 s{sT}, s{sT}, 10")
            a(f"s_add_u32 s{sT}, s{sT}, s{sT3}")
            a(f"buffer_store_dwordx4 v[{pk}:{pk+3}], v{vRo}, s[{SO}:{SO+3}], s{sT} offen")
            a(f"buffer_store_dwordx4 v[{pk+4}:{pk+7}], v{vRo}, s[{SO}:{SO+3}], s{sT} offen offset:512")
            a.label(Lsk)
        lds = XB + 512
    a.label(END)
    a("s_endpgm")
    return R.hi, lds
```

```python
S, D, H, DH, DFF = 2048, 640, 32, 20, 1728
SZ_Q = 32*81920
OFF_Q  = 0
OFF_KV = OFF_Q + SZ_Q
SZ_KV  = 32*163840
OFF_O  = OFF_KV + SZ_KV
SZ_O   = 128*20*1024
OFF_H  = OFF_O + SZ_O
SZ_H   = 64*40*1024
OFF_H1 = OFF_H + SZ_H
SZ_H1  = 128*54*1024
OFF_WO = OFF_H1 + SZ_H1
SZ_WO  = 8*20*5*1024
OFF_W1 = OFF_WO + SZ_WO
SZ_W1  = 14*40*4*1024
OFF_W2 = OFF_W1 + SZ_W1
SZ_W2  = 8*54*5*1024
OFF_ST = OFF_W2 + SZ_W2
SZ_ST  = 8*2048*8
WS_END = OFF_ST + SZ_ST
QSCALE = (DH ** -0.5) * 1.4426950408889634
EPS = 1e-5
import struct
def f2u(x):
    return struct.unpack("<I", struct.pack("<f", x))[0]
```

```python
import sys, os
import asmlib
asmlib.PROF = bool(os.environ.get('PROF'))
from asmlib import *
from layout import *
from k1 import gen_k1
from k2 import gen_k2
from kg import gen_gemm

HEAD = open("sequential_preLN__mha_block__dense_activation_relu__prompt.s.ref").read().split("; Override launch")[0]

def build(extra_empty=0):
    a = Asm()
    ks = []
    v, l = gen_k1(a, "qkv_kernel");        ks.append(("qkv_kernel", 240, 512, v, l))
    v, l = gen_k2(a, "attn_kernel");       ks.append(("attn_kernel", 256, 512, v, l))
    v, l = gen_gemm(a, "oproj_kernel", 'o');  ks.append(("oproj_kernel", 256, 256, v, l))
    v, l = gen_gemm(a, "ffn1_kernel", 'f1');  ks.append(("ffn1_kernel", 224, 256, v, l))
    v, l = gen_gemm(a, "ffn2_kernel", 'f2');  ks.append(("ffn2_kernel", 256, 256, v, l))
    launches = list(ks)
    if extra_empty:
        kernel_header(a, "nop_kernel"); a("s_endpgm")
        ks.append(("nop_kernel", 256, 256, 8, 0))
        launches = launches + [ks[-1]]*extra_empty
    out = HEAD
    for n, g, b, v, l in launches:
        out += f"; @launch kernel={n} grid=({g},1,1) block=({b},1,1) lds={l}\n"
    out += '.amdgcn_target "amdgcn-amd-amdhsa--gfx950"\n'
    out += a.text()
    for n, g, b, v, l in ks:
        out += kernel_desc(n, v)
    return out

if __name__ == "__main__":
    path = sys.argv[1] if len(sys.argv) > 1 else "sequential_preLN__mha_block__dense_activation_relu__prompt.s"
    extra = int(sys.argv[2]) if len(sys.argv) > 2 else 0
    open(path, "w").write(build(extra))
    print("wrote", path)
```

```python
class Asm:
    def __init__(self):
        self.lines = []
        self._lab = 0
    def __call__(self, s, *a):
        for ln in s.split("\n"):
            ln = ln.strip()
            if ln:
                self.lines.append("    " + ln)
    def label(self, name):
        self.lines.append(name + ":")
    def newlabel(self, p="L"):
        self._lab += 1
        return f"{p}_{self._lab}"
    def raw(self, s):
        self.lines.append(s)
    def c(self, s):
        self.lines.append("    ; " + s)
    def text(self):
        return "\n".join(self.lines) + "\n"

def vr(b, n=1):
    return f"v{b}" if n == 1 else f"v[{b}:{b+n-1}]"
def sr(b, n=1):
    return f"s{b}" if n == 1 else f"s[{b}:{b+n-1}]"

class Regs:
    def __init__(self, start=0, limit=256):
        self.n = start
        self.limit = limit
        self.hi = start
    def alloc(self, n=1, align=1):
        if n >= 2 and align < 2: align = 2
        b = (self.n + align - 1) // align * align
        self.n = b + n
        self.hi = max(self.hi, self.n)
        assert self.n <= self.limit, f"out of regs {self.n}"
        return b

def kernel_header(a, name):
    a.raw(".text")
    a.raw(f".globl {name}")
    a.raw(".p2align 8")
    a.raw(f".type {name},@function")
    a.label(name)

def kernel_desc(name, nvgpr, nsgpr=96, accum=None):
    if accum is None:
        accum = (nvgpr + 3) // 4 * 4
    return f""".section .rodata,"a"
.p2align 6
.amdhsa_kernel {name}
  .amdhsa_next_free_vgpr {nvgpr}
  .amdhsa_next_free_sgpr {nsgpr}
  .amdhsa_accum_offset {accum}
  .amdhsa_group_segment_fixed_size 0
  .amdhsa_kernarg_size 72
  .amdhsa_user_sgpr_count 2
  .amdhsa_user_sgpr_kernarg_segment_ptr 1
  .amdhsa_system_sgpr_workgroup_id_x 1
.end_amdhsa_kernel
"""

def srd(a, d, base_lo, base_hi, nbytes, off_sgpr=None, off_imm=0):
    if off_sgpr is not None:
        a(f"s_add_u32 s{d}, s{base_lo}, s{off_sgpr}")
        a(f"s_addc_u32 s{d+1}, s{base_hi}, 0")
        if off_imm:
            a(f"s_add_u32 s{d}, s{d}, {off_imm}")
            a(f"s_addc_u32 s{d+1}, s{d+1}, 0")
    elif off_imm:
        a(f"s_add_u32 s{d}, s{base_lo}, {off_imm}")
        a(f"s_addc_u32 s{d+1}, s{base_hi}, 0")
    else:
        a(f"s_mov_b32 s{d}, s{base_lo}")
        a(f"s_mov_b32 s{d+1}, s{base_hi}")
    a(f"s_mov_b32 s{d+2}, {nbytes}")
    a(f"s_mov_b32 s{d+3}, 0x20000")


PROF = False
PROF_OFF = 200*1024*1024
def prof_start(a):
    if not PROF: return
    a("s_memrealtime s[84:85]")
    a("s_memtime s[86:87]")
def prof_mark(a, i):
    if not PROF: return
    a(f"s_memtime s[{70+2*i}:{71+2*i}]")
def prof_end(a, kidx):
    if not PROF: return
    a("s_waitcnt vmcnt(0) lgkmcnt(0)")
    a("s_memrealtime s[88:89]")
    a("s_memtime s[90:91]")
    a("s_load_dwordx2 s[92:93], s[0:1], 64")
    a("s_mov_b64 exec, -1")
    a("s_waitcnt lgkmcnt(0)")
    a(f"s_add_u32 s92, s92, {PROF_OFF + kidx*256*16*32}")
    a("s_addc_u32 s93, s93, 0")
    a("s_mov_b32 s94, 0x1000000")
    a("s_mov_b32 s95, 0x20000")
    a("v_mov_b32 v2, s84")
    a("v_mov_b32 v3, s88")
    a("s_sub_u32 s90, s90, s86")
    a("v_mov_b32 v4, s90")
    a("s_getreg_b32 s90, hwreg(HW_REG_XCC_ID)")
    a("v_mov_b32 v5, s90")
    for i in range(4):
        a(f"s_sub_u32 s90, s{70+2*i}, s86")
        a(f"v_mov_b32 v{6+i}, s90")
    a("v_lshrrev_b32 v1, 6, v0")
    a("v_lshlrev_b32 v1, 5, v1")
    a("s_lshl_b32 s90, s2, 9")
    a("s_mov_b64 exec, 1")
    a("buffer_store_dwordx4 v[2:5], v1, s[92:95], s90 offen")
    a("buffer_store_dwordx4 v[6:9], v1, s[92:95], s90 offen offset:16")
```

```python
from asmlib import *
import asmlib
from layout import *

def gen_k1(a, name):
    kernel_header(a, name)
    END = f"{name}_end"
    sW_, sI, sJ, sC, sXo, sWo, sSt, sT, sCnt, sMask = 20, 21, 22, 23, 24, 25, 26, 27, 28, 29
    sWf, sWt, sXb, sWb, sRot, sT2, sHS = 30, 31, 36, 37, 38, 39, 40
    SX, SWq, SO = 12, 16, 32
    a(f"s_cmp_ge_u32 s2, 240")
    a(f"s_cbranch_scc1 {END}")
    prof_start(a)
    a("s_load_dwordx4 s[4:7], s[0:1], 0")
    a("s_load_dwordx2 s[8:9], s[0:1], 64")
    R = Regs(1)
    vL = R.alloc()
    vT = [R.alloc() for _ in range(8)]
    vXo, vXo2, vWo, vWo2 = [R.alloc() for _ in range(4)]
    vXa = [R.alloc() for _ in range(4)]
    vWa = [R.alloc() for _ in range(4)]
    vSum = [R.alloc() for _ in range(4)]
    vSq = [R.alloc() for _ in range(4)]
    vOne = R.alloc(4, 4)
    F = [[R.alloc(4, 4) for _ in range(3)] for _ in range(4)]
    acc = [R.alloc(16, 4) for _ in range(2)]
    vCs = R.alloc(16, 4)
    a(f"v_lshrrev_b32 v{vT[0]}, 6, v0")
    a(f"v_and_b32 v{vL}, 63, v0")
    a(f"v_readfirstlane_b32 s{sW_}, v{vT[0]}")
    a(f"s_and_b32 s{sT}, s2, 1")
    a(f"s_mul_i32 s{sT}, s{sT}, 30")
    a(f"s_lshr_b32 s{sC}, s2, 3")
    a(f"s_add_u32 s{sT}, s{sT}, s{sC}")
    a(f"s_lshr_b32 s{sJ}, s{sT}, 2")
    a(f"s_and_b32 s{sT}, s{sT}, 3")
    a(f"s_bfe_u32 s{sI}, s2, 0x20001")
    a(f"s_lshl_b32 s{sI}, s{sI}, 2")
    a(f"s_add_u32 s{sI}, s{sI}, s{sT}")
    a(f"s_mul_i32 s{sT}, s{sT}, 3")
    a(f"s_add_u32 s{sC}, s{sJ}, s{sT}")
    for _ in range(2):
        a(f"s_sub_u32 s{sT}, s{sC}, 10")
        a(f"s_cmp_ge_u32 s{sC}, 10")
        a(f"s_cselect_b32 s{sC}, s{sT}, s{sC}")
    a(f"s_mul_i32 s{sXb}, s{sI}, 163840")
    a(f"s_lshl_b32 s{sWb}, s{sJ}, 8")
    a(f"s_lshl_b32 s{sSt}, s{sW_}, 10")
    a(f"s_and_b32 s{sWf}, s{sW_}, 3")
    a(f"s_lshr_b32 s{sWt}, s{sW_}, 2")
    a(f"v_lshrrev_b32 v{vT[0]}, 3, v0")
    a(f"v_mul_u32_u24 v{vXo}, 1280, v{vT[0]}")
    a(f"v_lshrrev_b32 v{vT[1]}, 4, v0")
    a(f"v_xor_b32 v{vT[2]}, v0, v{vT[1]}")
    a(f"v_and_b32 v{vT[2]}, 7, v{vT[2]}")
    a(f"v_lshl_add_u32 v{vXo}, v{vT[2]}, 4, v{vXo}")
    a(f"v_add_u32 v{vXo2}, 81920, v{vXo}")
    a(f"v_mul_u32_u24 v{vWo}, 3840, v{vT[1]}")
    a(f"v_lshlrev_b32 v{vT[2]}, 2, v{vT[1]}")
    a(f"v_xor_b32 v{vT[2]}, v0, v{vT[2]}")
    a(f"v_and_b32 v{vT[2]}, 15, v{vT[2]}")
    a(f"v_lshl_add_u32 v{vWo}, v{vT[2]}, 4, v{vWo}")
    a(f"v_add_u32 v{vWo2}, 122880, v{vWo}")
    a("s_waitcnt lgkmcnt(0)")
    srd(a, SX, 4, 5, S*D*2)
    srd(a, SWq, 6, 7, D*3*D*2)

    def dma_chunk():
        a(f"s_lshl_b32 s{sXo}, s{sC}, 7")
        a(f"s_mov_b32 m0, s{sSt}")
        a(f"s_add_u32 s{sXo}, s{sXo}, s{sXb}")
        a(f"buffer_load_dwordx4 v{vXo}, s[{SX}:{SX+3}], s{sXo} offen lds")
        a(f"s_add_u32 m0, s{sSt}, 8192")
        a(f"s_mul_i32 s{sWo}, s{sC}, 245760")
        a(f"buffer_load_dwordx4 v{vXo2}, s[{SX}:{SX+3}], s{sXo} offen lds")
        a(f"s_add_u32 m0, s{sSt}, 16384")
        a(f"s_add_u32 s{sWo}, s{sWo}, s{sWb}")
        a(f"buffer_load_dwordx4 v{vWo}, s[{SWq}:{SWq+3}], s{sWo} offen lds")
        a(f"s_add_u32 m0, s{sSt}, 24576")
        a(f"s_add_u32 s{sC}, s{sC}, 1")
        a(f"buffer_load_dwordx4 v{vWo2}, s[{SWq}:{SWq+3}], s{sWo} offen lds")
        a(f"s_cmp_eq_u32 s{sC}, 10")
        a(f"s_cselect_b32 s{sC}, 0, s{sC}")
        a(f"s_add_u32 s{sSt}, s{sSt}, 32768")
        a(f"s_and_b32 s{sSt}, s{sSt}, 0x1ffff")
    Lp = a.newlabel("k1p")
    a(f"s_mov_b32 s{sCnt}, 0")
    a.label(Lp)
    dma_chunk()
    a(f"s_add_u32 s{sCnt}, s{sCnt}, 1")
    a(f"s_cmp_lt_u32 s{sCnt}, 4")
    a(f"s_cbranch_scc1 {Lp}")
    a(f"s_lshl_b32 s{sRot}, s{sWt}, 1")
    a(f"s_add_u32 s{sRot}, s{sRot}, s{sWf}")
    a(f"v_and_b32 v{vT[0]}, 31, v{vL}")
    a(f"v_lshrrev_b32 v{vT[1]}, 5, v{vL}")
    a(f"v_bfe_u32 v{vT[2]}, v{vL}, 1, 3")
    a(f"v_xor_b32 v{vT[2]}, v{vT[2]}, v{vT[1]}")
    a(f"s_lshl_b32 s{sT}, s{sWt}, 13")
    a(f"v_lshl_add_u32 v{vT[0]}, v{vT[0]}, 7, s{sT}")
    a(f"v_bfe_u32 v{vT[3]}, v{vL}, 2, 2")
    a(f"v_lshl_add_u32 v{vT[4]}, v{vT[1]}, 3, v{vT[3]}")
    a(f"v_lshlrev_b32 v{vT[4]}, 8, v{vT[4]}")
    a(f"v_xor_b32 v{vT[3]}, s{sWf}, v{vT[3]}")
    a(f"v_lshl_add_u32 v{vT[4]}, v{vT[3]}, 6, v{vT[4]}")
    a(f"v_bfe_u32 v{vT[3]}, v{vL}, 4, 1")
    a(f"v_lshl_add_u32 v{vT[4]}, v{vT[3]}, 5, v{vT[4]}")
    a(f"v_and_b32 v{vT[3]}, 3, v{vL}")
    a(f"v_lshl_add_u32 v{vT[4]}, v{vT[3]}, 3, v{vT[4]}")
    for sp in range(4):
        a(f"s_add_u32 s{sT}, s{sRot}, {sp}")
        a(f"s_and_b32 s{sT}, s{sT}, 3")
        a(f"s_lshl_b32 s{sT2}, s{sT}, 1")
        a(f"v_xor_b32 v{vT[3]}, s{sT2}, v{vT[2]}")
        a(f"v_lshl_add_u32 v{vXa[sp]}, v{vT[3]}, 4, v{vT[0]}")
        a(f"s_lshl_b32 s{sT}, s{sT}, 12")
        a(f"s_add_u32 s{sT}, s{sT}, 16384")
        a(f"v_add_u32 v{vWa[sp]}, s{sT}, v{vT[4]}")
    for r in range(4):
        a(f"v_mov_b32 v{vOne+r}, 0x3f803f80")
        a(f"v_mov_b32 v{vSum[r]}, 0")
        a(f"v_mov_b32 v{vSq[r]}, 0")
    for r in range(16):
        a(f"v_mov_b32 v{acc[0]+r}, 0")
        a(f"v_mov_b32 v{acc[1]+r}, 0")
        a(f"v_mov_b32 v{vCs+r}, 0")
    a(f"s_mov_b32 s{sMask}, 0xffff0000")
    a(f"s_mov_b32 s{sCnt}, 0")

    def reads(sp, off):
        W, X0, X1 = F[sp]
        a(f"ds_read_b64_tr_b16 v[{W}:{W+1}], v{vWa[sp]} offset:{off}")
        a(f"ds_read_b64_tr_b16 v[{W+2}:{W+3}], v{vWa[sp]} offset:{off+1024}")
        a(f"ds_read_b128 v[{X0}:{X0+3}], v{vXa[sp]} offset:{off}")
        a(f"ds_read_b128 v[{X1}:{X1+3}], v{vXa[sp]} offset:{off+4096}")
    def stat(tb, r):
        x = F[0][1+tb] + r
        t0, t1 = vT[(2*r) % 8], vT[(2*r+1) % 8]
        return [f"v_lshlrev_b32 v{t0}, 16, v{x}", f"v_and_b32 v{t1}, s{sMask}, v{x}",
                f"v_add_f32 v{vSum[tb]}, v{vSum[tb]}, v{t0}", f"v_fmac_f32 v{vSq[tb]}, v{t0}, v{t0}",
                f"v_add_f32 v{vSum[2+tb]}, v{vSum[2+tb]}, v{t1}", f"v_fmac_f32 v{vSq[2+tb]}, v{t1}, v{t1}"]
    def mf(d, x, y, vtype):
        p, q = (x, y) if not vtype else (y, x)
        return f"v_mfma_f32_32x32x16_bf16 v[{d}:{d+15}], v[{p}:{p+3}], v[{q}:{q+3}], v[{d}:{d+15}]"

    prof_mark(a, 0)
    a("s_waitcnt vmcnt(12)")
    a("s_barrier")
    prof_mark(a, 1)
    a("s_waitcnt lgkmcnt(0)") if asmlib.PROF else None
    reads(0, 0)
    LV = a.newlabel("k1v")
    a(f"s_cmp_ge_u32 s{sJ}, 10")
    a(f"s_cbranch_scc1 {LV}")

    def mainloop(vtype):
        Lm = a.newlabel("k1m")
        a.label(Lm)
        for half in range(2):
            off = half*32768
            sv = []
            for tb in range(2):
                for r in range(4):
                    sv += stat(tb, r)
            for sp in range(4):
                W, X0, X1 = F[sp]
                if sp < 3:
                    reads(sp+1, off)
                    a("s_waitcnt lgkmcnt(4)")
                else:
                    a("s_waitcnt lgkmcnt(0) vmcnt(8)")
                    a("s_barrier")
                    if half == 0:
                        a(f"s_cmp_ge_u32 s{sCnt}, 3")
                        a(f"s_cselect_b32 s{SX+2}, 0, s{SX+2}")
                        a(f"s_cselect_b32 s{SWq+2}, 0, s{SWq+2}")
                    else:
                        for q in range(4):
                            a(f"v_xor_b32 v{vXa[q]}, 0x10000, v{vXa[q]}")
                            a(f"v_xor_b32 v{vWa[q]}, 0x10000, v{vWa[q]}")
                    reads(0, 32768 - off)
                ms = [mf(acc[0], W, X0, vtype), mf(acc[1], W, X1, vtype)]
                if sp in (1, 2):
                    ms.append(mf(vCs, W, vOne, vtype))
                if sp < 3:
                    chunk = sv[sp*16:(sp+1)*16]
                    per = (len(chunk) + len(ms) - 1)//len(ms)
                    for k, m in enumerate(ms):
                        a(m)
                        for x in chunk[k*per:(k+1)*per]:
                            a(x)
                else:
                    a(ms[0])
                    dma_chunk()
                    a(ms[1])
        a(f"s_add_u32 s{sCnt}, s{sCnt}, 1")
        a(f"s_cmp_lt_u32 s{sCnt}, 5")
        a(f"s_cbranch_scc1 {Lm}")
        prof_mark(a, 2)

    XB = 131072
    def stats_exchange(vtype):
        a(f"v_add_f32 v{vSum[0]}, v{vSum[0]}, v{vSum[2]}")
        a(f"v_add_f32 v{vSum[1]}, v{vSum[1]}, v{vSum[3]}")
        a(f"v_add_f32 v{vSq[0]}, v{vSq[0]}, v{vSq[2]}")
        a(f"v_add_f32 v{vSq[1]}, v{vSq[1]}, v{vSq[3]}")
        a("s_nop 1")
        a(f"v_permlane32_swap_b32 v{vSum[0]}, v{vSum[1]}")
        a(f"v_permlane32_swap_b32 v{vSq[0]}, v{vSq[1]}")
        p = F[1][0]
        a(f"v_add_f32 v{p}, v{vSum[0]}, v{vSum[1]}")
        a(f"v_add_f32 v{p+1}, v{vSq[0]}, v{vSq[1]}")
        a(f"s_lshl_b32 s{sT}, s{sWt}, 9")
        a(f"s_add_u32 s{sT}, s{sT}, {XB}")
        a(f"v_lshl_add_u32 v{vT[0]}, v{vL}, 3, s{sT}")
        a(f"s_lshl_b32 s{sT2}, s{sWf}, 10")
        a(f"v_add_u32 v{vT[1]}, s{sT2}, v{vT[0]}")
        a(f"ds_write_b64 v{vT[1]}, v[{p}:{p+1}]")
        a(f"s_lshl_b32 s{sT}, s{sW_}, 7")
        a(f"s_add_u32 s{sT}, s{sT}, {XB+4096}")
        if vtype:
            a(f"v_and_b32 v{vT[2]}, 31, v{vL}")
            a(f"v_lshl_add_u32 v{vT[2]}, v{vT[2]}, 2, s{sT}")
            a(f"ds_write_b32 v{vT[2]}, v{vCs}")
        else:
            a(f"v_lshrrev_b32 v{vT[2]}, 5, v{vL}")
            a(f"v_lshl_add_u32 v{vT[2]}, v{vT[2]}, 6, s{sT}")
            a(f"s_mov_b64 exec, 0x100000001" if False else "s_mov_b32 exec_lo, 1\ns_mov_b32 exec_hi, 1")
            for g in range(4):
                a(f"ds_write_b128 v{vT[2]}, v[{vCs+4*g}:{vCs+4*g+3}] offset:{16*g}")
            a("s_mov_b64 exec, -1")
        a(f"v_xor_b32 v{vT[2]}, 512, v{vT[2]}")
        a("s_waitcnt lgkmcnt(0)")
        a("s_barrier")
        q = F[2][0]
        for k in range(4):
            a(f"ds_read_b64 v[{q+2*k}:{q+2*k+1}], v{vT[0]} offset:{1024*k}")
        cs2 = q + 8
        if vtype:
            a(f"ds_read_b32 v{cs2}, v{vT[2]}")
        else:
            for g in range(4):
                a(f"ds_read_b128 v[{cs2+4*g}:{cs2+4*g+3}], v{vT[2]} offset:{16*g}")
        a("s_waitcnt lgkmcnt(0)")
        a(f"v_add_f32 v{q}, v{q}, v{q+2}")
        a(f"v_add_f32 v{q+1}, v{q+1}, v{q+3}")
        a(f"v_add_f32 v{q+4}, v{q+4}, v{q+6}")
        a(f"v_add_f32 v{q+5}, v{q+5}, v{q+7}")
        a(f"v_add_f32 v{q}, v{q}, v{q+4}")
        a(f"v_add_f32 v{q+1}, v{q+1}, v{q+5}")
        a(f"v_mul_f32 v{q}, {f2u(1.0/D):#x}, v{q}")
        a(f"v_mul_f32 v{q+1}, {f2u(1.0/D):#x}, v{q+1}")
        a(f"v_fma_f32 v{q+1}, -v{q}, v{q}, v{q+1}")
        a(f"v_max_f32 v{q+1}, 0, v{q+1}")
        a(f"v_add_f32 v{q+1}, {f2u(EPS):#x}, v{q+1}")
        a(f"v_rsq_f32 v{q+1}, v{q+1}")
        for r in range(1 if vtype else 16):
            a(f"v_add_f32 v{vCs+r}, v{vCs+r}, v{cs2+r}")
        return q

    mainloop(False)
    a("s_nop 7")
    a("s_nop 7")
    q = stats_exchange(False)
    a(f"s_cmp_lt_u32 s{sJ}, 5")
    a(f"s_cselect_b32 s{sT}, {f2u(QSCALE):#x}, 1.0")
    a(f"v_mul_f32 v{q+1}, s{sT}, v{q+1}")
    a(f"v_mul_f32 v{q}, -v{q}, v{q+1}" .replace("v_mul_f32", "v_mul_f32_e64"))
    a(f"v_mov_b32 v{q+2}, v{q}")
    a(f"v_mov_b32 v{q+3}, v{q+1}")
    a("s_nop 1")
    a(f"v_permlane32_swap_b32 v{q}, v{q+2}")
    a(f"v_permlane32_swap_b32 v{q+1}, v{q+3}")
    a(f"s_lshl_b32 s{sT}, s{sI}, 2")
    a(f"s_lshl_b32 s{sT2}, s{sWt}, 1")
    a(f"s_add_u32 s{sT}, s{sT}, s{sT2}")
    a(f"s_mul_i32 s{sXo}, s{sT}, 1280")
    a(f"s_lshr_b32 s{sT}, s{sT}, 3")
    a(f"s_mul_i32 s{sT}, s{sT}, 10240")
    a(f"s_add_u32 s{sT}, s{sT}, {OFF_KV}")
    a(f"s_cmp_lt_u32 s{sJ}, 5")
    a(f"s_cselect_b32 s{sT}, {OFF_Q}, s{sT}")
    a(f"s_mov_b32 s{sHS}, 163840")
    a(f"s_cselect_b32 s{sHS}, 81920, s{sHS}")
    a(f"s_cselect_b32 s{sT2}, 0, 5")
    a(f"s_add_u32 s{sXo}, s{sXo}, s{sT}")
    srd(a, SO, 8, 9, OFF_KV + SZ_KV)
    a(f"s_sub_u32 s{sT2}, s{sJ}, s{sT2}")
    a(f"s_lshl_b32 s{sT2}, s{sT2}, 5")
    a(f"s_lshl_b32 s{sT}, s{sWf}, 3")
    a(f"s_add_u32 s{sT2}, s{sT2}, s{sT}")
    a(f"v_lshrrev_b32 v{vT[0]}, 5, v{vL}")
    a(f"v_add_u32 v{vT[0]}, s{sT2}, v{vT[0]}")
    a(f"v_and_b32 v{vT[1]}, 31, v{vL}")
    a(f"v_lshlrev_b32 v{vT[1]}, 3, v{vT[1]}")
    P = F[0][0]
    for g in range(4):
        qd, hd, r5, ad = vT[2], vT[3], vT[4], vXa[g]
        a(f"v_add_u32 v{qd}, {2*g}, v{vT[0]}")
        a(f"v_mul_u32_u24 v{hd}, 13108, v{qd}")
        a(f"v_lshrrev_b32 v{hd}, 16, v{hd}")
        a(f"v_mad_i32_i24 v{r5}, v{hd}, -5, v{qd}")
        a(f"v_mul_lo_u32 v{ad}, v{hd}, s{sHS}")
        a(f"v_add_u32 v{ad}, v{ad}, v{vT[1]}")
        a(f"v_lshrrev_b32 v{qd}, 1, v{r5}")
        a(f"v_lshl_add_u32 v{ad}, v{qd}, 9, v{ad}")
        a(f"v_and_b32 v{qd}, 1, v{r5}")
        a(f"v_lshl_add_u32 v{qd}, v{qd}, 3, v{vT[1]}")
        a(f"v_cmp_gt_u32 vcc, 4, v{r5}")
        a("s_nop 1")
        a(f"v_cndmask_b32 v{qd}, 0, v{qd}, vcc")
        a(f"v_add_u32 v{ad}, v{ad}, v{qd}")
    for tb in range(2):
        nm, rs = q + 2*tb, q + 2*tb + 1
        for g in range(4):
            for i in range(4):
                r = 4*g + i
                a(f"v_mul_f32 v{vT[i]}, v{nm}, v{vCs+r}")
            for i in range(4):
                r = 4*g + i
                a(f"v_fmac_f32 v{vT[i]}, v{rs}, v{acc[tb]+r}")
            pp = P + 2*((tb*4+g) % 6)
            a(f"v_cvt_pk_bf16_f32 v{pp}, v{vT[0]}, v{vT[1]}")
            a(f"v_cvt_pk_bf16_f32 v{pp+1}, v{vT[2]}, v{vT[3]}")
            a(f"buffer_store_dwordx2 v[{pp}:{pp+1}], v{vXa[g]}, s[{SO}:{SO+3}], s{sXo} offen offset:{1280*tb}")
    prof_end(a, 0)
    a("s_endpgm")

    a.label(LV)
    mainloop(True)
    a("s_nop 7")
    a("s_nop 7")
    q = stats_exchange(True)
    a(f"v_mul_f32_e64 v{q}, -v{q}, v{q+1}")
    a(f"s_lshl_b32 s{sT}, s{sW_}, 9")
    a(f"s_add_u32 s{sT}, s{sT}, {XB+8192}")
    a(f"v_lshl_add_u32 v{vT[0]}, v{vL}, 2, s{sT}")
    a(f"ds_write_b32 v{vT[0]}, v{q}")
    a(f"ds_write_b32 v{vT[0]}, v{q+1} offset:256")
    a(f"v_lshrrev_b32 v{vT[1]}, 5, v{vL}")
    a(f"v_lshl_add_u32 v{vT[0]}, v{vT[1]}, 4, s{sT}")
    a(f"s_sub_u32 s{sT2}, s{sJ}, 10")
    a(f"s_lshl_b32 s{sT2}, s{sT2}, 7")
    a(f"s_lshl_b32 s{sT}, s{sWf}, 5")
    a(f"s_add_u32 s{sT2}, s{sT2}, s{sT}")
    a(f"v_and_b32 v{vT[2]}, 31, v{vL}")
    a(f"v_add_u32 v{vT[2]}, s{sT2}, v{vT[2]}")
    a(f"v_mul_u32_u24 v{vT[3]}, 3277, v{vT[2]}")
    a(f"v_lshrrev_b32 v{vT[3]}, 16, v{vT[3]}")
    a(f"v_mul_u32_u24 v{vT[4]}, 20, v{vT[3]}")
    a(f"v_sub_u32 v{vT[2]}, v{vT[2]}, v{vT[4]}")
    a(f"v_mul_u32_u24 v{vT[3]}, 163840, v{vT[3]}")
    a(f"v_lshl_add_u32 v{vT[3]}, v{vT[2]}, 4, v{vT[3]}")
    a(f"v_mul_u32_u24 v{vT[1]}, 320, v{vT[1]}")
    a(f"v_add_u32 v{vXa[0]}, v{vT[3]}, v{vT[1]}")
    a(f"s_lshr_b32 s{sT}, s{sI}, 1")
    a(f"s_mul_i32 s{sT}, s{sT}, 20480")
    a(f"s_and_b32 s{sT2}, s{sI}, 1")
    a(f"s_lshl_b32 s{sT2}, s{sT2}, 1")
    a(f"s_add_u32 s{sT2}, s{sT2}, s{sWt}")
    a(f"s_mul_i32 s{sT2}, s{sT2}, 2560")
    a(f"s_add_u32 s{sXo}, s{sT}, s{sT2}")
    a(f"s_add_u32 s{sXo}, s{sXo}, {OFF_KV+10240}")
    srd(a, SO, 8, 9, OFF_KV + SZ_KV)
    a("s_waitcnt lgkmcnt(0)")
    NM = F[0][0]
    RS = NM + 16
    P = F[3][0]
    for tb in range(2):
        for g in range(4):
            a(f"ds_read_b128 v[{NM+4*g}:{NM+4*g+3}], v{vT[0]} offset:{tb*128 + g*32}")
            a(f"ds_read_b128 v[{RS+4*g}:{RS+4*g+3}], v{vT[0]} offset:{256 + tb*128 + g*32}")
        a("s_waitcnt lgkmcnt(0)")
        for r in range(16):
            a(f"v_mul_f32 v{NM+r}, v{NM+r}, v{vCs}")
        for r in range(16):
            a(f"v_fmac_f32 v{NM+r}, v{RS+r}, v{acc[tb]+r}")
        for gp in range(2):
            pp = P + 4*gp
            for k in range(4):
                a(f"v_cvt_pk_bf16_f32 v{pp+k}, v{NM+8*gp+2*k}, v{NM+8*gp+2*k+1}")
            a("s_nop 1")
            a(f"v_permlane32_swap_b32 v{pp}, v{pp+2}")
            a(f"v_permlane32_swap_b32 v{pp+1}, v{pp+3}")
            a(f"buffer_store_dwordx4 v[{pp}:{pp+3}], v{vXa[0]}, s[{SO}:{SO+3}], s{sXo} offen offset:{tb*1280 + gp*640}")
        a("s_nop 1")
    prof_end(a, 0)
    a.label(END)
    a("s_endpgm")
    return R.hi, 131072 + 8192 + 4096

assert all((q*13108) >> 16 == q//5 for q in range(200))
assert all((f*3277) >> 16 == f//20 for f in range(700))
```

```python
from asmlib import *
import asmlib
from layout import *

def gen_prep(a, R0, sTask, sb, wsl, wsh, vL, skip):
    vS, vD, vCg, vKg = R0, R0+1, R0+2, R0+3
    vIn = R0 + 4
    vOut = vIn + 32
    SS, SD = sb, sb+4
    sP, sE, sB, sT, sU, sSel0, sSel1 = sb+8, sb+9, sb+10, sb+11, sb+12, sb+13, sb+14
    sPtr = sb+16
    Lw2, Lw1, Lgo, Lw = [a.newlabel("prep") for _ in range(4)]
    a(f"s_cmp_ge_u32 s{sTask}, 650")
    a(f"s_cbranch_scc1 {skip}")
    a(f"s_cmp_lt_u32 s{sTask}, 100")
    a(f"s_cbranch_scc0 {Lw2}")
    a(f"s_load_dwordx2 s[{sPtr}:{sPtr+1}], s[0:1], 16")
    a(f"s_mov_b32 s{SS+2}, {D*D*2}")
    a(f"s_mov_b32 s{sE}, 0")
    a(f"s_mov_b32 s{sU}, 20")
    a(f"s_mov_b32 s{sSel0}, {OFF_WO}")
    a(f"v_lshrrev_b32 v{vKg}, 4, v{vL}")
    a(f"v_lshlrev_b32 v{vS}, 3, v{vKg}")
    a(f"s_branch {Lw}")
    a.label(Lw2)
    a(f"s_cmp_lt_u32 s{sTask}, 370")
    a(f"s_cbranch_scc0 {Lw1}")
    a(f"s_load_dwordx2 s[{sPtr}:{sPtr+1}], s[0:1], 40")
    a(f"s_sub_u32 s{sTask}, s{sTask}, 100")
    a(f"s_mov_b32 s{SS+2}, {DFF*D*2}")
    a(f"s_mov_b32 s{sE}, {4*1280}")
    a(f"s_mov_b32 s{sU}, 54")
    a(f"s_mov_b32 s{sSel0}, {OFF_W2}")
    a(f"v_lshrrev_b32 v{vKg}, 4, v{vL}")
    a(f"v_lshrrev_b32 v{vS}, 5, v{vL}")
    a(f"v_lshlrev_b32 v{vS}, 4, v{vS}")
    a(f"v_and_b32 v{vD}, 1, v{vKg}")
    a(f"v_lshl_add_u32 v{vS}, v{vD}, 2, v{vS}")
    a.label(Lw)
    a(f"s_mov_b32 s{sP}, 1280")
    a(f"s_mul_i32 s{sT}, s{sTask}, 13108")
    a(f"s_lshr_b32 s{sT}, s{sT}, 16")
    a(f"s_mul_i32 s{sB}, s{sT}, 5")
    a(f"s_sub_u32 s{sTask}, s{sTask}, s{sB}")
    a(f"s_mul_i32 s{sSel1}, s{sT}, 5120")
    a(f"s_add_u32 s{sSel0}, s{sSel0}, s{sSel1}")
    a(f"s_mul_i32 s{sB}, s{sT}, {32*1280}")
    a(f"s_lshl_b32 s{sT}, s{sTask}, 8")
    a(f"s_add_u32 s{sB}, s{sB}, s{sT}")
    a(f"v_and_b32 v{vCg}, 15, v{vL}")
    a(f"s_lshl_b32 s{sT}, s{sTask}, 3")
    a(f"v_lshrrev_b32 v{vD}, 1, v{vCg}")
    a(f"v_add_u32 v{vD}, s{sT}, v{vD}")
    a(f"v_mul_u32_u24 v{vIn}, 13108, v{vD}")
    a(f"v_lshrrev_b32 v{vIn}, 16, v{vIn}")
    a(f"v_mad_i32_i24 v{vD}, v{vIn}, -5, v{vD}")
    a(f"s_mul_i32 s{sU}, s{sU}, 5")
    a(f"v_mad_u32_u24 v{vD}, v{vIn}, s{sU}, v{vD}")
    a(f"v_lshlrev_b32 v{vD}, 10, v{vD}")
    a(f"v_lshl_add_u32 v{vD}, v{vKg}, 8, v{vD}")
    a(f"v_and_b32 v{vIn}, 1, v{vCg}")
    a(f"v_lshl_add_u32 v{vD}, v{vIn}, 7, v{vD}")
    a(f"s_branch {Lgo}")
    a.label(Lw1)
    a(f"s_load_dwordx2 s[{sPtr}:{sPtr+1}], s[0:1], 32")
    a(f"s_sub_u32 s{sTask}, s{sTask}, 370")
    a(f"s_mov_b32 s{SS+2}, {DFF*D*2}")
    a(f"s_mov_b32 s{sE}, 0")
    a(f"s_mov_b32 s{sP}, 3456")
    a(f"s_mul_i32 s{sT}, s{sTask}, 4682")
    a(f"s_lshr_b32 s{sT}, s{sT}, 16")
    a(f"s_mul_i32 s{sB}, s{sT}, 14")
    a(f"s_sub_u32 s{sTask}, s{sTask}, s{sB}")
    a(f"s_mul_i32 s{sSel0}, s{sTask}, {40*4096}")
    a(f"s_lshl_b32 s{sSel1}, s{sT}, 13")
    a(f"s_add_u32 s{sSel0}, s{sSel0}, s{sSel1}")
    a(f"s_add_u32 s{sSel0}, s{sSel0}, {OFF_W1}")
    a(f"s_mul_i32 s{sB}, s{sT}, {32*3456}")
    a(f"s_lshl_b32 s{sT}, s{sTask}, 8")
    a(f"s_add_u32 s{sB}, s{sB}, s{sT}")
    a(f"v_lshrrev_b32 v{vKg}, 4, v{vL}")
    a(f"v_lshlrev_b32 v{vS}, 3, v{vKg}")
    a(f"v_and_b32 v{vCg}, 15, v{vL}")
    a(f"v_lshrrev_b32 v{vD}, 5, v{vL}")
    a(f"v_lshlrev_b32 v{vD}, 12, v{vD}")
    a(f"v_lshrrev_b32 v{vIn}, 2, v{vCg}")
    a(f"v_lshl_add_u32 v{vD}, v{vIn}, 10, v{vD}")
    a(f"v_and_b32 v{vIn}, 1, v{vKg}")
    a(f"v_lshl_add_u32 v{vD}, v{vIn}, 9, v{vD}")
    a(f"v_and_b32 v{vIn}, 3, v{vCg}")
    a(f"v_lshl_add_u32 v{vD}, v{vIn}, 7, v{vD}")
    a.label(Lgo)
    a(f"v_mul_lo_u32 v{vS}, v{vS}, s{sP}")
    a(f"v_lshl_add_u32 v{vS}, v{vCg}, 4, v{vS}")
    a(f"v_add_u32 v{vD}, s{sSel0}, v{vD}")
    a("s_waitcnt lgkmcnt(0)")
    a(f"s_mov_b32 s{SS}, s{sPtr}")
    a(f"s_mov_b32 s{SS+1}, s{sPtr+1}")
    a(f"s_mov_b32 s{SS+3}, 0x20000")
    srd(a, SD, wsl, wsh, WS_END)
    for j in range(8):
        a(f"buffer_load_dwordx4 v[{vIn+4*j}:{vIn+4*j+3}], v{vS}, s[{SS}:{SS+3}], s{sB} offen")
        if j < 7:
            a(f"s_add_u32 s{sB}, s{sB}, s{sP}")
        if j == 3:
            a(f"s_add_u32 s{sB}, s{sB}, s{sE}")
    a(f"s_mov_b32 s{sSel0}, 0x05040100")
    a(f"s_mov_b32 s{sSel1}, 0x07060302")
    a("s_waitcnt vmcnt(0)")
    for c in range(8):
        for jp in range(4):
            A_ = vIn + 4*(2*jp) + c//2
            B_ = vIn + 4*(2*jp+1) + c//2
            a(f"v_perm_b32 v{vOut+4*c+jp}, v{B_}, v{A_}, s{sSel1 if c & 1 else sSel0}")
        a(f"buffer_store_dwordx4 v[{vOut+4*c}:{vOut+4*c+3}], v{vD}, s[{SD}:{SD+3}], 0 offen offset:{16*c}")

assert all((t*13108) >> 16 == t//5 for t in range(300))
assert all((t*4682) >> 16 == t//14 for t in range(300))

def gen_k2(a, name):
    kernel_header(a, name)
    END = f"{name}_end"
    sW_, sQg, sKh, sHead, sQb, sT, sT2, sTrip, sSlotN, sSlotD, sTg, sWoff = range(20, 32)
    SKV, SQ, SO = 8, 12, 16
    sVm = 32
    sTask = 34
    SLOT = 20480
    NSLOT = 3
    XB = NSLOT*SLOT
    a("s_cmp_ge_u32 s2, 256")
    a(f"s_cbranch_scc1 {END}")
    prof_start(a)
    a("s_load_dwordx2 s[4:5], s[0:1], 64")
    R = Regs(1)
    vL = R.alloc()
    vT = [R.alloc() for _ in range(6)]
    vDma = R.alloc()
    vK1b, vK2b, vVb, vK1a, vK2a, vVa = [R.alloc() for _ in range(6)]
    Q1 = [R.alloc(4, 4) for _ in range(2)]
    Q2 = [R.alloc(2, 2) for _ in range(2)]
    K1 = R.alloc(4, 4)
    V = [R.alloc(4, 4) for _ in range(2)]
    K2 = R.alloc(2, 2)
    O = [R.alloc(16, 4) for _ in range(2)]
    P = [R.alloc(8, 4) for _ in range(2)]
    Sx = [R.alloc(16, 4) for _ in range(2)]
    PREP = R.alloc(68, 4)
    a(f"v_lshrrev_b32 v{vT[0]}, 6, v0")
    a(f"v_and_b32 v{vL}, 63, v0")
    a(f"v_readfirstlane_b32 s{sW_}, v{vT[0]}")
    a(f"s_and_b32 s{sHead}, s2, 7")
    a(f"s_lshl_b32 s{sHead}, s{sHead}, 2")
    a(f"s_lshr_b32 s{sT}, s2, 6")
    a(f"s_add_u32 s{sHead}, s{sHead}, s{sT}")
    a(f"s_bfe_u32 s{sQb}, s2, 0x30003")
    a(f"s_and_b32 s{sQg}, s{sW_}, 3")
    a(f"s_lshr_b32 s{sKh}, s{sW_}, 2")
    a(f"s_mul_i32 s{sWoff}, s{sW_}, 2560")
    a(f"v_lshl_add_u32 v{vDma}, v{vL}, 4, s{sWoff}")
    a(f"s_mul_i32 s{sT}, s{sHead}, 163840")
    a(f"s_mul_i32 s{sT2}, s{sHead}, 81920")
    a("s_waitcnt lgkmcnt(0)")
    srd(a, SKV, 4, 5, 163840, off_sgpr=sT, off_imm=OFF_KV)
    srd(a, SQ, 4, 5, 81920, off_sgpr=sT2, off_imm=OFF_Q)
    a(f"s_mov_b32 s{sTg}, s{sQb}")
    a(f"s_mov_b32 s{sSlotD}, s{sWoff}")
    def dma_trip():
        a(f"s_mul_i32 s{sT}, s{sTg}, {SLOT}")
        a(f"s_mov_b32 m0, s{sSlotD}")
        a(f"s_add_u32 s{sTg}, s{sTg}, 1")
        a(f"buffer_load_dwordx4 v{vDma}, s[{SKV}:{SKV+3}], s{sT} offen lds")
        a(f"buffer_load_dwordx4 v{vDma}, s[{SKV}:{SKV+3}], s{sT} offen offset:1024 lds")
        a(f"s_mov_b32 exec_hi, 0")
        a(f"buffer_load_dwordx4 v{vDma}, s[{SKV}:{SKV+3}], s{sT} offen offset:2048 lds")
        a(f"s_mov_b32 exec_hi, -1")
        a(f"s_and_b32 s{sTg}, s{sTg}, 7")
        a(f"s_add_u32 s{sSlotD}, s{sSlotD}, {SLOT}")
        a(f"s_cmp_ge_u32 s{sSlotD}, {NSLOT*SLOT}")
        a(f"s_cselect_b32 s{sSlotD}, s{sWoff}, s{sSlotD}")
    dma_trip()
    a(f"s_lshl_b32 s{sT}, s{sQb}, 3")
    a(f"s_lshl_b32 s{sT2}, s{sQg}, 1")
    a(f"s_add_u32 s{sT}, s{sT}, s{sT2}")
    a(f"s_add_u32 s{sQb}, s{sT}, s{sKh}")
    a(f"s_mul_i32 s{sT}, s{sQb}, 1280")
    a(f"s_xor_b32 s{sT2}, s{sQb}, 1")
    a(f"s_mul_i32 s{sT2}, s{sT2}, 1280")
    a(f"v_lshlrev_b32 v{vT[0]}, 4, v{vL}")
    a(f"v_lshlrev_b32 v{vT[1]}, 3, v{vL}")
    for k in range(2):
        a(f"v_mov_b32 v{Q2[k]}, 0")
        a(f"v_mov_b32 v{Q2[k]+1}, 0")
    a(f"buffer_load_dwordx4 v[{Q1[0]}:{Q1[0]+3}], v{vT[0]}, s[{SQ}:{SQ+3}], s{sT} offen")
    a(f"buffer_load_dwordx4 v[{Q1[1]}:{Q1[1]+3}], v{vT[0]}, s[{SQ}:{SQ+3}], s{sT2} offen")
    a(f"s_mov_b32 exec_hi, 0")
    a(f"buffer_load_dwordx2 v[{Q2[0]}:{Q2[0]+1}], v{vT[1]}, s[{SQ}:{SQ+3}], s{sT} offen offset:1024")
    a(f"buffer_load_dwordx2 v[{Q2[1]}:{Q2[1]+1}], v{vT[1]}, s[{SQ}:{SQ+3}], s{sT2} offen offset:1024")
    a(f"s_mov_b32 exec_hi, -1")
    dma_trip()
    a(f"v_and_b32 v{vT[0]}, 0x13, v{vL}")
    a(f"v_bfe_u32 v{vT[1]}, v{vL}, 2, 1")
    a(f"v_lshl_add_u32 v{vT[0]}, v{vT[1]}, 3, v{vT[0]}")
    a(f"v_bfe_u32 v{vT[1]}, v{vL}, 3, 1")
    a(f"v_lshl_add_u32 v{vT[0]}, v{vT[1]}, 2, v{vT[0]}")
    a(f"v_lshrrev_b32 v{vT[1]}, 5, v{vL}")
    a(f"s_mul_i32 s{sT}, s{sKh}, 1280")
    a(f"v_lshl_add_u32 v{vK2b}, v{vT[0]}, 3, s{sT}")
    a(f"v_add_u32 v{vK2b}, 1024, v{vK2b}")
    a(f"v_lshl_add_u32 v{vK1b}, v{vT[0]}, 4, s{sT}")
    a(f"v_lshl_add_u32 v{vK1b}, v{vT[1]}, 9, v{vK1b}")
    a(f"v_and_b32 v{vT[0]}, 31, v{vL}")
    a(f"v_lshl_add_u32 v{vVb}, v{vT[0]}, 4, s{sT}")
    a(f"v_mul_u32_u24 v{vT[1]}, 320, v{vT[1]}")
    a(f"v_add_u32 v{vVb}, v{vVb}, v{vT[1]}")
    a(f"v_add_u32 v{vVb}, 10240, v{vVb}")
    a(f"v_mov_b32 v{vK1a}, v{vK1b}")
    a(f"v_mov_b32 v{vK2a}, v{vK2b}")
    a(f"v_mov_b32 v{vVa}, v{vVb}")
    a(f"s_mov_b32 s{sVm}, 0xfffff")
    a(f"s_mov_b32 s{sVm+1}, 0xfffff")
    for r in range(8):
        a(f"v_mov_b32 v{V[0]+r}, 0x3f803f80")
        a(f"v_mov_b32 v{P[1]+r}, 0")
    for r in range(16):
        a(f"v_mov_b32 v{O[0]+r}, 0")
        a(f"v_mov_b32 v{O[1]+r}, 0")
    Lskip = a.newlabel("k2noprep")
    a(f"s_lshl_b32 s{sTask}, s{sW_}, 8")
    a(f"s_add_u32 s{sTask}, s{sTask}, s2")
    gen_prep(a, PREP, sTask, 36, 4, 5, vL, Lskip)
    a.label(Lskip)
    prof_mark(a, 0)
    a(f"s_mov_b32 s{sSlotN}, 0")
    a(f"s_mov_b32 s{sTrip}, 0")
    a("s_waitcnt vmcnt(0)")
    a("s_barrier")
    def kread(off):
        a(f"ds_read_b128 v[{K1}:{K1+3}], v{vK1a} offset:{off}")
        a(f"ds_read_b64 v[{K2}:{K2+1}], v{vK2a} offset:{off}")
    def vread(off):
        a(f"s_mov_b64 exec, s[{sVm}:{sVm+1}]")
        a(f"ds_read_b128 v[{V[0]}:{V[0]+3}], v{vVa} offset:{off}")
        a(f"ds_read_b128 v[{V[1]}:{V[1]+3}], v{vVa} offset:{off+640}")
        a(f"s_mov_b64 exec, -1")
    def qk1(x): return f"v_mfma_f32_32x32x16_bf16 v[{Sx[x]}:{Sx[x]+15}], v[{K1}:{K1+3}], v[{Q1[x]}:{Q1[x]+3}], 0"
    def qk2(x): return f"v_mfma_f32_32x32x8_bf16 v[{Sx[x]}:{Sx[x]+15}], v[{K2}:{K2+1}], v[{Q2[x]}:{Q2[x]+1}], v[{Sx[x]}:{Sx[x]+15}]"
    def pv(x, k): return f"v_mfma_f32_32x32x16_bf16 v[{O[x]}:{O[x]+15}], v[{V[k]}:{V[k]+3}], v[{P[x]+4*k}:{P[x]+4*k+3}], v[{O[x]}:{O[x]+15}]"
    def vgroup(x, g):
        s = Sx[x] + 4*g
        for i in range(4):
            a(f"v_exp_f32 v{s+i}, v{s+i}")
        a(f"v_cvt_pk_bf16_f32 v{P[x]+2*g}, v{s}, v{s+1}")
        a(f"v_cvt_pk_bf16_f32 v{P[x]+2*g+1}, v{s+2}, v{s+3}")
    prof_mark(a, 1)
    kread(0)
    a("s_waitcnt lgkmcnt(0)")
    a(qk1(0)); a(qk2(0))
    a("s_nop 7"); a("s_nop 3")
    Lm = a.newlabel("k2m")
    Lnd = a.newlabel("k2nd")
    a.label(Lm)
    for u in range(4):
        a(qk1(1))
        vgroup(0, 0)
        a(qk2(1))
        if u == 3:
            a("s_waitcnt vmcnt(0)")
            a("s_barrier")
            a(f"s_add_u32 s{sSlotN}, s{sSlotN}, {SLOT}")
            a(f"s_cmp_ge_u32 s{sSlotN}, {NSLOT*SLOT}")
            a(f"s_cselect_b32 s{sSlotN}, 0, s{sSlotN}")
            a(f"v_add_u32 v{vK1a}, s{sSlotN}, v{vK1b}")
            a(f"v_add_u32 v{vK2a}, s{sSlotN}, v{vK2b}")
            kread(0)
            a(f"s_cmp_ge_u32 s{sTrip}, 6")
            a(f"s_cbranch_scc1 {Lnd}")
            dma_trip()
            a.label(Lnd)
        else:
            kread((u+1)*2560)
        vgroup(0, 1)
        a(pv(1, 0))
        vgroup(0, 2)
        a(pv(1, 1))
        vread(u*2560)
        vgroup(0, 3)
        a("s_waitcnt lgkmcnt(2)")
        a(qk1(0))
        vgroup(1, 0)
        a(qk2(0))
        vgroup(1, 1)
        a("s_waitcnt lgkmcnt(0)")
        a(pv(0, 0))
        vgroup(1, 2)
        a(pv(0, 1))
        if u == 3:
            a(f"v_add_u32 v{vVa}, s{sSlotN}, v{vVb}")
            a(f"s_add_u32 s{sTrip}, s{sTrip}, 1")
            a(f"s_cmp_lt_u32 s{sTrip}, 8")
        vgroup(1, 3)
    a(f"s_cbranch_scc1 {Lm}")
    prof_mark(a, 2)
    a("s_nop 0")
    a(pv(1, 0))
    a(pv(1, 1))
    a(f"s_lshl_b32 s{sT}, s{sW_}, 12")
    a(f"s_add_u32 s{sT}, s{sT}, {XB}")
    a(f"v_lshl_add_u32 v{vT[0]}, v{vL}, 4, s{sT}")
    a(f"s_xor_b32 s{sT}, s{sW_}, 4")
    a(f"s_lshl_b32 s{sT}, s{sT}, 12")
    a(f"s_add_u32 s{sT}, s{sT}, {XB}")
    a(f"v_lshl_add_u32 v{vT[1]}, v{vL}, 4, s{sT}")
    a("s_nop 7")
    for g in range(4):
        a(f"ds_write_b128 v{vT[0]}, v[{O[1]+4*g}:{O[1]+4*g+3}] offset:{1024*g}")
    srd(a, SO, 4, 5, SZ_O, off_imm=OFF_O)
    a(f"s_mul_i32 s{sT2}, s{sQb}, {2*20*1024}")
    a(f"v_bfe_u32 v{vT[2]}, v{vL}, 4, 1")
    a(f"v_mul_u32_u24 v{vT[2]}, {20*1024}, v{vT[2]}")
    a(f"v_and_b32 v{vT[3]}, 15, v{vL}")
    a(f"v_lshl_add_u32 v{vT[2]}, v{vT[3]}, 4, v{vT[2]}")
    a(f"s_mul_i32 s{sT}, s{sHead}, 5")
    a(f"v_lshrrev_b32 v{vT[3]}, 5, v{vL}")
    a(f"v_add_u32 v{vT[3]}, s{sT}, v{vT[3]}")
    a(f"v_lshrrev_b32 v{vT[4]}, 1, v{vT[3]}")
    a(f"v_lshl_add_u32 v{vT[2]}, v{vT[4]}, 8, v{vT[2]}")
    a(f"v_and_b32 v{vT[4]}, 1, v{vT[3]}")
    a(f"v_lshl_add_u32 v{vT[2]}, v{vT[4]}, 3, v{vT[2]}")
    a("s_waitcnt lgkmcnt(0)")
    a("s_barrier")
    for g in range(4):
        a(f"ds_read_b128 v[{O[1]+4*g}:{O[1]+4*g+3}], v{vT[1]} offset:{1024*g}")
    a("s_waitcnt lgkmcnt(0)")
    for r in range(13):
        a(f"v_add_f32 v{O[0]+r}, v{O[0]+r}, v{O[1]+r}")
    a(f"v_mov_b32 v{vT[3]}, 0")
    for r in range(12):
        a(f"v_fma_f32 v{vT[3]}, v{O[0]+r}, 0, v{vT[3]}")
    a(f"v_add_f32 v{vT[3]}, v{vT[3]}, v{O[0]+12}")
    a(f"v_cmp_nge_f32 vcc, v{vT[3]}, v{vT[3]}") if False else None
    a(f"s_mov_b32 s{sT}, {f2u(2.0**-64):#x}")
    a(f"v_cmp_nle_f32 s[36:37], s{sT}, v{vT[3]}")
    a(f"s_mov_b32 s{sT}, {f2u(2.0**64):#x}")
    a(f"v_cmp_nge_f32 vcc, s{sT}, v{vT[3]}")
    a("s_nop 1")
    a(f"s_or_b64 vcc, vcc, s[36:37]")
    Lslow, Lfin = a.newlabel("k2slow"), a.newlabel("k2fin")
    a(f"s_cbranch_vccnz {Lslow}")
    a.label(Lfin)
    a(f"v_rcp_f32 v{vT[3]}, v{O[0]+12}")
    a("s_nop 0")
    for r in range(12):
        a(f"v_mul_f32 v{O[0]+r}, v{O[0]+r}, v{vT[3]}")
    for k in range(6):
        a(f"v_cvt_pk_bf16_f32 v{P[0]+k}, v{O[0]+2*k}, v{O[0]+2*k+1}")
    a(f"buffer_store_dwordx2 v[{P[0]}:{P[0]+1}], v{vT[2]}, s[{SO}:{SO+3}], s{sT2} offen")
    a(f"buffer_store_dwordx2 v[{P[0]+2}:{P[0]+3}], v{vT[2]}, s[{SO}:{SO+3}], s{sT2} offen offset:256")
    a(f"s_mov_b32 exec_hi, 0")
    a(f"buffer_store_dwordx2 v[{P[0]+4}:{P[0]+5}], v{vT[2]}, s[{SO}:{SO+3}], s{sT2} offen offset:512")
    prof_end(a, 1)
    a.label(END)
    a("s_endpgm")
    a.label(Lslow)
    vM, vMn, vAl = vT[0], vT[1], vT[4]
    a(f"s_mul_i32 s{sT}, s{sKh}, 1280")
    a(f"v_subrev_u32 v{vK1a}, s{sT}, v{vK1b}")
    a(f"v_subrev_u32 v{vK2a}, s{sT}, v{vK2b}")
    a(f"v_subrev_u32 v{vVa}, s{sT}, v{vVb}")
    a(f"v_mov_b32 v{vM}, {f2u(-3.0e38):#x}")
    for r in range(16):
        a(f"v_mov_b32 v{O[0]+r}, 0")
    a(f"s_mov_b32 s{sTrip}, 0")
    Ls = a.newlabel("k2sl")
    a.label(Ls)
    a(f"s_mul_i32 s{sT}, s{sTrip}, 1280")
    a(f"s_lshr_b32 s{sTg}, s{sTrip}, 3")
    a(f"s_mul_i32 s{sTg}, s{sTg}, 10240")
    a(f"s_add_u32 s{sT}, s{sT}, s{sTg}")
    a(f"buffer_load_dwordx4 v[{K1}:{K1+3}], v{vK1a}, s[{SKV}:{SKV+3}], s{sT} offen")
    a(f"buffer_load_dwordx2 v[{K2}:{K2+1}], v{vK2a}, s[{SKV}:{SKV+3}], s{sT} offen")
    a(f"s_mov_b64 exec, s[{sVm}:{sVm+1}]")
    a(f"buffer_load_dwordx4 v[{V[0]}:{V[0]+3}], v{vVa}, s[{SKV}:{SKV+3}], s{sT} offen")
    a(f"buffer_load_dwordx4 v[{V[1]}:{V[1]+3}], v{vVa}, s[{SKV}:{SKV+3}], s{sT} offen offset:640")
    a(f"s_mov_b64 exec, -1")
    a("s_waitcnt vmcnt(0)")
    a(qk1(0)); a(qk2(0))
    a("s_nop 7"); a("s_nop 4")
    s0 = Sx[0]
    a(f"v_max3_f32 v{vMn}, v{s0}, v{s0+1}, v{vM}")
    for r in range(2, 16, 2):
        a(f"v_max3_f32 v{vMn}, v{s0+r}, v{s0+r+1}, v{vMn}")
    a(f"v_mov_b32 v{vAl}, v{vMn}")
    a("s_nop 1")
    a(f"v_permlane32_swap_b32 v{vMn}, v{vAl}")
    a(f"v_max_f32 v{vMn}, v{vMn}, v{vAl}")
    a(f"v_sub_f32 v{vAl}, v{vM}, v{vMn}")
    a(f"v_exp_f32 v{vAl}, v{vAl}")
    a(f"v_mov_b32 v{vM}, v{vMn}")
    for r in range(16):
        a(f"v_sub_f32 v{s0+r}, v{s0+r}, v{vMn}")
        a(f"v_mul_f32 v{O[0]+r}, v{O[0]+r}, v{vAl}")
    for g in range(4):
        vgroup(0, g)
    a("s_nop 1")
    a(pv(0, 0)); a(pv(0, 1))
    a(f"s_add_u32 s{sTrip}, s{sTrip}, 1")
    a(f"s_cmp_lt_u32 s{sTrip}, 64")
    a("s_nop 7"); a("s_nop 3")
    a(f"s_cbranch_scc1 {Ls}")
    a(f"s_branch {Lfin}")
    return R.hi, XB + 8*4096
```

```python
from asmlib import *
import asmlib
from layout import *

def gen_gemm(a, name, kind):
    kernel_header(a, name)
    END = f"{name}_end"
    big = kind == 'f1'
    NF = 4 if big else 5
    AR = 16 if big else 4
    nsteps = {'o': 20, 'f1': 40, 'f2': 54}[kind]
    NCH = (nsteps + 3)//4
    NWG = 224 if big else 256
    NS = 4
    CHB = NF*4096
    n = NF + 4
    sW_, sRt, sCt, sC, sT, sT2, sCnt, sWo, sXo, sSt, sT3 = range(28, 39)
    SW, SX, SR, SO, SS = 8, 12, 16, 20, 24
    a(f"s_cmp_ge_u32 s2, {NWG}")
    a(f"s_cbranch_scc1 {END}")
    prof_start(a)
    a("s_load_dwordx2 s[4:5], s[0:1], 64")
    if kind == 'o':
        a("s_load_dwordx2 s[6:7], s[0:1], 0")
    elif kind == 'f2':
        a("s_load_dwordx2 s[6:7], s[0:1], 48")
    R = Regs(1)
    vL = R.alloc()
    vT = [R.alloc() for _ in range(8)]
    vWo, vXo, vRo = R.alloc(), R.alloc(), R.alloc()
    vA = [R.alloc() for _ in range(4 if big else 2)]
    X = [[R.alloc(4, 4) for _ in range(4)] for _ in range(NS)]
    Wf = [[R.alloc(4, 4) for _ in range(NF)] for _ in range(2)]
    acc = [R.alloc(AR, 4) for _ in range(NF)]
    if big:
        vCs = R.alloc(16, 4)
        vOne = R.alloc(4, 4)
        vSt = R.alloc(8, 4)
    else:
        vRes = R.alloc(10, 2)
    a(f"v_lshrrev_b32 v{vT[0]}, 6, v0")
    a(f"v_and_b32 v{vL}, 63, v0")
    a(f"v_readfirstlane_b32 s{sW_}, v{vT[0]}")
    if big:
        a(f"s_bfe_u32 s{sRt}, s2, 0x20001")
        a(f"s_lshl_b32 s{sRt}, s{sRt}, 2")
        a(f"s_bfe_u32 s{sT}, s2, 0x20003")
        a(f"s_add_u32 s{sRt}, s{sRt}, s{sT}")
        a(f"s_and_b32 s{sCt}, s2, 1")
        a(f"s_mul_i32 s{sCt}, s{sCt}, 7")
        a(f"s_lshr_b32 s{sT2}, s2, 5")
        a(f"s_add_u32 s{sCt}, s{sCt}, s{sT2}")
        a(f"s_mul_i32 s{sT}, s{sT}, 3")
        a(f"s_add_u32 s{sC}, s{sT}, s{sT2}")
        a(f"s_sub_u32 s{sT}, s{sC}, {NCH}")
        a(f"s_cmp_ge_u32 s{sC}, {NCH}")
        a(f"s_cselect_b32 s{sC}, s{sT}, s{sC}")
    else:
        a(f"s_bfe_u32 s{sRt}, s2, 0x20001")
        a(f"s_lshl_b32 s{sRt}, s{sRt}, 3")
        a(f"s_bfe_u32 s{sT}, s2, 0x30003")
        a(f"s_add_u32 s{sRt}, s{sRt}, s{sT}")
        a(f"s_and_b32 s{sCt}, s2, 1")
        a(f"s_lshl_b32 s{sCt}, s{sCt}, 2")
        a(f"s_lshr_b32 s{sT2}, s2, 6")
        a(f"s_add_u32 s{sCt}, s{sCt}, s{sT2}")
        if kind == 'f2':
            a(f"s_mul_i32 s{sT2}, s{sT2}, 3")
            a(f"s_lshl_b32 s{sT}, s{sT}, 1")
        a(f"s_add_u32 s{sC}, s{sT}, s{sT2}")
        for _ in range(2):
            a(f"s_sub_u32 s{sT}, s{sC}, {NCH}")
            a(f"s_cmp_ge_u32 s{sC}, {NCH}")
            a(f"s_cselect_b32 s{sC}, s{sT}, s{sC}")
    WOFF = {'o': OFF_WO, 'f1': OFF_W1, 'f2': OFF_W2}[kind]
    XOFF = {'o': OFF_O, 'f1': OFF_H, 'f2': OFF_H1}[kind]
    a(f"s_mul_i32 s{sT}, s{sCt}, {nsteps*NF*1024}")
    a(f"s_lshl_b32 s{sRt}, s{sRt}, 2")
    a(f"s_add_u32 s{sRt}, s{sRt}, s{sW_}")
    a(f"s_mul_i32 s{sT2}, s{sRt}, {nsteps*1024}")
    a(f"s_mul_i32 s{sSt}, s{sW_}, {NF*1024}")
    a(f"v_lshlrev_b32 v{vXo}, 4, v{vL}")
    a(f"v_add_u32 v{vWo}, s{sSt}, v{vXo}")
    a("s_waitcnt lgkmcnt(0)")
    prof_mark(a, 3)
    srd(a, SW, 4, 5, nsteps*NF*1024, off_sgpr=sT, off_imm=WOFF)
    srd(a, SX, 4, 5, nsteps*1024, off_sgpr=sT2, off_imm=XOFF)

    def issue_w(stage):
        a(f"s_mul_i32 s{sWo}, s{sC}, {CHB}")
        a(f"s_add_u32 m0, s{sSt}, {stage*CHB}")
        a(f"s_lshl_b32 s{sXo}, s{sC}, 12")
        for f in range(min(NF, 4)):
            a(f"buffer_load_dwordx4 v{vWo}, s[{SW}:{SW+3}], s{sWo} offen offset:{f*1024} lds")
        if NF == 5:
            a(f"s_add_u32 m0, s{sSt}, {stage*CHB + 4096}")
            a(f"s_add_u32 s{sWo}, s{sWo}, 4096")
            a(f"buffer_load_dwordx4 v{vWo}, s[{SW}:{SW+3}], s{sWo} offen lds")
        a(f"s_add_u32 s{sC}, s{sC}, 1")
        a(f"s_cmp_eq_u32 s{sC}, {NCH}")
        a(f"s_cselect_b32 s{sC}, 0, s{sC}")
    def issue_x(stage):
        for s in range(4):
            x = X[stage][s]
            a(f"buffer_load_dwordx4 v[{x}:{x+3}], v{vXo}, s[{SX}:{SX+3}], s{sXo} offen offset:{s*1024}")
    issue_w(0); issue_x(0)
    prof_mark(a, 4)
    nside = 0
    if kind == 'o':
        srd(a, SR, 6, 7, S*D*2)
        a(f"v_and_b32 v{vT[0]}, 15, v{vL}")
        a(f"v_mul_u32_u24 v{vRo}, 1280, v{vT[0]}")
        a(f"v_lshrrev_b32 v{vT[0]}, 4, v{vL}")
        a(f"v_lshl_add_u32 v{vRo}, v{vT[0]}, 3, v{vRo}")
        a(f"s_mul_i32 s{sT}, s{sRt}, {16*1280}")
        a(f"s_mul_i32 s{sT2}, s{sCt}, 160")
        a(f"s_add_u32 s{sT3}, s{sT}, s{sT2}")
        for f in range(5):
            a(f"buffer_load_dwordx2 v[{vRes+2*f}:{vRes+2*f+1}], v{vRo}, s[{SR}:{SR+3}], s{sT3} offen offset:{32*f}")
        nside = 5
    def h_addr(v, s):
        a(f"v_and_b32 v{vT[0]}, 15, v{vL}")
        a(f"v_lshlrev_b32 v{v}, 4, v{vT[0]}")
        a(f"v_lshrrev_b32 v{vT[0]}, 5, v{vL}")
        a(f"v_lshl_add_u32 v{v}, v{vT[0]}, 9, v{v}")
        a(f"v_bfe_u32 v{vT[0]}, v{vL}, 4, 1")
        a(f"v_lshl_add_u32 v{v}, v{vT[0]}, 3, v{v}")
        a(f"s_lshr_b32 s{sT}, s{sRt}, 1")
        a(f"s_mul_i32 s{sT}, s{sT}, 40960")
        a(f"s_and_b32 s{sT2}, s{sRt}, 1")
        a(f"s_lshl_b32 s{sT2}, s{sT2}, 8")
        a(f"s_add_u32 s{sT}, s{sT}, s{sT2}")
        a(f"s_mul_i32 s{sT2}, s{sCt}, 5120")
        a(f"s_add_u32 s{s}, s{sT}, s{sT2}")
    if kind == 'f2':
        srd(a, SR, 4, 5, SZ_H, off_imm=OFF_H)
        h_addr(vRo, sT3)
        for f in range(5):
            if f == 4:
                a(f"s_add_u32 s{sT3}, s{sT3}, 4096")
            a(f"buffer_load_dwordx2 v[{vRes+2*f}:{vRes+2*f+1}], v{vRo}, s[{SR}:{SR+3}], s{sT3} offen offset:{1024*(f%4)}")
        nside = 5
    if big:
        srd(a, SR, 4, 5, SZ_ST, off_imm=OFF_ST)
        a(f"v_and_b32 v{vT[0]}, 31, v{vL}")
        a(f"v_lshlrev_b32 v{vRo}, 3, v{vT[0]}")
        a(f"v_lshrrev_b32 v{vT[0]}, 5, v{vL}")
        a(f"v_lshl_add_u32 v{vRo}, v{vT[0]}, 16, v{vRo}")
        a(f"s_lshl_b32 s{sT3}, s{sRt}, 8")
        for k in range(4):
            a(f"buffer_load_dwordx2 v[{vSt+2*k}:{vSt+2*k+1}], v{vRo}, s[{SR}:{SR+3}], s{sT3} offen")
            if k < 3:
                a(f"s_add_u32 s{sT3}, s{sT3}, 16384")
        nside = 4
    for st in range(1, NS):
        issue_w(st); issue_x(st)
        prof_mark(a, 4+st)
    if big:
        for f in range(4):
            a(f"s_add_u32 s{sT}, s{sW_}, {f}")
            a(f"s_and_b32 s{sT}, s{sT}, 3")
            a(f"s_lshl_b32 s{sT}, s{sT}, 10")
            a(f"v_add_u32 v{vA[f]}, s{sT}, v{vXo}")
        for r in range(16):
            a(f"v_mov_b32 v{vCs+r}, 0")
        for r in range(4):
            a(f"v_mov_b32 v{vOne+r}, 0x3f803f80")
    else:
        a(f"v_mov_b32 v{vA[0]}, v{vXo}")
        a(f"v_add_u32 v{vA[1]}, {2*CHB}, v{vXo}")
    for f in range(NF):
        for r in range(AR):
            a(f"v_mov_b32 v{acc[f]+r}, 0")
    def reads(stage, s, buf):
        for f in range(NF):
            w = Wf[buf][f]
            if big:
                a(f"ds_read_b128 v[{w}:{w+3}], v{vA[f]} offset:{stage*CHB + s*4096}")
            else:
                a(f"ds_read_b128 v[{w}:{w+3}], v{vA[stage//2]} offset:{(stage%2)*CHB + s*5120 + f*1024}")
    def mf(d, w, x):
        if big:
            return f"v_mfma_f32_32x32x16_bf16 v[{d}:{d+15}], v[{w}:{w+3}], v[{x}:{x+3}], v[{d}:{d+15}]"
        return f"v_mfma_f32_16x16x32_bf16 v[{d}:{d+3}], v[{w}:{w+3}], v[{x}:{x+3}], v[{d}:{d+3}]"
    a(f"s_mov_b32 s{sCnt}, 0")
    prof_mark(a, 0)
    a(f"s_waitcnt vmcnt({3*n + nside})")
    a("s_barrier")
    prof_mark(a, 1)
    a("s_waitcnt lgkmcnt(0)") if asmlib.PROF else None
    reads(0, 0, 0)
    Lm, Lx = a.newlabel("gm"), a.newlabel("gx")
    a.label(Lm)
    for st in range(NS):
        for s in range(4):
            buf = s & 1
            if s < 3:
                reads(st, s+1, buf ^ 1)
                a(f"s_waitcnt lgkmcnt({NF})")
            else:
                a(f"s_waitcnt lgkmcnt(0) vmcnt({2*n})")
                a("s_barrier")
                reads((st+1) % NS, 0, buf ^ 1)
                a(f"s_cmp_ge_u32 s{sCnt}, {NCH-NS}")
                a(f"s_cselect_b32 s{SW+2}, 0, s{SW+2}")
                a(f"s_cselect_b32 s{SX+2}, 0, s{SX+2}")
            for f in range(NF):
                a(mf(acc[f], Wf[buf][f], X[st][s]))
                if s == 3 and f == 0:
                    issue_w(st)
            if big:
                a(mf(vCs, Wf[buf][0], vOne))
        issue_x(st)
        a(f"s_add_u32 s{sCnt}, s{sCnt}, 1")
        a(f"s_cmp_lt_u32 s{sCnt}, {NCH}")
        if st < NS-1:
            if (NCH - 1) % NS == st:
                a(f"s_cbranch_scc0 {Lx}")
        else:
            a(f"s_cbranch_scc1 {Lm}")
    a.label(Lx)
    prof_mark(a, 2)
    if kind in ('o', 'f2'):
        T = X[0][0]
        a("s_waitcnt vmcnt(0) lgkmcnt(0)")
        a("s_nop 4")
        for f in range(5):
            for k in range(2):
                r = vRes + 2*f + k
                a(f"v_lshlrev_b32 v{vT[0]}, 16, v{r}")
                a(f"v_and_b32 v{vT[1]}, 0xffff0000, v{r}")
                a(f"v_add_f32 v{vT[0]}, v{vT[0]}, v{acc[f]+2*k}")
                a(f"v_add_f32 v{vT[1]}, v{vT[1]}, v{acc[f]+2*k+1}")
                a(f"v_cvt_pk_bf16_f32 v{r}, v{vT[0]}, v{vT[1]}")
        if kind == 'o':
            srd(a, SO, 4, 5, SZ_H, off_imm=OFF_H)
            h_addr(vRo, sT3)
            for f in range(5):
                if f == 4:
                    a(f"s_add_u32 s{sT3}, s{sT3}, 4096")
                a(f"buffer_store_dwordx2 v[{vRes+2*f}:{vRes+2*f+1}], v{vRo}, s[{SO}:{SO+3}], s{sT3} offen offset:{1024*(f%4)}")
            su, sq = T, T+1
            a(f"v_mov_b32 v{su}, 0")
            a(f"v_mov_b32 v{sq}, 0")
            for r in range(vRes, vRes+10):
                a(f"v_lshlrev_b32 v{vT[0]}, 16, v{r}")
                a(f"v_and_b32 v{vT[1]}, 0xffff0000, v{r}")
                a(f"v_add_f32 v{su}, v{su}, v{vT[0]}")
                a(f"v_fmac_f32 v{sq}, v{vT[0]}, v{vT[0]}")
                a(f"v_add_f32 v{su}, v{su}, v{vT[1]}")
                a(f"v_fmac_f32 v{sq}, v{vT[1]}, v{vT[1]}")
            for op in ("v_permlane32_swap_b32", "v_permlane16_swap_b32"):
                a(f"v_mov_b32 v{T+2}, v{su}")
                a(f"v_mov_b32 v{T+3}, v{sq}")
                a("s_nop 1")
                a(f"{op} v{su}, v{T+2}")
                a(f"{op} v{sq}, v{T+3}")
                a(f"v_add_f32 v{su}, v{su}, v{T+2}")
                a(f"v_add_f32 v{sq}, v{sq}, v{T+3}")
            srd(a, SS, 4, 5, SZ_ST, off_imm=OFF_ST)
            a(f"v_lshlrev_b32 v{vT[0]}, 3, v{vL}")
            a(f"s_lshl_b32 s{sT}, s{sCt}, 14")
            a(f"s_lshl_b32 s{sT2}, s{sRt}, 7")
            a(f"s_add_u32 s{sT}, s{sT}, s{sT2}")
            a(f"s_mov_b64 exec, 0xffff")
            a(f"buffer_store_dwordx2 v[{su}:{su+1}], v{vT[0]}, s[{SS}:{SS+3}], s{sT} offen")
        else:
            srd(a, SO, 6, 7, S*D*2)
            a(f"v_and_b32 v{vT[0]}, 15, v{vL}")
            a(f"v_mul_u32_u24 v{vRo}, 1280, v{vT[0]}")
            a(f"v_lshrrev_b32 v{vT[0]}, 4, v{vL}")
            a(f"v_lshl_add_u32 v{vRo}, v{vT[0]}, 3, v{vRo}")
            a(f"s_mul_i32 s{sT}, s{sRt}, {16*1280}")
            a(f"s_mul_i32 s{sT2}, s{sCt}, 160")
            a(f"s_add_u32 s{sT3}, s{sT}, s{sT2}")
            for f in range(5):
                a(f"buffer_store_dwordx2 v[{vRes+2*f}:{vRes+2*f+1}], v{vRo}, s[{SO}:{SO+3}], s{sT3} offen offset:{32*f}")
        lds = NS*CHB
    else:
        XB = NS*CHB
        a(f"s_lshl_b32 s{sT}, s{sW_}, 7")
        a(f"s_add_u32 s{sT}, s{sT}, {XB}")
        a(f"v_lshrrev_b32 v{vT[0]}, 5, v{vL}")
        a(f"v_lshl_add_u32 v{vT[1]}, v{vT[0]}, 6, s{sT}")
        a(f"v_add_f32 v{vSt}, v{vSt}, v{vSt+2}")
        a(f"v_add_f32 v{vSt+1}, v{vSt+1}, v{vSt+3}")
        a(f"v_add_f32 v{vSt+4}, v{vSt+4}, v{vSt+6}")
        a(f"v_add_f32 v{vSt+5}, v{vSt+5}, v{vSt+7}")
        a(f"v_add_f32 v{vSt}, v{vSt}, v{vSt+4}")
        a(f"v_add_f32 v{vSt+1}, v{vSt+1}, v{vSt+5}")
        a(f"v_mov_b32 v{vSt+2}, v{vSt}")
        a(f"v_mov_b32 v{vSt+3}, v{vSt+1}")
        a("s_nop 1")
        a(f"v_permlane32_swap_b32 v{vSt}, v{vSt+2}")
        a(f"v_permlane32_swap_b32 v{vSt+1}, v{vSt+3}")
        a("s_mov_b32 exec_lo, 1\ns_mov_b32 exec_hi, 1")
        for g in range(4):
            a(f"ds_write_b128 v{vT[1]}, v[{vCs+4*g}:{vCs+4*g+3}] offset:{16*g}")
        a("s_mov_b64 exec, -1")
        a(f"v_add_f32 v{vSt}, v{vSt}, v{vSt+2}")
        a(f"v_add_f32 v{vSt+1}, v{vSt+1}, v{vSt+3}")
        q = vSt
        a(f"v_mul_f32 v{q}, {f2u(1.0/D):#x}, v{q}")
        a(f"v_mul_f32 v{q+1}, {f2u(1.0/D):#x}, v{q+1}")
        a(f"v_fma_f32 v{q+1}, -v{q}, v{q}, v{q+1}")
        a(f"v_max_f32 v{q+1}, 0, v{q+1}")
        a(f"v_add_f32 v{q+1}, {f2u(EPS):#x}, v{q+1}")
        a(f"v_rsq_f32 v{q+1}, v{q+1}")
        srd(a, SO, 4, 5, SZ_H1, off_imm=OFF_H1)
        a(f"v_mul_f32_e64 v{q}, -v{q}, v{q+1}")
        a(f"v_bfe_u32 v{vT[2]}, v{vL}, 4, 1")
        a(f"v_mul_u32_u24 v{vRo}, {54*1024}, v{vT[2]}")
        a(f"v_lshl_add_u32 v{vRo}, v{vT[0]}, 8, v{vRo}")
        a(f"v_and_b32 v{vT[2]}, 15, v{vL}")
        a(f"v_lshl_add_u32 v{vRo}, v{vT[2]}, 4, v{vRo}")
        a(f"s_mul_i32 s{sT3}, s{sRt}, {2*54*1024}")
        a(f"v_lshlrev_b32 v{vT[1]}, 6, v{vT[0]}")
        a("s_waitcnt vmcnt(0) lgkmcnt(0)")
        a("s_barrier")
        C = X[0][0]
        for f in range(4):
            a(f"s_add_u32 s{sT}, s{sW_}, {f}")
            a(f"s_and_b32 s{sT}, s{sT}, 3")
            a(f"s_lshl_b32 s{sT}, s{sT}, 7")
            a(f"s_add_u32 s{sT}, s{sT}, {XB}")
            a(f"v_add_u32 v{vT[2]}, s{sT}, v{vT[1]}")
            for g in range(4):
                a(f"ds_read_b128 v[{C+16*f+4*g}:{C+16*f+4*g+3}], v{vT[2]} offset:{16*g}")
        PK = Wf[0][0]
        for f in range(4):
            a(f"s_waitcnt lgkmcnt({12-4*f})")
            for r in range(16):
                a(f"v_mul_f32 v{C+16*f+r}, v{q}, v{C+16*f+r}")
            for r in range(16):
                a(f"v_fma_f32 v{C+16*f+r}, v{q+1}, v{acc[f]+r}, v{C+16*f+r}")
            for r in range(16):
                a(f"v_max_f32 v{C+16*f+r}, 0, v{C+16*f+r}")
            pk = PK + 8*(f % 4)
            for k in range(8):
                a(f"v_cvt_pk_bf16_f32 v{pk+k}, v{C+16*f+2*k}, v{C+16*f+2*k+1}")
            a(f"s_add_u32 s{sT}, s{sW_}, {f}")
            a(f"s_and_b32 s{sT}, s{sT}, 3")
            a(f"s_lshl_b32 s{sT2}, s{sCt}, 2")
            a(f"s_add_u32 s{sT}, s{sT}, s{sT2}")
            Lsk = a.newlabel("gsk")
            a(f"s_cmp_ge_u32 s{sT}, 54")
            a(f"s_cbranch_scc1 {Lsk}")
            a(f"s_lshl_b32 s{sT}, s{sT}, 10")
            a(f"s_add_u32 s{sT}, s{sT}, s{sT3}")
            a(f"buffer_store_dwordx4 v[{pk}:{pk+3}], v{vRo}, s[{SO}:{SO+3}], s{sT} offen")
            a(f"buffer_store_dwordx4 v[{pk+4}:{pk+7}], v{vRo}, s[{SO}:{SO+3}], s{sT} offen offset:512")
            a.label(Lsk)
        lds = XB + 512
    prof_end(a, {'o':2,'f1':3,'f2':4}[kind])
    a.label(END)
    a("s_endpgm")
    return R.hi, lds
```

```python
class Asm:
    def __init__(self):
        self.lines = []
        self._lab = 0
    def __call__(self, s, *a):
        for ln in s.split("\n"):
            ln = ln.strip()
            if ln:
                self.lines.append("    " + ln)
    def label(self, name):
        self.lines.append(name + ":")
    def newlabel(self, p="L"):
        self._lab += 1
        return f"{p}_{self._lab}"
    def raw(self, s):
        self.lines.append(s)
    def c(self, s):
        self.lines.append("    ; " + s)
    def text(self):
        return "\n".join(self.lines) + "\n"

def vr(b, n=1):
    return f"v{b}" if n == 1 else f"v[{b}:{b+n-1}]"
def sr(b, n=1):
    return f"s{b}" if n == 1 else f"s[{b}:{b+n-1}]"

class Regs:
    def __init__(self, start=0, limit=256):
        self.n = start
        self.limit = limit
        self.hi = start
    def alloc(self, n=1, align=1):
        if n >= 2 and align < 2: align = 2
        b = (self.n + align - 1) // align * align
        self.n = b + n
        self.hi = max(self.hi, self.n)
        assert self.n <= self.limit, f"out of regs {self.n}"
        return b

def kernel_header(a, name):
    a.raw(".text")
    a.raw(f".globl {name}")
    a.raw(".p2align 8")
    a.raw(f".type {name},@function")
    a.label(name)

def kernel_desc(name, nvgpr, nsgpr=100, accum=None):
    if accum is None:
        accum = (nvgpr + 3) // 4 * 4
    return f""".section .rodata,"a"
.p2align 6
.amdhsa_kernel {name}
  .amdhsa_next_free_vgpr {nvgpr}
  .amdhsa_next_free_sgpr {nsgpr}
  .amdhsa_accum_offset {accum}
  .amdhsa_group_segment_fixed_size 0
  .amdhsa_kernarg_size 72
  .amdhsa_user_sgpr_count 2
  .amdhsa_user_sgpr_kernarg_segment_ptr 1
  .amdhsa_system_sgpr_workgroup_id_x 1
.end_amdhsa_kernel
"""

def srd(a, d, base_lo, base_hi, nbytes, off_sgpr=None, off_imm=0):
    if off_sgpr is not None:
        a(f"s_add_u32 s{d}, s{base_lo}, s{off_sgpr}")
        a(f"s_addc_u32 s{d+1}, s{base_hi}, 0")
        if off_imm:
            a(f"s_add_u32 s{d}, s{d}, {off_imm}")
            a(f"s_addc_u32 s{d+1}, s{d+1}, 0")
    elif off_imm:
        a(f"s_add_u32 s{d}, s{base_lo}, {off_imm}")
        a(f"s_addc_u32 s{d+1}, s{base_hi}, 0")
    else:
        a(f"s_mov_b32 s{d}, s{base_lo}")
        a(f"s_mov_b32 s{d+1}, s{base_hi}")
    a(f"s_mov_b32 s{d+2}, {nbytes}")
    a(f"s_mov_b32 s{d+3}, 0x20000")


PROF = False
PROF_OFF = 200*1024*1024
def prof_start(a):
    if not PROF: return
    a("s_memrealtime s[84:85]")
    a("s_memtime s[86:87]")
    for i in range(8):
        a(f"s_mov_b32 s{60+2*i}, 0")
def prof_mark(a, i):
    if not PROF: return
    a(f"s_memtime s[{60+2*i}:{61+2*i}]")
def prof_end(a, kidx):
    if not PROF: return
    a("s_waitcnt vmcnt(0) lgkmcnt(0)")
    a("s_memrealtime s[88:89]")
    a("s_memtime s[90:91]")
    a("s_load_dwordx2 s[92:93], s[0:1], 64")
    a("s_mov_b64 exec, -1")
    a("s_waitcnt lgkmcnt(0)")
    a(f"s_add_u32 s92, s92, {PROF_OFF + kidx*256*16*64}")
    a("s_addc_u32 s93, s93, 0")
    a("s_mov_b32 s94, 0x1000000")
    a("s_mov_b32 s95, 0x20000")
    a("v_mov_b32 v2, s84")
    a("v_mov_b32 v3, s88")
    a("s_sub_u32 s90, s90, s86")
    a("v_mov_b32 v4, s90")
    a("s_getreg_b32 s90, hwreg(HW_REG_XCC_ID)")
    a("v_mov_b32 v5, s90")
    for i in range(8):
        a(f"s_sub_u32 s90, s{60+2*i}, s86")
        a(f"v_mov_b32 v{6+i}, s90")
    a("v_lshrrev_b32 v1, 6, v0")
    a("v_lshlrev_b32 v1, 6, v1")
    a("s_lshl_b32 s90, s2, 10")
    a("s_mov_b64 exec, 1")
    a("buffer_store_dwordx4 v[2:5], v1, s[92:95], s90 offen")
    a("buffer_store_dwordx4 v[6:9], v1, s[92:95], s90 offen offset:16")
    a("buffer_store_dwordx4 v[10:13], v1, s[92:95], s90 offen offset:32")
```

```python
import sys, os
import asmlib
asmlib.PROF = bool(os.environ.get('PROF'))
from asmlib import *
from layout import *
from k1 import gen_k1
from k2 import gen_k2
from kg import gen_gemm

HEAD = open("sequential_preLN__mha_block__dense_activation_relu__prompt.s.ref").read().split("; Override launch")[0]

def build(extra_empty=0, diag=None):
    a = Asm()
    ks = []
    v, l = gen_k1(a, "qkv_kernel");        ks.append(("qkv_kernel", 240, 512, v, l))
    v, l = gen_k2(a, "attn_kernel");       ks.append(("attn_kernel", 256, 512, v, l))
    v, l = gen_gemm(a, "oproj_kernel", 'o');  ks.append(("oproj_kernel", 256, 256, v, l))
    v, l = gen_gemm(a, "ffn1_kernel", 'f1');  ks.append(("ffn1_kernel", 224, 256, v, l))
    v, l = gen_gemm(a, "ffn2_kernel", 'f2');  ks.append(("ffn2_kernel", 256, 256, v, l))
    launches = list(ks)
    if extra_empty:
        kernel_header(a, "nop_kernel"); a("s_endpgm")
        ks.append(("nop_kernel", 256, 256, 8, 0))
        launches = launches + [ks[-1]]*extra_empty
    if diag is not None:
        kidx, which = diag
        kernel_header(a, "diag_kernel")
        a("s_cmp_ge_u32 s2, 1")
        a("s_cbranch_scc1 diag_end")
        a("s_load_dwordx2 s[4:5], s[0:1], 64")
        a("s_waitcnt lgkmcnt(0)")
        a(f"s_add_u32 s4, s4, {asmlib.PROF_OFF + kidx*256*16*64 + 4*which}")
        a("s_addc_u32 s5, s5, 0")
        a("s_load_dword s6, s[4:5], 0")
        a("s_waitcnt lgkmcnt(0)")
        a("s_mov_b32 s10, 0")
        a.label("diag_loop")
        a("s_memrealtime s[8:9]")
        a("s_waitcnt lgkmcnt(0)")
        a("s_add_u32 s10, s10, 1")
        a("s_cmp_gt_u32 s10, 100000")
        a("s_cbranch_scc1 diag_end")
        a("s_sub_u32 s8, s8, s6")
        a("s_cmp_lt_u32 s8, 10000")
        a("s_cbranch_scc1 diag_loop")
        a.label("diag_end")
        a("s_endpgm")
        ks.append(("diag_kernel", 1, 64, 8, 0))
        launches = launches + [ks[-1]]
    out = HEAD
    for n, g, b, v, l in launches:
        out += f"; @launch kernel={n} grid=({g},1,1) block=({b},1,1) lds={l}\n"
    out += '.amdgcn_target "amdgcn-amd-amdhsa--gfx950"\n'
    out += a.text()
    for n, g, b, v, l in ks:
        out += kernel_desc(n, v)
    return out

if __name__ == "__main__":
    path = sys.argv[1] if len(sys.argv) > 1 else "sequential_preLN__mha_block__dense_activation_relu__prompt.s"
    extra = int(sys.argv[2]) if len(sys.argv) > 2 else 0
    diag = tuple(int(x) for x in sys.argv[3].split(',')) if len(sys.argv) > 3 else None
    open(path, "w").write(build(extra, diag))
    print("wrote", path)
```

```python
from asmlib import *
import asmlib
from layout import *

def gen_k1(a, name):
    kernel_header(a, name)
    END = f"{name}_end"
    sW_, sI, sJ, sC, sXo, sWo, sSt, sT, sCnt, sMask = 20, 21, 22, 23, 24, 25, 26, 27, 28, 29
    sWf, sWt, sXb, sWb, sRot, sT2, sHS = 30, 31, 36, 37, 38, 39, 40
    SX, SWq, SO = 12, 16, 32
    a(f"s_cmp_ge_u32 s2, 240")
    a(f"s_cbranch_scc1 {END}")
    prof_start(a)
    a("s_load_dwordx4 s[4:7], s[0:1], 0")
    a("s_load_dwordx2 s[8:9], s[0:1], 64")
    R = Regs(1)
    vL = R.alloc()
    vT = [R.alloc() for _ in range(8)]
    vXo, vXo2, vWo, vWo2 = [R.alloc() for _ in range(4)]
    vXa = [R.alloc() for _ in range(4)]
    vWa = [R.alloc() for _ in range(4)]
    vSum = [R.alloc() for _ in range(4)]
    vSq = [R.alloc() for _ in range(4)]
    vOne = R.alloc(4, 4)
    F = [[R.alloc(4, 4) for _ in range(3)] for _ in range(4)]
    acc = [R.alloc(16, 4) for _ in range(2)]
    vCs = R.alloc(16, 4)
    a(f"v_lshrrev_b32 v{vT[0]}, 6, v0")
    a(f"v_and_b32 v{vL}, 63, v0")
    a(f"v_readfirstlane_b32 s{sW_}, v{vT[0]}")
    a(f"s_and_b32 s{sT}, s2, 1")
    a(f"s_mul_i32 s{sT}, s{sT}, 30")
    a(f"s_lshr_b32 s{sC}, s2, 3")
    a(f"s_add_u32 s{sT}, s{sT}, s{sC}")
    a(f"s_lshr_b32 s{sJ}, s{sT}, 2")
    a(f"s_and_b32 s{sT}, s{sT}, 3")
    a(f"s_bfe_u32 s{sI}, s2, 0x20001")
    a(f"s_lshl_b32 s{sI}, s{sI}, 2")
    a(f"s_add_u32 s{sI}, s{sI}, s{sT}")
    a(f"s_mul_i32 s{sT}, s{sT}, 3")
    a(f"s_add_u32 s{sC}, s{sJ}, s{sT}")
    for _ in range(2):
        a(f"s_sub_u32 s{sT}, s{sC}, 10")
        a(f"s_cmp_ge_u32 s{sC}, 10")
        a(f"s_cselect_b32 s{sC}, s{sT}, s{sC}")
    a(f"s_mul_i32 s{sXb}, s{sI}, 163840")
    a(f"s_lshl_b32 s{sWb}, s{sJ}, 8")
    a(f"s_lshl_b32 s{sSt}, s{sW_}, 10")
    a(f"s_and_b32 s{sWf}, s{sW_}, 3")
    a(f"s_lshr_b32 s{sWt}, s{sW_}, 2")
    a(f"v_lshrrev_b32 v{vT[0]}, 3, v0")
    a(f"v_mul_u32_u24 v{vXo}, 1280, v{vT[0]}")
    a(f"v_lshrrev_b32 v{vT[1]}, 4, v0")
    a(f"v_xor_b32 v{vT[2]}, v0, v{vT[1]}")
    a(f"v_and_b32 v{vT[2]}, 7, v{vT[2]}")
    a(f"v_lshl_add_u32 v{vXo}, v{vT[2]}, 4, v{vXo}")
    a(f"v_add_u32 v{vXo2}, 81920, v{vXo}")
    a(f"v_mul_u32_u24 v{vWo}, 3840, v{vT[1]}")
    a(f"v_lshlrev_b32 v{vT[2]}, 2, v{vT[1]}")
    a(f"v_xor_b32 v{vT[2]}, v0, v{vT[2]}")
    a(f"v_and_b32 v{vT[2]}, 15, v{vT[2]}")
    a(f"v_lshl_add_u32 v{vWo}, v{vT[2]}, 4, v{vWo}")
    a(f"v_add_u32 v{vWo2}, 122880, v{vWo}")
    a("s_waitcnt lgkmcnt(0)")
    srd(a, SX, 4, 5, S*D*2)
    srd(a, SWq, 6, 7, D*3*D*2)
    srd(a, SO, 8, 9, WS_END)

    def dma_chunk():
        a(f"s_lshl_b32 s{sXo}, s{sC}, 7")
        a(f"s_mov_b32 m0, s{sSt}")
        a(f"s_add_u32 s{sXo}, s{sXo}, s{sXb}")
        a(f"buffer_load_dwordx4 v{vXo}, s[{SX}:{SX+3}], s{sXo} offen lds")
        a(f"s_add_u32 m0, s{sSt}, 8192")
        a(f"s_mul_i32 s{sWo}, s{sC}, 245760")
        a(f"buffer_load_dwordx4 v{vXo2}, s[{SX}:{SX+3}], s{sXo} offen lds")
        a(f"s_add_u32 m0, s{sSt}, 16384")
        a(f"s_add_u32 s{sWo}, s{sWo}, s{sWb}")
        a(f"buffer_load_dwordx4 v{vWo}, s[{SWq}:{SWq+3}], s{sWo} offen lds")
        a(f"s_add_u32 m0, s{sSt}, 24576")
        a(f"s_add_u32 s{sC}, s{sC}, 1")
        a(f"buffer_load_dwordx4 v{vWo2}, s[{SWq}:{SWq+3}], s{sWo} offen lds")
        a(f"s_cmp_eq_u32 s{sC}, 10")
        a(f"s_cselect_b32 s{sC}, 0, s{sC}")
        a(f"s_add_u32 s{sSt}, s{sSt}, 32768")
        a(f"s_and_b32 s{sSt}, s{sSt}, 0x1ffff")
    Lp = a.newlabel("k1p")
    a(f"s_mov_b32 s{sCnt}, 0")
    a.label(Lp)
    dma_chunk()
    a(f"s_add_u32 s{sCnt}, s{sCnt}, 1")
    a(f"s_cmp_lt_u32 s{sCnt}, 4")
    a(f"s_cbranch_scc1 {Lp}")
    Lz = a.newlabel("k1z")
    a(f"s_cmp_ge_u32 s2, 4")
    a(f"s_cbranch_scc1 {Lz}")
    for r in range(4):
        a(f"v_mov_b32 v{vOne+r}, 0")
    a(f"v_lshlrev_b32 v{vT[0]}, 4, v0")
    a(f"s_lshl_b32 s{sT}, s2, 13")
    a(f"s_add_u32 s{sT}, s{sT}, {OFF_Z}")
    a(f"buffer_store_dwordx4 v[{vOne}:{vOne+3}], v{vT[0]}, s[{SO}:{SO+3}], s{sT} offen")
    a("s_waitcnt vmcnt(0)")
    a.label(Lz)
    a(f"s_lshl_b32 s{sRot}, s{sWt}, 1")
    a(f"s_add_u32 s{sRot}, s{sRot}, s{sWf}")
    a(f"v_and_b32 v{vT[0]}, 31, v{vL}")
    a(f"v_lshrrev_b32 v{vT[1]}, 5, v{vL}")
    a(f"v_bfe_u32 v{vT[2]}, v{vL}, 1, 3")
    a(f"v_xor_b32 v{vT[2]}, v{vT[2]}, v{vT[1]}")
    a(f"s_lshl_b32 s{sT}, s{sWt}, 13")
    a(f"v_lshl_add_u32 v{vT[0]}, v{vT[0]}, 7, s{sT}")
    a(f"v_bfe_u32 v{vT[3]}, v{vL}, 2, 2")
    a(f"v_lshl_add_u32 v{vT[4]}, v{vT[1]}, 3, v{vT[3]}")
    a(f"v_lshlrev_b32 v{vT[4]}, 8, v{vT[4]}")
    a(f"v_xor_b32 v{vT[3]}, s{sWf}, v{vT[3]}")
    a(f"v_lshl_add_u32 v{vT[4]}, v{vT[3]}, 6, v{vT[4]}")
    a(f"v_bfe_u32 v{vT[3]}, v{vL}, 4, 1")
    a(f"v_lshl_add_u32 v{vT[4]}, v{vT[3]}, 5, v{vT[4]}")
    a(f"v_and_b32 v{vT[3]}, 3, v{vL}")
    a(f"v_lshl_add_u32 v{vT[4]}, v{vT[3]}, 3, v{vT[4]}")
    for sp in range(4):
        a(f"s_add_u32 s{sT}, s{sRot}, {sp}")
        a(f"s_and_b32 s{sT}, s{sT}, 3")
        a(f"s_lshl_b32 s{sT2}, s{sT}, 1")
        a(f"v_xor_b32 v{vT[3]}, s{sT2}, v{vT[2]}")
        a(f"v_lshl_add_u32 v{vXa[sp]}, v{vT[3]}, 4, v{vT[0]}")
        a(f"s_lshl_b32 s{sT}, s{sT}, 12")
        a(f"s_add_u32 s{sT}, s{sT}, 16384")
        a(f"v_add_u32 v{vWa[sp]}, s{sT}, v{vT[4]}")
    for r in range(4):
        a(f"v_mov_b32 v{vOne+r}, 0x3f803f80")
        a(f"v_mov_b32 v{vSum[r]}, 0")
        a(f"v_mov_b32 v{vSq[r]}, 0")
    for r in range(16):
        a(f"v_mov_b32 v{acc[0]+r}, 0")
        a(f"v_mov_b32 v{acc[1]+r}, 0")
        a(f"v_mov_b32 v{vCs+r}, 0")
    a(f"s_mov_b32 s{sMask}, 0xffff0000")
    a(f"s_mov_b32 s{sCnt}, 0")

    def reads(sp, off):
        W, X0, X1 = F[sp]
        a(f"ds_read_b64_tr_b16 v[{W}:{W+1}], v{vWa[sp]} offset:{off}")
        a(f"ds_read_b64_tr_b16 v[{W+2}:{W+3}], v{vWa[sp]} offset:{off+1024}")
        a(f"ds_read_b128 v[{X0}:{X0+3}], v{vXa[sp]} offset:{off}")
        a(f"ds_read_b128 v[{X1}:{X1+3}], v{vXa[sp]} offset:{off+4096}")
    def stat(tb, r):
        x = F[0][1+tb] + r
        t0, t1 = vT[(2*r) % 8], vT[(2*r+1) % 8]
        return [f"v_lshlrev_b32 v{t0}, 16, v{x}", f"v_and_b32 v{t1}, s{sMask}, v{x}",
                f"v_add_f32 v{vSum[tb]}, v{vSum[tb]}, v{t0}", f"v_fmac_f32 v{vSq[tb]}, v{t0}, v{t0}",
                f"v_add_f32 v{vSum[2+tb]}, v{vSum[2+tb]}, v{t1}", f"v_fmac_f32 v{vSq[2+tb]}, v{t1}, v{t1}"]
    def mf(d, x, y, vtype):
        p, q = (x, y) if not vtype else (y, x)
        return f"v_mfma_f32_32x32x16_bf16 v[{d}:{d+15}], v[{p}:{p+3}], v[{q}:{q+3}], v[{d}:{d+15}]"

    prof_mark(a, 0)
    a("s_waitcnt vmcnt(12)")
    a("s_barrier")
    prof_mark(a, 1)
    a("s_waitcnt lgkmcnt(0)") if asmlib.PROF else None
    reads(0, 0)
    LV = a.newlabel("k1v")
    a(f"s_cmp_ge_u32 s{sJ}, 10")
    a(f"s_cbranch_scc1 {LV}")

    def mainloop(vtype):
        Lm = a.newlabel("k1m")
        a.label(Lm)
        for half in range(2):
            off = half*32768
            sv = []
            for tb in range(2):
                for r in range(4):
                    sv += stat(tb, r)
            for sp in range(4):
                W, X0, X1 = F[sp]
                if sp < 3:
                    reads(sp+1, off)
                    a("s_waitcnt lgkmcnt(4)")
                else:
                    a("s_waitcnt lgkmcnt(0) vmcnt(8)")
                    a("s_barrier")
                    if half == 0:
                        a(f"s_cmp_ge_u32 s{sCnt}, 3")
                        a(f"s_cselect_b32 s{SX+2}, 0, s{SX+2}")
                        a(f"s_cselect_b32 s{SWq+2}, 0, s{SWq+2}")
                    else:
                        for q in range(4):
                            a(f"v_xor_b32 v{vXa[q]}, 0x10000, v{vXa[q]}")
                            a(f"v_xor_b32 v{vWa[q]}, 0x10000, v{vWa[q]}")
                    reads(0, 32768 - off)
                ms = [mf(acc[0], W, X0, vtype), mf(acc[1], W, X1, vtype)]
                if sp in (1, 2):
                    ms.append(mf(vCs, W, vOne, vtype))
                if sp < 3:
                    chunk = sv[sp*16:(sp+1)*16]
                    per = (len(chunk) + len(ms) - 1)//len(ms)
                    for k, m in enumerate(ms):
                        a(m)
                        for x in chunk[k*per:(k+1)*per]:
                            a(x)
                else:
                    a(ms[0])
                    dma_chunk()
                    a(ms[1])
        a(f"s_add_u32 s{sCnt}, s{sCnt}, 1")
        a(f"s_cmp_lt_u32 s{sCnt}, 5")
        a(f"s_cbranch_scc1 {Lm}")
        prof_mark(a, 2)

    XB = 131072
    def stats_exchange(vtype):
        a(f"v_add_f32 v{vSum[0]}, v{vSum[0]}, v{vSum[2]}")
        a(f"v_add_f32 v{vSum[1]}, v{vSum[1]}, v{vSum[3]}")
        a(f"v_add_f32 v{vSq[0]}, v{vSq[0]}, v{vSq[2]}")
        a(f"v_add_f32 v{vSq[1]}, v{vSq[1]}, v{vSq[3]}")
        a("s_nop 1")
        a(f"v_permlane32_swap_b32 v{vSum[0]}, v{vSum[1]}")
        a(f"v_permlane32_swap_b32 v{vSq[0]}, v{vSq[1]}")
        p = F[1][0]
        a(f"v_add_f32 v{p}, v{vSum[0]}, v{vSum[1]}")
        a(f"v_add_f32 v{p+1}, v{vSq[0]}, v{vSq[1]}")
        a(f"s_lshl_b32 s{sT}, s{sWt}, 9")
        a(f"s_add_u32 s{sT}, s{sT}, {XB}")
        a(f"v_lshl_add_u32 v{vT[0]}, v{vL}, 3, s{sT}")
        a(f"s_lshl_b32 s{sT2}, s{sWf}, 10")
        a(f"v_add_u32 v{vT[1]}, s{sT2}, v{vT[0]}")
        a(f"ds_write_b64 v{vT[1]}, v[{p}:{p+1}]")
        a(f"s_lshl_b32 s{sT}, s{sW_}, 7")
        a(f"s_add_u32 s{sT}, s{sT}, {XB+4096}")
        if vtype:
            a(f"v_and_b32 v{vT[2]}, 31, v{vL}")
            a(f"v_lshl_add_u32 v{vT[2]}, v{vT[2]}, 2, s{sT}")
            a(f"ds_write_b32 v{vT[2]}, v{vCs}")
        else:
            a(f"v_lshrrev_b32 v{vT[2]}, 5, v{vL}")
            a(f"v_lshl_add_u32 v{vT[2]}, v{vT[2]}, 6, s{sT}")
            a(f"s_mov_b64 exec, 0x100000001" if False else "s_mov_b32 exec_lo, 1\ns_mov_b32 exec_hi, 1")
            for g in range(4):
                a(f"ds_write_b128 v{vT[2]}, v[{vCs+4*g}:{vCs+4*g+3}] offset:{16*g}")
            a("s_mov_b64 exec, -1")
        a(f"v_xor_b32 v{vT[2]}, 512, v{vT[2]}")
        a("s_waitcnt lgkmcnt(0)")
        a("s_barrier")
        q = F[2][0]
        for k in range(4):
            a(f"ds_read_b64 v[{q+2*k}:{q+2*k+1}], v{vT[0]} offset:{1024*k}")
        cs2 = q + 8
        if vtype:
            a(f"ds_read_b32 v{cs2}, v{vT[2]}")
        else:
            for g in range(4):
                a(f"ds_read_b128 v[{cs2+4*g}:{cs2+4*g+3}], v{vT[2]} offset:{16*g}")
        a("s_waitcnt lgkmcnt(0)")
        a(f"v_add_f32 v{q}, v{q}, v{q+2}")
        a(f"v_add_f32 v{q+1}, v{q+1}, v{q+3}")
        a(f"v_add_f32 v{q+4}, v{q+4}, v{q+6}")
        a(f"v_add_f32 v{q+5}, v{q+5}, v{q+7}")
        a(f"v_add_f32 v{q}, v{q}, v{q+4}")
        a(f"v_add_f32 v{q+1}, v{q+1}, v{q+5}")
        a(f"v_mul_f32 v{q}, {f2u(1.0/D):#x}, v{q}")
        a(f"v_mul_f32 v{q+1}, {f2u(1.0/D):#x}, v{q+1}")
        a(f"v_fma_f32 v{q+1}, -v{q}, v{q}, v{q+1}")
        a(f"v_max_f32 v{q+1}, 0, v{q+1}")
        a(f"v_add_f32 v{q+1}, {f2u(EPS):#x}, v{q+1}")
        a(f"v_rsq_f32 v{q+1}, v{q+1}")
        for r in range(1 if vtype else 16):
            a(f"v_add_f32 v{vCs+r}, v{vCs+r}, v{cs2+r}")
        return q

    mainloop(False)
    a("s_nop 7")
    a("s_nop 7")
    q = stats_exchange(False)
    a(f"s_cmp_lt_u32 s{sJ}, 5")
    a(f"s_cselect_b32 s{sT}, {f2u(QSCALE):#x}, 1.0")
    a(f"v_mul_f32 v{q+1}, s{sT}, v{q+1}")
    a(f"v_mul_f32 v{q}, -v{q}, v{q+1}" .replace("v_mul_f32", "v_mul_f32_e64"))
    a(f"v_mov_b32 v{q+2}, v{q}")
    a(f"v_mov_b32 v{q+3}, v{q+1}")
    a("s_nop 1")
    a(f"v_permlane32_swap_b32 v{q}, v{q+2}")
    a(f"v_permlane32_swap_b32 v{q+1}, v{q+3}")
    a(f"s_lshl_b32 s{sT}, s{sI}, 2")
    a(f"s_lshl_b32 s{sT2}, s{sWt}, 1")
    a(f"s_add_u32 s{sT}, s{sT}, s{sT2}")
    a(f"s_mul_i32 s{sXo}, s{sT}, 1280")
    a(f"s_lshr_b32 s{sT}, s{sT}, 3")
    a(f"s_mul_i32 s{sT}, s{sT}, 10240")
    a(f"s_add_u32 s{sT}, s{sT}, {OFF_KV}")
    a(f"s_cmp_lt_u32 s{sJ}, 5")
    a(f"s_cselect_b32 s{sT}, {OFF_Q}, s{sT}")
    a(f"s_mov_b32 s{sHS}, 163840")
    a(f"s_cselect_b32 s{sHS}, 81920, s{sHS}")
    a(f"s_cselect_b32 s{sT2}, 0, 5")
    a(f"s_add_u32 s{sXo}, s{sXo}, s{sT}")
    a(f"s_sub_u32 s{sT2}, s{sJ}, s{sT2}")
    a(f"s_lshl_b32 s{sT2}, s{sT2}, 5")
    a(f"s_lshl_b32 s{sT}, s{sWf}, 3")
    a(f"s_add_u32 s{sT2}, s{sT2}, s{sT}")
    a(f"v_lshrrev_b32 v{vT[0]}, 5, v{vL}")
    a(f"v_add_u32 v{vT[0]}, s{sT2}, v{vT[0]}")
    a(f"v_and_b32 v{vT[1]}, 31, v{vL}")
    a(f"v_lshlrev_b32 v{vT[1]}, 3, v{vT[1]}")
    P = F[0][0]
    for g in range(4):
        qd, hd, r5, ad = vT[2], vT[3], vT[4], vXa[g]
        a(f"v_add_u32 v{qd}, {2*g}, v{vT[0]}")
        a(f"v_mul_u32_u24 v{hd}, 13108, v{qd}")
        a(f"v_lshrrev_b32 v{hd}, 16, v{hd}")
        a(f"v_mad_i32_i24 v{r5}, v{hd}, -5, v{qd}")
        a(f"v_mul_lo_u32 v{ad}, v{hd}, s{sHS}")
        a(f"v_add_u32 v{ad}, v{ad}, v{vT[1]}")
        a(f"v_lshrrev_b32 v{qd}, 1, v{r5}")
        a(f"v_lshl_add_u32 v{ad}, v{qd}, 9, v{ad}")
        a(f"v_and_b32 v{qd}, 1, v{r5}")
        a(f"v_lshl_add_u32 v{qd}, v{qd}, 3, v{vT[1]}")
        a(f"v_cmp_gt_u32 vcc, 4, v{r5}")
        a("s_nop 1")
        a(f"v_cndmask_b32 v{qd}, 0, v{qd}, vcc")
        a(f"v_add_u32 v{ad}, v{ad}, v{qd}")
    for tb in range(2):
        nm, rs = q + 2*tb, q + 2*tb + 1
        for g in range(4):
            for i in range(4):
                r = 4*g + i
                a(f"v_mul_f32 v{vT[i]}, v{nm}, v{vCs+r}")
            for i in range(4):
                r = 4*g + i
                a(f"v_fmac_f32 v{vT[i]}, v{rs}, v{acc[tb]+r}")
            pp = P + 2*((tb*4+g) % 6)
            a(f"v_cvt_pk_bf16_f32 v{pp}, v{vT[0]}, v{vT[1]}")
            a(f"v_cvt_pk_bf16_f32 v{pp+1}, v{vT[2]}, v{vT[3]}")
            a(f"buffer_store_dwordx2 v[{pp}:{pp+1}], v{vXa[g]}, s[{SO}:{SO+3}], s{sXo} offen offset:{1280*tb}")
    prof_end(a, 0)
    a("s_endpgm")

    a.label(LV)
    mainloop(True)
    a("s_nop 7")
    a("s_nop 7")
    q = stats_exchange(True)
    a(f"v_mul_f32_e64 v{q}, -v{q}, v{q+1}")
    a(f"s_lshl_b32 s{sT}, s{sW_}, 9")
    a(f"s_add_u32 s{sT}, s{sT}, {XB+8192}")
    a(f"v_lshl_add_u32 v{vT[0]}, v{vL}, 2, s{sT}")
    a(f"ds_write_b32 v{vT[0]}, v{q}")
    a(f"ds_write_b32 v{vT[0]}, v{q+1} offset:256")
    a(f"v_lshrrev_b32 v{vT[1]}, 5, v{vL}")
    a(f"v_lshl_add_u32 v{vT[0]}, v{vT[1]}, 4, s{sT}")
    a(f"s_sub_u32 s{sT2}, s{sJ}, 10")
    a(f"s_lshl_b32 s{sT2}, s{sT2}, 7")
    a(f"s_lshl_b32 s{sT}, s{sWf}, 5")
    a(f"s_add_u32 s{sT2}, s{sT2}, s{sT}")
    a(f"v_and_b32 v{vT[2]}, 31, v{vL}")
    a(f"v_add_u32 v{vT[2]}, s{sT2}, v{vT[2]}")
    a(f"v_mul_u32_u24 v{vT[3]}, 3277, v{vT[2]}")
    a(f"v_lshrrev_b32 v{vT[3]}, 16, v{vT[3]}")
    a(f"v_mul_u32_u24 v{vT[4]}, 20, v{vT[3]}")
    a(f"v_sub_u32 v{vT[2]}, v{vT[2]}, v{vT[4]}")
    a(f"v_mul_u32_u24 v{vT[3]}, 163840, v{vT[3]}")
    a(f"v_lshl_add_u32 v{vT[3]}, v{vT[2]}, 4, v{vT[3]}")
    a(f"v_mul_u32_u24 v{vT[1]}, 320, v{vT[1]}")
    a(f"v_add_u32 v{vXa[0]}, v{vT[3]}, v{vT[1]}")
    a(f"s_lshr_b32 s{sT}, s{sI}, 1")
    a(f"s_mul_i32 s{sT}, s{sT}, 20480")
    a(f"s_and_b32 s{sT2}, s{sI}, 1")
    a(f"s_lshl_b32 s{sT2}, s{sT2}, 1")
    a(f"s_add_u32 s{sT2}, s{sT2}, s{sWt}")
    a(f"s_mul_i32 s{sT2}, s{sT2}, 2560")
    a(f"s_add_u32 s{sXo}, s{sT}, s{sT2}")
    a(f"s_add_u32 s{sXo}, s{sXo}, {OFF_KV+10240}")
    a("s_waitcnt lgkmcnt(0)")
    NM = F[0][0]
    RS = NM + 16
    P = F[3][0]
    for tb in range(2):
        for g in range(4):
            a(f"ds_read_b128 v[{NM+4*g}:{NM+4*g+3}], v{vT[0]} offset:{tb*128 + g*32}")
            a(f"ds_read_b128 v[{RS+4*g}:{RS+4*g+3}], v{vT[0]} offset:{256 + tb*128 + g*32}")
        a("s_waitcnt lgkmcnt(0)")
        for r in range(16):
            a(f"v_mul_f32 v{NM+r}, v{NM+r}, v{vCs}")
        for r in range(16):
            a(f"v_fmac_f32 v{NM+r}, v{RS+r}, v{acc[tb]+r}")
        for gp in range(2):
            pp = P + 4*gp
            for k in range(4):
                a(f"v_cvt_pk_bf16_f32 v{pp+k}, v{NM+8*gp+2*k}, v{NM+8*gp+2*k+1}")
            a("s_nop 1")
            a(f"v_permlane32_swap_b32 v{pp}, v{pp+2}")
            a(f"v_permlane32_swap_b32 v{pp+1}, v{pp+3}")
            a(f"buffer_store_dwordx4 v[{pp}:{pp+3}], v{vXa[0]}, s[{SO}:{SO+3}], s{sXo} offen offset:{tb*1280 + gp*640}")
        a("s_nop 1")
    prof_end(a, 0)
    a.label(END)
    a("s_endpgm")
    return R.hi, 131072 + 8192 + 4096

assert all((q*13108) >> 16 == q//5 for q in range(200))
assert all((f*3277) >> 16 == f//20 for f in range(700))
```

```python
from asmlib import *
import asmlib
from layout import *

import os
NTASK = int(os.environ.get('NTASK', '650'))
NOBAR = int(os.environ.get('NOBAR', '0'))
NOEXEC = int(os.environ.get('NOEXEC', '0'))
def gen_prep(a, R0, sTask, sb, wsl, wsh, vL, skip):
    vS, vD, vCg, vKg = R0, R0+1, R0+2, R0+3
    vIn = R0 + 4
    vOut = vIn + 32
    SS, SD = sb, sb+4
    sP, sE, sB, sT, sU, sSel0, sSel1 = sb+8, sb+9, sb+10, sb+11, sb+12, sb+13, sb+14
    sPtr = sb+16
    Lw2, Lw1, Lgo, Lw = [a.newlabel("prep") for _ in range(4)]
    a(f"s_cmp_ge_u32 s{sTask}, {NTASK}")
    a(f"s_cbranch_scc1 {skip}")
    a(f"s_cmp_lt_u32 s{sTask}, 100")
    a(f"s_cbranch_scc0 {Lw2}")
    a(f"s_load_dwordx2 s[{sPtr}:{sPtr+1}], s[0:1], 16")
    a(f"s_mov_b32 s{SS+2}, {D*D*2}")
    a(f"s_mov_b32 s{sE}, 0")
    a(f"s_mov_b32 s{sU}, 20")
    a(f"s_mov_b32 s{sSel0}, {OFF_WO}")
    a(f"v_lshrrev_b32 v{vKg}, 4, v{vL}")
    a(f"v_lshlrev_b32 v{vS}, 3, v{vKg}")
    a(f"s_branch {Lw}")
    a.label(Lw2)
    a(f"s_cmp_lt_u32 s{sTask}, 370")
    a(f"s_cbranch_scc0 {Lw1}")
    a(f"s_load_dwordx2 s[{sPtr}:{sPtr+1}], s[0:1], 40")
    a(f"s_sub_u32 s{sTask}, s{sTask}, 100")
    a(f"s_mov_b32 s{SS+2}, {DFF*D*2}")
    a(f"s_mov_b32 s{sE}, {4*1280}")
    a(f"s_mov_b32 s{sU}, 54")
    a(f"s_mov_b32 s{sSel0}, {OFF_W2}")
    a(f"v_lshrrev_b32 v{vKg}, 4, v{vL}")
    a(f"v_lshrrev_b32 v{vS}, 5, v{vL}")
    a(f"v_lshlrev_b32 v{vS}, 4, v{vS}")
    a(f"v_and_b32 v{vD}, 1, v{vKg}")
    a(f"v_lshl_add_u32 v{vS}, v{vD}, 2, v{vS}")
    a.label(Lw)
    a(f"s_mov_b32 s{sP}, 1280")
    a(f"s_mul_i32 s{sT}, s{sTask}, 13108")
    a(f"s_lshr_b32 s{sT}, s{sT}, 16")
    a(f"s_mul_i32 s{sB}, s{sT}, 5")
    a(f"s_sub_u32 s{sTask}, s{sTask}, s{sB}")
    a(f"s_mul_i32 s{sSel1}, s{sT}, 5120")
    a(f"s_add_u32 s{sSel0}, s{sSel0}, s{sSel1}")
    a(f"s_mul_i32 s{sB}, s{sT}, {32*1280}")
    a(f"s_lshl_b32 s{sT}, s{sTask}, 8")
    a(f"s_add_u32 s{sB}, s{sB}, s{sT}")
    a(f"v_and_b32 v{vCg}, 15, v{vL}")
    a(f"s_lshl_b32 s{sT}, s{sTask}, 3")
    a(f"v_lshrrev_b32 v{vD}, 1, v{vCg}")
    a(f"v_add_u32 v{vD}, s{sT}, v{vD}")
    a(f"v_mul_u32_u24 v{vIn}, 13108, v{vD}")
    a(f"v_lshrrev_b32 v{vIn}, 16, v{vIn}")
    a(f"v_mad_i32_i24 v{vD}, v{vIn}, -5, v{vD}")
    a(f"s_mul_i32 s{sU}, s{sU}, 5")
    a(f"v_mad_u32_u24 v{vD}, v{vIn}, s{sU}, v{vD}")
    a(f"v_lshlrev_b32 v{vD}, 10, v{vD}")
    a(f"v_lshl_add_u32 v{vD}, v{vKg}, 8, v{vD}")
    a(f"v_and_b32 v{vIn}, 1, v{vCg}")
    a(f"v_lshl_add_u32 v{vD}, v{vIn}, 7, v{vD}")
    a(f"s_branch {Lgo}")
    a.label(Lw1)
    a(f"s_load_dwordx2 s[{sPtr}:{sPtr+1}], s[0:1], 32")
    a(f"s_sub_u32 s{sTask}, s{sTask}, 370")
    a(f"s_mov_b32 s{SS+2}, {DFF*D*2}")
    a(f"s_mov_b32 s{sE}, 0")
    a(f"s_mov_b32 s{sP}, 3456")
    a(f"s_mul_i32 s{sT}, s{sTask}, 4682")
    a(f"s_lshr_b32 s{sT}, s{sT}, 16")
    a(f"s_mul_i32 s{sB}, s{sT}, 14")
    a(f"s_sub_u32 s{sTask}, s{sTask}, s{sB}")
    a(f"s_mul_i32 s{sSel0}, s{sTask}, {40*4096}")
    a(f"s_lshl_b32 s{sSel1}, s{sT}, 13")
    a(f"s_add_u32 s{sSel0}, s{sSel0}, s{sSel1}")
    a(f"s_add_u32 s{sSel0}, s{sSel0}, {OFF_W1}")
    a(f"s_mul_i32 s{sB}, s{sT}, {32*3456}")
    a(f"s_lshl_b32 s{sT}, s{sTask}, 8")
    a(f"s_add_u32 s{sB}, s{sB}, s{sT}")
    a(f"v_lshrrev_b32 v{vKg}, 4, v{vL}")
    a(f"v_lshlrev_b32 v{vS}, 3, v{vKg}")
    a(f"v_and_b32 v{vCg}, 15, v{vL}")
    a(f"v_lshrrev_b32 v{vD}, 5, v{vL}")
    a(f"v_lshlrev_b32 v{vD}, 12, v{vD}")
    a(f"v_lshrrev_b32 v{vIn}, 2, v{vCg}")
    a(f"v_lshl_add_u32 v{vD}, v{vIn}, 10, v{vD}")
    a(f"v_and_b32 v{vIn}, 1, v{vKg}")
    a(f"v_lshl_add_u32 v{vD}, v{vIn}, 9, v{vD}")
    a(f"v_and_b32 v{vIn}, 3, v{vCg}")
    a(f"v_lshl_add_u32 v{vD}, v{vIn}, 7, v{vD}")
    a.label(Lgo)
    a(f"v_mul_lo_u32 v{vS}, v{vS}, s{sP}")
    a(f"v_lshl_add_u32 v{vS}, v{vCg}, 4, v{vS}")
    a(f"v_add_u32 v{vD}, s{sSel0}, v{vD}")
    a("s_waitcnt lgkmcnt(0)")
    a(f"s_mov_b32 s{SS}, s{sPtr}")
    a(f"s_mov_b32 s{SS+1}, s{sPtr+1}")
    a(f"s_mov_b32 s{SS+3}, 0x20000")
    srd(a, SD, wsl, wsh, WS_END)
    for j in range(8):
        a(f"buffer_load_dwordx4 v[{vIn+4*j}:{vIn+4*j+3}], v{vS}, s[{SS}:{SS+3}], s{sB} offen")
        if j < 7:
            a(f"s_add_u32 s{sB}, s{sB}, s{sP}")
        if j == 3:
            a(f"s_add_u32 s{sB}, s{sB}, s{sE}")
    a(f"s_mov_b32 s{sSel0}, 0x05040100")
    a(f"s_mov_b32 s{sSel1}, 0x07060302")

def gen_prep2(a, R0, sb):
    vS, vD, vCg, vKg = R0, R0+1, R0+2, R0+3
    vIn = R0 + 4
    vOut = vIn + 32
    SS, SD = sb, sb+4
    sSel0, sSel1 = sb+13, sb+14
    for c in range(8):
        for jp in range(4):
            A_ = vIn + 4*(2*jp) + c//2
            B_ = vIn + 4*(2*jp+1) + c//2
            a(f"v_perm_b32 v{vOut+4*c+jp}, v{B_}, v{A_}, s{sSel1 if c & 1 else sSel0}")
        a(f"buffer_store_dwordx4 v[{vOut+4*c}:{vOut+4*c+3}], v{vD}, s[{SD}:{SD+3}], 0 offen offset:{16*c}")

assert all((t*13108) >> 16 == t//5 for t in range(300))
assert all((t*4682) >> 16 == t//14 for t in range(300))

import os
PRIO = int(os.environ.get('PRIO', '1'))
def gen_k2(a, name):
    kernel_header(a, name)
    END = f"{name}_end"
    sW_, sQg, sKh, sHead, sQb, sT, sT2, sTrip, sSlotN, sSlotD, sTg, sWoff = range(20, 32)
    SKV, SQ, SO = 8, 12, 16
    sVm = 32
    sTask = 34
    sHasP = 35
    SLOT = 20480
    NSLOT = 3
    XB = NSLOT*SLOT
    a("s_cmp_ge_u32 s2, 256")
    a(f"s_cbranch_scc1 {END}")
    prof_start(a)
    a("s_load_dwordx2 s[4:5], s[0:1], 64")
    R = Regs(1)
    vL = R.alloc()
    vT = [R.alloc() for _ in range(6)]
    vDma = R.alloc()
    vK1b, vK2b, vVb, vK1a, vK2a, vVa = [R.alloc() for _ in range(6)]
    Q1 = [R.alloc(4, 4) for _ in range(2)]
    Q2 = [R.alloc(2, 2) for _ in range(2)]
    K1 = R.alloc(4, 4)
    V = [R.alloc(4, 4) for _ in range(2)]
    K2 = R.alloc(2, 2)
    O = [R.alloc(16, 4) for _ in range(2)]
    P = [R.alloc(8, 4) for _ in range(2)]
    Sx = [R.alloc(16, 4) for _ in range(2)]
    PREP = R.alloc(68, 4)
    a(f"v_lshrrev_b32 v{vT[0]}, 6, v0")
    a(f"v_and_b32 v{vL}, 63, v0")
    a(f"v_readfirstlane_b32 s{sW_}, v{vT[0]}")
    a(f"s_and_b32 s{sHead}, s2, 7")
    a(f"s_lshl_b32 s{sHead}, s{sHead}, 2")
    a(f"s_lshr_b32 s{sT}, s2, 6")
    a(f"s_add_u32 s{sHead}, s{sHead}, s{sT}")
    a(f"s_bfe_u32 s{sQb}, s2, 0x30003")
    a(f"s_and_b32 s{sQg}, s{sW_}, 3")
    a(f"s_lshr_b32 s{sKh}, s{sW_}, 2")
    a(f"s_mul_i32 s{sWoff}, s{sW_}, 2560")
    a(f"v_lshl_add_u32 v{vDma}, v{vL}, 4, s{sWoff}")
    a(f"s_mul_i32 s{sT}, s{sHead}, 163840")
    a(f"s_mul_i32 s{sT2}, s{sHead}, 81920")
    a("s_waitcnt lgkmcnt(0)")
    srd(a, SKV, 4, 5, 163840, off_sgpr=sT, off_imm=OFF_KV)
    srd(a, SQ, 4, 5, 81920, off_sgpr=sT2, off_imm=OFF_Q)
    a(f"s_mov_b32 s{sTg}, s{sQb}")
    a(f"s_mov_b32 s{sSlotD}, s{sWoff}")
    def dma_trip():
        a(f"s_mul_i32 s{sT}, s{sTg}, {SLOT}")
        a(f"s_mov_b32 m0, s{sSlotD}")
        a(f"s_add_u32 s{sTg}, s{sTg}, 1")
        a(f"buffer_load_dwordx4 v{vDma}, s[{SKV}:{SKV+3}], s{sT} offen lds")
        a(f"buffer_load_dwordx4 v{vDma}, s[{SKV}:{SKV+3}], s{sT} offen offset:1024 lds")
        a(f"s_mov_b32 exec_hi, 0")
        a(f"buffer_load_dwordx4 v{vDma}, s[{SKV}:{SKV+3}], s{sT} offen offset:2048 lds")
        a(f"s_mov_b32 exec_hi, -1")
        a(f"s_and_b32 s{sTg}, s{sTg}, 7")
        a(f"s_add_u32 s{sSlotD}, s{sSlotD}, {SLOT}")
        a(f"s_cmp_ge_u32 s{sSlotD}, {NSLOT*SLOT}")
        a(f"s_cselect_b32 s{sSlotD}, s{sWoff}, s{sSlotD}")
    dma_trip()
    a(f"s_lshl_b32 s{sT}, s{sQb}, 3")
    a(f"s_lshl_b32 s{sT2}, s{sQg}, 1")
    a(f"s_add_u32 s{sT}, s{sT}, s{sT2}")
    a(f"s_add_u32 s{sQb}, s{sT}, s{sKh}")
    a(f"s_mul_i32 s{sT}, s{sQb}, 1280")
    a(f"s_xor_b32 s{sT2}, s{sQb}, 1")
    a(f"s_mul_i32 s{sT2}, s{sT2}, 1280")
    a(f"v_lshlrev_b32 v{vT[0]}, 4, v{vL}")
    a(f"v_lshlrev_b32 v{vT[1]}, 3, v{vL}")
    for k in range(2):
        a(f"v_mov_b32 v{Q2[k]}, 0")
        a(f"v_mov_b32 v{Q2[k]+1}, 0")
    a(f"buffer_load_dwordx4 v[{Q1[0]}:{Q1[0]+3}], v{vT[0]}, s[{SQ}:{SQ+3}], s{sT} offen")
    a(f"buffer_load_dwordx4 v[{Q1[1]}:{Q1[1]+3}], v{vT[0]}, s[{SQ}:{SQ+3}], s{sT2} offen")
    a(f"s_mov_b32 exec_hi, 0")
    a(f"buffer_load_dwordx2 v[{Q2[0]}:{Q2[0]+1}], v{vT[1]}, s[{SQ}:{SQ+3}], s{sT} offen offset:1024")
    a(f"buffer_load_dwordx2 v[{Q2[1]}:{Q2[1]+1}], v{vT[1]}, s[{SQ}:{SQ+3}], s{sT2} offen offset:1024")
    a(f"s_mov_b32 exec_hi, -1")
    dma_trip()
    a(f"v_and_b32 v{vT[0]}, 0x13, v{vL}")
    a(f"v_bfe_u32 v{vT[1]}, v{vL}, 2, 1")
    a(f"v_lshl_add_u32 v{vT[0]}, v{vT[1]}, 3, v{vT[0]}")
    a(f"v_bfe_u32 v{vT[1]}, v{vL}, 3, 1")
    a(f"v_lshl_add_u32 v{vT[0]}, v{vT[1]}, 2, v{vT[0]}")
    a(f"v_lshrrev_b32 v{vT[1]}, 5, v{vL}")
    a(f"s_mul_i32 s{sT}, s{sKh}, 1280")
    a(f"v_lshl_add_u32 v{vK2b}, v{vT[0]}, 3, s{sT}")
    a(f"v_add_u32 v{vK2b}, 1024, v{vK2b}")
    a(f"v_lshl_add_u32 v{vK1b}, v{vT[0]}, 4, s{sT}")
    a(f"v_lshl_add_u32 v{vK1b}, v{vT[1]}, 9, v{vK1b}")
    a(f"v_and_b32 v{vT[0]}, 31, v{vL}")
    a(f"v_lshl_add_u32 v{vVb}, v{vT[0]}, 4, s{sT}")
    a(f"v_mul_u32_u24 v{vT[1]}, 320, v{vT[1]}")
    a(f"v_add_u32 v{vVb}, v{vVb}, v{vT[1]}")
    a(f"v_add_u32 v{vVb}, 10240, v{vVb}")
    a(f"v_mov_b32 v{vK1a}, v{vK1b}")
    a(f"v_mov_b32 v{vK2a}, v{vK2b}")
    a(f"v_mov_b32 v{vVa}, v{vVb}")
    a(f"s_mov_b32 s{sVm}, 0xfffff")
    a(f"s_mov_b32 s{sVm+1}, 0xfffff")
    for r in range(8):
        a(f"v_mov_b32 v{V[0]+r}, 0x3f803f80")
        a(f"v_mov_b32 v{P[1]+r}, 0")
    for r in range(16):
        a(f"v_mov_b32 v{O[0]+r}, 0")
        a(f"v_mov_b32 v{O[1]+r}, 0")
    Lskip = a.newlabel("k2noprep")
    a(f"s_lshl_b32 s{sTask}, s{sW_}, 8")
    a(f"s_add_u32 s{sTask}, s{sTask}, s2")
    a(f"s_mov_b32 s{sSlotN}, 0")
    a(f"s_mov_b32 s{sTrip}, 0")
    a(f"s_cmp_lt_u32 s{sTask}, {NTASK}")
    a(f"s_cselect_b32 s{sHasP}, 0, 99")
    srd(a, 40, 4, 5, WS_END)
    a(f"v_mov_b32 v{PREP+1}, 0")
    Lw3 = a.newlabel("k2w")
    gen_prep(a, PREP, sTask, 36, 4, 5, vL, Lskip)
    prof_mark(a, 0)
    a("s_waitcnt vmcnt(11)")
    a(f"s_branch {Lw3}")
    a.label(Lskip)
    prof_mark(a, 0)
    a("s_waitcnt vmcnt(3)")
    a.label(Lw3)
    a("s_barrier")
    def kread(off):
        a(f"ds_read_b128 v[{K1}:{K1+3}], v{vK1a} offset:{off}")
        a(f"ds_read_b64 v[{K2}:{K2+1}], v{vK2a} offset:{off}")
    def vread(off):
        if not NOEXEC: a(f"s_mov_b64 exec, s[{sVm}:{sVm+1}]")
        a(f"ds_read_b128 v[{V[0]}:{V[0]+3}], v{vVa} offset:{off}")
        a(f"ds_read_b128 v[{V[1]}:{V[1]+3}], v{vVa} offset:{off+640}")
        if not NOEXEC: a(f"s_mov_b64 exec, -1")
    def qk1(x): return f"v_mfma_f32_32x32x16_bf16 v[{Sx[x]}:{Sx[x]+15}], v[{K1}:{K1+3}], v[{Q1[x]}:{Q1[x]+3}], 0"
    def qk2(x): return f"v_mfma_f32_32x32x8_bf16 v[{Sx[x]}:{Sx[x]+15}], v[{K2}:{K2+1}], v[{Q2[x]}:{Q2[x]+1}], v[{Sx[x]}:{Sx[x]+15}]"
    def pv(x, k): return f"v_mfma_f32_32x32x16_bf16 v[{O[x]}:{O[x]+15}], v[{V[k]}:{V[k]+3}], v[{P[x]+4*k}:{P[x]+4*k+3}], v[{O[x]}:{O[x]+15}]"
    def vgroup(x, g):
        s = Sx[x] + 4*g
        for i in range(4):
            a(f"v_exp_f32 v{s+i}, v{s+i}")
        a(f"v_cvt_pk_bf16_f32 v{P[x]+2*g}, v{s}, v{s+1}")
        a(f"v_cvt_pk_bf16_f32 v{P[x]+2*g+1}, v{s+2}, v{s+3}")
    prof_mark(a, 1)
    kread(0)
    a("s_waitcnt lgkmcnt(0)")
    a(qk1(0)); a(qk2(0))
    a("s_nop 7"); a("s_nop 3")
    Lm = a.newlabel("k2m")
    Lnd = a.newlabel("k2nd")
    a.label(Lm)
    for u in range(4):
        if PRIO: a(f"s_setprio {(2-u) % 4}")
        a(qk1(1))
        vgroup(0, 0)
        a(qk2(1))
        if u == 3:
            a("s_waitcnt vmcnt(0)")
            if not NOBAR: a("s_barrier")
            a(f"s_add_u32 s{sSlotN}, s{sSlotN}, {SLOT}")
            a(f"s_cmp_ge_u32 s{sSlotN}, {NSLOT*SLOT}")
            a(f"s_cselect_b32 s{sSlotN}, 0, s{sSlotN}")
            a(f"v_add_u32 v{vK1a}, s{sSlotN}, v{vK1b}")
            a(f"v_add_u32 v{vK2a}, s{sSlotN}, v{vK2b}")
            kread(0)
            a(f"s_cmp_ge_u32 s{sTrip}, 6")
            a(f"s_cbranch_scc1 {Lnd}")
            dma_trip()
            a(f"s_cmp_lg_u32 s{sTrip}, s{sHasP}")
            a(f"s_cbranch_scc1 {Lnd}")
            gen_prep2(a, PREP, 36)
            a.label(Lnd)
        else:
            kread((u+1)*2560)
        vgroup(0, 1)
        a(pv(1, 0))
        vgroup(0, 2)
        a(pv(1, 1))
        vread(u*2560)
        vgroup(0, 3)
        a("s_waitcnt lgkmcnt(2)")
        a(qk1(0))
        vgroup(1, 0)
        a(qk2(0))
        vgroup(1, 1)
        a("s_waitcnt lgkmcnt(0)")
        a(pv(0, 0))
        vgroup(1, 2)
        a(pv(0, 1))
        if u == 3:
            a(f"v_add_u32 v{vVa}, s{sSlotN}, v{vVb}")
            a(f"s_add_u32 s{sTrip}, s{sTrip}, 1")
            a(f"s_cmp_lt_u32 s{sTrip}, 8")
        vgroup(1, 3)
    a(f"s_cbranch_scc1 {Lm}")
    prof_mark(a, 2)
    a("s_nop 0")
    a(pv(1, 0))
    a(pv(1, 1))
    a(f"s_lshl_b32 s{sT}, s{sW_}, 12")
    a(f"s_add_u32 s{sT}, s{sT}, {XB}")
    a(f"v_lshl_add_u32 v{vT[0]}, v{vL}, 4, s{sT}")
    a(f"s_xor_b32 s{sT}, s{sW_}, 4")
    a(f"s_lshl_b32 s{sT}, s{sT}, 12")
    a(f"s_add_u32 s{sT}, s{sT}, {XB}")
    a(f"v_lshl_add_u32 v{vT[1]}, v{vL}, 4, s{sT}")
    a("s_nop 7")
    for g in range(4):
        a(f"ds_write_b128 v{vT[0]}, v[{O[1]+4*g}:{O[1]+4*g+3}] offset:{1024*g}")
    srd(a, SO, 4, 5, SZ_O, off_imm=OFF_O)
    a(f"s_mul_i32 s{sT2}, s{sQb}, {2*20*1024}")
    a(f"v_bfe_u32 v{vT[2]}, v{vL}, 4, 1")
    a(f"v_mul_u32_u24 v{vT[2]}, {20*1024}, v{vT[2]}")
    a(f"v_and_b32 v{vT[3]}, 15, v{vL}")
    a(f"v_lshl_add_u32 v{vT[2]}, v{vT[3]}, 4, v{vT[2]}")
    a(f"s_mul_i32 s{sT}, s{sHead}, 5")
    a(f"v_lshrrev_b32 v{vT[3]}, 5, v{vL}")
    a(f"v_add_u32 v{vT[3]}, s{sT}, v{vT[3]}")
    a(f"v_lshrrev_b32 v{vT[4]}, 1, v{vT[3]}")
    a(f"v_lshl_add_u32 v{vT[2]}, v{vT[4]}, 8, v{vT[2]}")
    a(f"v_and_b32 v{vT[4]}, 1, v{vT[3]}")
    a(f"v_lshl_add_u32 v{vT[2]}, v{vT[4]}, 3, v{vT[2]}")
    a("s_waitcnt lgkmcnt(0)")
    a("s_barrier")
    for g in range(4):
        a(f"ds_read_b128 v[{O[1]+4*g}:{O[1]+4*g+3}], v{vT[1]} offset:{1024*g}")
    a("s_waitcnt lgkmcnt(0)")
    for r in range(13):
        a(f"v_add_f32 v{O[0]+r}, v{O[0]+r}, v{O[1]+r}")
    a(f"v_mov_b32 v{vT[3]}, 0")
    for r in range(12):
        a(f"v_fma_f32 v{vT[3]}, v{O[0]+r}, 0, v{vT[3]}")
    a(f"v_add_f32 v{vT[3]}, v{vT[3]}, v{O[0]+12}")
    a(f"v_cmp_nge_f32 vcc, v{vT[3]}, v{vT[3]}") if False else None
    a(f"s_mov_b32 s{sT}, {f2u(2.0**-64):#x}")
    a(f"v_cmp_nle_f32 s[56:57], s{sT}, v{vT[3]}")
    a(f"s_mov_b32 s{sT}, {f2u(2.0**64):#x}")
    a(f"v_cmp_nge_f32 vcc, s{sT}, v{vT[3]}")
    a("s_nop 1")
    a(f"s_or_b64 vcc, vcc, s[56:57]")
    Lslow, Lfin = a.newlabel("k2slow"), a.newlabel("k2fin")
    if not (NOBAR or NOEXEC): a(f"s_cbranch_vccnz {Lslow}")
    a.label(Lfin)
    a(f"v_rcp_f32 v{vT[3]}, v{O[0]+12}")
    a("s_nop 0")
    for r in range(12):
        a(f"v_mul_f32 v{O[0]+r}, v{O[0]+r}, v{vT[3]}")
    for k in range(6):
        a(f"v_cvt_pk_bf16_f32 v{P[0]+k}, v{O[0]+2*k}, v{O[0]+2*k+1}")
    a(f"buffer_store_dwordx2 v[{P[0]}:{P[0]+1}], v{vT[2]}, s[{SO}:{SO+3}], s{sT2} offen")
    a(f"buffer_store_dwordx2 v[{P[0]+2}:{P[0]+3}], v{vT[2]}, s[{SO}:{SO+3}], s{sT2} offen offset:256")
    a(f"s_mov_b32 exec_hi, 0")
    a(f"buffer_store_dwordx2 v[{P[0]+4}:{P[0]+5}], v{vT[2]}, s[{SO}:{SO+3}], s{sT2} offen offset:512")
    prof_end(a, 1)
    a.label(END)
    a("s_endpgm")
    a.label(Lslow)
    vM, vMn, vAl = vT[0], vT[1], vT[4]
    a(f"s_mul_i32 s{sT}, s{sKh}, 1280")
    a(f"v_subrev_u32 v{vK1a}, s{sT}, v{vK1b}")
    a(f"v_subrev_u32 v{vK2a}, s{sT}, v{vK2b}")
    a(f"v_subrev_u32 v{vVa}, s{sT}, v{vVb}")
    a(f"v_mov_b32 v{vM}, {f2u(-3.0e38):#x}")
    for r in range(16):
        a(f"v_mov_b32 v{O[0]+r}, 0")
    a(f"s_mov_b32 s{sTrip}, 0")
    Ls = a.newlabel("k2sl")
    a.label(Ls)
    a(f"s_mul_i32 s{sT}, s{sTrip}, 1280")
    a(f"s_lshr_b32 s{sTg}, s{sTrip}, 3")
    a(f"s_mul_i32 s{sTg}, s{sTg}, 10240")
    a(f"s_add_u32 s{sT}, s{sT}, s{sTg}")
    a(f"buffer_load_dwordx4 v[{K1}:{K1+3}], v{vK1a}, s[{SKV}:{SKV+3}], s{sT} offen")
    a(f"buffer_load_dwordx2 v[{K2}:{K2+1}], v{vK2a}, s[{SKV}:{SKV+3}], s{sT} offen")
    a(f"s_mov_b64 exec, s[{sVm}:{sVm+1}]")
    a(f"buffer_load_dwordx4 v[{V[0]}:{V[0]+3}], v{vVa}, s[{SKV}:{SKV+3}], s{sT} offen")
    a(f"buffer_load_dwordx4 v[{V[1]}:{V[1]+3}], v{vVa}, s[{SKV}:{SKV+3}], s{sT} offen offset:640")
    a(f"s_mov_b64 exec, -1")
    a("s_waitcnt vmcnt(0)")
    a(qk1(0)); a(qk2(0))
    a("s_nop 7"); a("s_nop 4")
    s0 = Sx[0]
    a(f"v_max3_f32 v{vMn}, v{s0}, v{s0+1}, v{vM}")
    for r in range(2, 16, 2):
        a(f"v_max3_f32 v{vMn}, v{s0+r}, v{s0+r+1}, v{vMn}")
    a(f"v_mov_b32 v{vAl}, v{vMn}")
    a("s_nop 1")
    a(f"v_permlane32_swap_b32 v{vMn}, v{vAl}")
    a(f"v_max_f32 v{vMn}, v{vMn}, v{vAl}")
    a(f"v_sub_f32 v{vAl}, v{vM}, v{vMn}")
    a(f"v_exp_f32 v{vAl}, v{vAl}")
    a(f"v_mov_b32 v{vM}, v{vMn}")
    for r in range(16):
        a(f"v_sub_f32 v{s0+r}, v{s0+r}, v{vMn}")
        a(f"v_mul_f32 v{O[0]+r}, v{O[0]+r}, v{vAl}")
    for g in range(4):
        vgroup(0, g)
    a("s_nop 1")
    a(pv(0, 0)); a(pv(0, 1))
    a(f"s_add_u32 s{sTrip}, s{sTrip}, 1")
    a(f"s_cmp_lt_u32 s{sTrip}, 64")
    a("s_nop 7"); a("s_nop 3")
    a(f"s_cbranch_scc1 {Ls}")
    a(f"s_branch {Lfin}")
    return R.hi, XB + 8*4096
```

```python
S, D, H, DH, DFF = 2048, 640, 32, 20, 1728
SZ_Q = 32*81920
OFF_Q  = 0
OFF_KV = OFF_Q + SZ_Q
SZ_KV  = 32*163840
OFF_O  = OFF_KV + SZ_KV + 20480
SZ_O   = 128*20*1024
OFF_H  = OFF_O + SZ_O
SZ_H   = 64*40*1024
OFF_H1 = OFF_H + SZ_H
SZ_H1  = 128*54*1024
OFF_WO = OFF_H1 + SZ_H1 + 1024
SZ_WO  = 8*20*5*1024
OFF_W1 = OFF_WO + SZ_WO
SZ_W1  = 14*40*4*1024
OFF_W2 = OFF_W1 + SZ_W1
SZ_W2  = 8*54*5*1024
OFF_ST = OFF_W2 + SZ_W2 + 1024
SZ_ST  = 8*2048*8
OFF_S1 = OFF_ST + SZ_ST
OFF_F1 = OFF_S1 + 16384
OFF_Z  = OFF_F1 + 4096
OFF_FL = OFF_Z
OFF_PF = OFF_FL + 4*64*128
OFF_CS = OFF_PF + 1024
SZ_Z   = 40960
assert OFF_CS + 1792*4 <= OFF_Z + SZ_Z
WS_END = OFF_Z + SZ_Z
QSCALE = (DH ** -0.5) * 1.4426950408889634
EPS = 1e-5
import struct
def f2u(x):
    return struct.unpack("<I", struct.pack("<f", x))[0]
```

```python
from asmlib import *
import asmlib, os
from layout import *

SLOT = 20480
TIMEOUT = 200000
MARKSET = os.environ.get('MARKSET', 'main')
_pm = prof_mark
def prof_mark(a, i, set_='main'):
    if set_ == MARKSET: _pm(a, i)
PF1 = int(os.environ.get('PF1', '24'))
PRETOUCH = int(os.environ.get('PRETOUCH', '1'))
KVSC = os.environ.get('KVSC', 'sc1')
FORCE_SLOW = int(os.environ.get('FORCE_SLOW', '0'))
DSC = os.environ.get('DSC', '')
XD = int(os.environ.get('XD', '12'))
XPRE = int(os.environ.get('XPRE', '8'))

def gen_mega(a, name):
    kernel_header(a, name)
    END = f"{name}_end"
    ool = []
    SWS, SIN, SP = 8, 12, 16
    (sW_, sB, sM, sQb, sKh, sT, sT2, sT3, sTrip, sSlotN, sSrcA, sKVb, sWoff,
     sSrcW, sDstW, sTask, sPd, sPs, sTb, sPb, sIa, sIb, sFast, sRedo) = range(20, 44)
    sVm, sCmp = 44, 46
    sPtr = 48
    sOm, sOr = 58, 59
    sRt, sCt, sR1, sC1, sNat, sXo, sTo, sNW = range(76, 84)
    sGp = sNW
    a("s_cmp_ge_u32 s2, 256")
    a(f"s_cbranch_scc1 {END}")
    prof_start(a)
    a("s_load_dwordx2 s[4:5], s[0:1], 64")
    a("s_load_dwordx2 s[6:7], s[0:1], 0")
    a(f"s_load_dwordx8 s[{sPtr}:{sPtr+7}], s[0:1], 16")
    a(f"s_load_dwordx2 s[{sPtr+8}:{sPtr+9}], s[0:1], 48")
    R = Regs(1)
    vL, vL16, vL4, vOneI, vZero = [R.alloc() for _ in range(5)]
    vT = [R.alloc() for _ in range(6)]
    vA = [R.alloc() for _ in range(3)]
    vNat, vHo, vSplit = [R.alloc() for _ in range(3)]
    vRes = R.alloc(10, 2)
    GBASE = R.n
    vDma = R.alloc()
    vK1b, vK2b, vVb, vK1a, vK2a, vVa = [R.alloc() for _ in range(6)]
    vPa, vPb, vCw, vCr, vOm, vOr = [R.alloc() for _ in range(6)]
    vKp, vGp, vJunk = [R.alloc() for _ in range(3)]
    Q1 = [R.alloc(4, 4) for _ in range(2)]
    Q2 = [R.alloc(2, 2) for _ in range(2)]
    K1 = R.alloc(4, 4)
    V = [R.alloc(4, 4) for _ in range(2)]
    K2 = R.alloc(2, 2)
    O = [R.alloc(16, 4) for _ in range(2)]
    P = [R.alloc(8, 4) for _ in range(2)]
    Sx = [R.alloc(16, 4) for _ in range(2)]
    PF = R.alloc(16, 4)
    PC = R.alloc(32, 4)
    pOne = R.alloc(4, 4)

    a(f"v_lshrrev_b32 v{vT[0]}, 6, v0")
    a(f"v_and_b32 v{vL}, 63, v0")
    a(f"v_readfirstlane_b32 s{sW_}, v{vT[0]}")
    a(f"v_lshlrev_b32 v{vL16}, 4, v{vL}")
    a(f"s_and_b32 s{sB}, s2, 7")
    a(f"s_lshr_b32 s{sM}, s2, 3")
    a(f"s_lshr_b32 s{sKh}, s{sW_}, 2")
    a(f"s_mul_i32 s{sWoff}, s{sW_}, 2560")
    a(f"v_add_u32 v{vDma}, s{sWoff}, v{vL16}")
    a(f"s_mul_i32 s{sKVb}, s{sM}, 163840")
    a(f"s_add_u32 s{sKVb}, s{sKVb}, {OFF_KV}")
    a(f"s_mov_b32 s{sSrcA}, s{sKVb}")
    a(f"s_add_u32 m0, s{sWoff}, {SLOT}")
    a(f"s_and_b32 s{sT2}, s{sW_}, 3")
    a(f"s_lshl_b32 s{sT2}, s{sT2}, 1")
    a(f"s_lshl_b32 s{sT}, s{sB}, 3")
    a(f"s_add_u32 s{sT}, s{sT}, s{sT2}")
    a(f"s_add_u32 s{sQb}, s{sT}, s{sKh}")
    a(f"s_mul_i32 s{sT3}, s{sM}, 81920")
    a(f"s_mul_i32 s{sT2}, s{sQb}, 1280")
    a(f"s_add_u32 s{sT2}, s{sT2}, s{sT3}")
    a(f"s_xor_b32 s{sT}, s{sQb}, 1")
    a(f"s_mul_i32 s{sT}, s{sT}, 1280")
    a(f"s_add_u32 s{sT}, s{sT}, s{sT3}")
    assert OFF_Q == 0
    a(f"v_lshlrev_b32 v{vT[1]}, 3, v{vL}")
    for k in range(2):
        a(f"v_mov_b32 v{Q2[k]}, 0")
        a(f"v_mov_b32 v{Q2[k]+1}, 0")
    a("s_waitcnt lgkmcnt(0)")
    srd(a, SWS, 4, 5, WS_END)
    ws = f"s[{SWS}:{SWS+3}]"
    def dma_piece(k, src, sc=""):
        if k == 2: a("s_mov_b32 exec_hi, 0")
        a(f"buffer_load_dwordx4 v{vDma}, {ws}, s{src} offen offset:{1024*k} {sc} lds")
        if k == 2: a("s_mov_b32 exec_hi, -1")
    for k in range(2):
        dma_piece(k, sSrcA, KVSC)
    a(f"buffer_load_dwordx4 v[{Q1[0]}:{Q1[0]+3}], v{vL16}, {ws}, s{sT} offen")
    a(f"buffer_load_dwordx4 v[{Q1[1]}:{Q1[1]+3}], v{vL16}, {ws}, s{sT2} offen")
    a("s_mov_b32 exec_hi, 0")
    a(f"buffer_load_dwordx4 v{vDma}, {ws}, s{sSrcA} offen offset:2048 {KVSC} lds")
    a(f"buffer_load_dwordx2 v[{Q2[0]}:{Q2[0]+1}], v{vT[1]}, {ws}, s{sT} offen offset:1024")
    a(f"buffer_load_dwordx2 v[{Q2[1]}:{Q2[1]+1}], v{vT[1]}, {ws}, s{sT2} offen offset:1024")
    a("s_mov_b32 exec_hi, -1")
    srd(a, SIN, 6, 7, S*D*2)
    Lnp, Lp1, Lpg, Lpw = [a.newlabel("prep") for _ in range(4)]
    vPs = PC
    vH, vKg, vG1 = PF, PF+1, PF+2
    vT15, vT31 = PF+3, PF+4
    a(f"s_mov_b32 s{SP}, s{sPtr}")
    a(f"s_mov_b32 s{SP+1}, s{sPtr+1}")
    a(f"s_mov_b32 s{SP+2}, {D*D*2}")
    a(f"s_mov_b32 s{SP+3}, 0x20000")
    a(f"v_lshrrev_b32 v{vKg}, 4, v{vL}")
    a(f"v_lshrrev_b32 v{vH}, 5, v{vL}")
    a(f"v_and_b32 v{vG1}, 1, v{vKg}")
    a(f"v_and_b32 v{vT15}, 15, v{vL}")
    a(f"v_and_b32 v{vT31}, 31, v{vL}")
    a(f"v_bfe_u32 v{vT[0]}, v{vL}, 2, 2")
    a(f"v_and_b32 v{vT[2]}, 3, v{vL}")
    a(f"v_lshlrev_b32 v{vT[2]}, 3, v{vT[2]}")
    a(f"v_lshl_add_u32 v{vT[2]}, v{vT[0]}, 7, v{vT[2]}")
    a(f"s_lshl_b32 s{sT}, s{sW_}, 12")
    a(f"s_add_u32 s{sT}, s{sT}, {3*SLOT}")
    a(f"v_add_u32 v{vT[2]}, s{sT}, v{vT[2]}")
    a(f"s_mov_b32 m0, s{sT}")
    a(f"v_lshl_add_u32 v{vPa}, v{vH}, 11, v{vT[2]}")
    a(f"v_lshl_add_u32 v{vPa}, v{vG1}, 9, v{vPa}")
    a(f"v_add_u32 v{vPb}, 1024, v{vPa}")
    a(f"v_lshrrev_b32 v{vPs}, 3, v{vL}")
    a(f"s_mul_i32 s{sTask}, s2, 5")
    a(f"s_add_u32 s{sTask}, s{sTask}, s{sW_}")
    a(f"s_cmp_ge_u32 s{sW_}, 5")
    a(f"s_cselect_b32 s{sTask}, 9999, s{sTask}")
    a(f"s_cbranch_scc1 {Lnp}")
    a(f"s_mov_b32 s{sT3}, s{sTask}")
    a(f"s_mov_b32 s{sPd}, {OFF_WO}")
    a(f"s_mov_b32 s{sPs}, {20*5120}")
    a(f"s_mov_b32 s{sIa}, 8")
    a(f"s_mov_b32 s{sIb}, 12")
    a(f"s_mov_b32 s{sPb}, 40")
    a(f"s_cmp_lt_u32 s{sTask}, 200")
    a(f"s_cbranch_scc1 {Lpw}")
    a(f"s_mov_b32 s{sIb}, 8")
    a(f"s_mov_b32 s{sPb}, 32")
    a(f"s_mov_b32 s{SP+2}, {DFF*D*2}")
    a(f"s_cmp_lt_u32 s{sTask}, 740")
    a(f"s_cbranch_scc0 {Lp1}")
    a(f"s_mov_b32 s{SP}, s{sPtr+6}")
    a(f"s_mov_b32 s{SP+1}, s{sPtr+7}")
    a(f"s_sub_u32 s{sT3}, s{sTask}, 200")
    a(f"s_mov_b32 s{sPd}, {OFF_W2}")
    a(f"s_mov_b32 s{sPs}, {54*5120}")
    a.label(Lpw)
    a(f"s_mul_i32 s{sT}, s{sT3}, 6554")
    a(f"s_lshr_b32 s{sT}, s{sT}, 16")
    a(f"s_mul_i32 s{sT2}, s{sT}, 10")
    a(f"s_sub_u32 s{sTb}, s{sT3}, s{sT2}")
    a(f"s_mul_i32 s{sT2}, s{sT}, 5120")
    a(f"s_add_u32 s{sPd}, s{sPd}, s{sT2}")
    a(f"s_mul_i32 s{sPb}, s{sPb}, s{sT}")
    a(f"s_mov_b32 s{sT3}, 1280")
    a(f"s_sub_u32 s{sT2}, s{sTask}, 160")
    a(f"s_cmp_lt_u32 s{sT2}, 40")
    a(f"s_cbranch_scc0 {Lpg}")
    a(f"s_mul_i32 s{sPb}, s{sT}, 160")
    a(f"s_sub_u32 s{sPb}, s{sPb}, {16*160 - 16}")
    a(f"s_mov_b32 s{sIa}, 40")
    a(f"s_mov_b32 s{sIb}, 40")
    a(f"v_lshl_add_u32 v{vPs}, v{vH}, 4, v{vPs}")
    a(f"v_lshl_add_u32 v{vPa}, v{vKg}, 10, v{vT[2]}")
    a(f"v_add_u32 v{vPb}, 512, v{vPa}")
    a(f"s_branch {Lpg}")
    a.label(Lp1)
    a(f"s_mov_b32 s{SP}, s{sPtr+4}")
    a(f"s_mov_b32 s{SP+1}, s{sPtr+5}")
    a(f"s_sub_u32 s{sT3}, s{sTask}, 740")
    a(f"s_mul_i32 s{sT}, s{sT3}, 2428")
    a(f"s_lshr_b32 s{sT}, s{sT}, 16")
    a(f"s_mul_i32 s{sT2}, s{sT}, 27")
    a(f"s_sub_u32 s{sTb}, s{sT3}, s{sT2}")
    a(f"s_lshr_b32 s{sT2}, s{sTb}, 1")
    a(f"s_mul_i32 s{sPd}, s{sT2}, 163840")
    a(f"s_lshl_b32 s{sT2}, s{sT}, 13")
    a(f"s_add_u32 s{sPd}, s{sPd}, s{sT2}")
    a(f"s_and_b32 s{sT2}, s{sTb}, 1")
    a(f"s_lshl_b32 s{sT2}, s{sT2}, 11")
    a(f"s_add_u32 s{sPd}, s{sPd}, s{sT2}")
    a(f"s_add_u32 s{sPd}, s{sPd}, {OFF_W1}")
    a(f"v_lshl_add_u32 v{vPa}, v{vH}, 10, v{vT[2]}")
    a(f"v_lshl_add_u32 v{vPa}, v{vG1}, 5, v{vPa}")
    a(f"s_lshl_b32 s{sPb}, s{sT}, 5")
    a(f"s_mov_b32 s{sT3}, 3456")
    a.label(Lpg)
    a(f"s_mul_i32 s{sPb}, s{sPb}, s{sT3}")
    a(f"s_lshl_b32 s{sT2}, s{sTb}, 7")
    a(f"s_add_u32 s{sPb}, s{sPb}, s{sT2}")
    a(f"s_mul_i32 s{sIa}, s{sIa}, s{sT3}")
    a(f"s_mul_i32 s{sIb}, s{sIb}, s{sT3}")
    a(f"v_mul_lo_u32 v{vPs}, v{vPs}, s{sT3}")
    a(f"v_and_b32 v{vT[3]}, 7, v{vL}")
    a(f"v_lshl_add_u32 v{vPs}, v{vT[3]}, 4, v{vPs}")
    a.label(Lnp)
    a(f"v_and_b32 v{vT[0]}, 0x13, v{vL}")
    a(f"v_bfe_u32 v{vT[1]}, v{vL}, 2, 1")
    a(f"v_lshl_add_u32 v{vT[0]}, v{vT[1]}, 3, v{vT[0]}")
    a(f"v_bfe_u32 v{vT[1]}, v{vL}, 3, 1")
    a(f"v_lshl_add_u32 v{vT[0]}, v{vT[1]}, 2, v{vT[0]}")
    a(f"s_mul_i32 s{sT}, s{sKh}, 1280")
    a(f"v_lshl_add_u32 v{vK2b}, v{vT[0]}, 3, s{sT}")
    a(f"v_add_u32 v{vK2b}, 1024, v{vK2b}")
    a(f"v_lshl_add_u32 v{vK1b}, v{vT[0]}, 4, s{sT}")
    a(f"v_lshl_add_u32 v{vK1b}, v{vH}, 9, v{vK1b}")
    a(f"v_lshl_add_u32 v{vVb}, v{vT31}, 4, s{sT}")
    a(f"v_mul_u32_u24 v{vT[1]}, 320, v{vH}")
    a(f"v_add_u32 v{vVb}, v{vVb}, v{vT[1]}")
    a(f"v_add_u32 v{vVb}, 10240, v{vVb}")
    a(f"s_mov_b32 s{sSlotN}, {SLOT}")
    a(f"v_add_u32 v{vK1a}, s{sSlotN}, v{vK1b}")
    a(f"v_add_u32 v{vK2a}, s{sSlotN}, v{vK2b}")
    a(f"v_add_u32 v{vVa}, s{sSlotN}, v{vVb}")
    a(f"s_mov_b32 s{sVm}, 0xfffff")
    a(f"s_mov_b32 s{sVm+1}, 0xfffff")
    for r in range(8):
        a(f"v_mov_b32 v{V[0]+r}, 0x3f803f80")
        a(f"v_mov_b32 v{P[1]+r}, 0")
    for r in range(16):
        a(f"v_mov_b32 v{O[0]+r}, 0")
        a(f"v_mov_b32 v{O[1]+r}, 0")
    a(f"s_mov_b32 s{sTrip}, 0")
    a(f"s_mov_b32 s{sFast}, 0")
    a(f"s_mov_b32 s{sRedo}, 0")
    a(f"v_lshlrev_b32 v{vL4}, 2, v{vL}")
    a(f"v_mov_b32 v{vOneI}, 1")
    a(f"v_mov_b32 v{vZero}, 0")
    a(f"v_mov_b32 v{vA[0]}, v{vL16}")
    a(f"v_add_u32 v{vA[1]}, {3*SLOT}, v{vL16}")
    a(f"v_add_u32 v{vA[2]}, {6*SLOT}, v{vL16}")
    a(f"s_and_b32 s{sT}, s{sW_}, 3")
    a(f"s_lshl_b32 s{sT}, s{sT}, 12")
    a(f"s_add_u32 s{sT2}, s{sT}, {7*SLOT}")
    a(f"s_add_u32 s{sT}, s{sT}, {SLOT}")
    a(f"s_cmp_eq_u32 s{sKh}, 0")
    a(f"s_cselect_b32 s{sT3}, s{sT}, s{sT2}")
    a(f"s_cselect_b32 s{sT2}, s{sT2}, s{sT}")
    a(f"v_add_u32 v{vCw}, s{sT3}, v{vL16}")
    a(f"v_add_u32 v{vCr}, s{sT2}, v{vL16}")
    a(f"s_mul_i32 s{sOm}, s{sQb}, {2*20*1024}")
    a(f"s_add_u32 s{sOm}, s{sOm}, {OFF_O}")
    a(f"s_lshl_b32 s{sT}, s{sM}, 7")
    a(f"s_add_u32 s{sOr}, s{sOm}, s{sT}")
    a(f"s_add_u32 s{sOr}, s{sOr}, 16384")
    a(f"s_lshl_b32 s{sT}, s{sM}, 9")
    a(f"s_add_u32 s{sOm}, s{sOm}, s{sT}")
    a(f"v_mul_u32_u24 v{vT[2]}, {20*1024}, v{vG1}")
    a(f"v_lshl_add_u32 v{vOr}, v{vT15}, 3, v{vT[2]}")
    a(f"v_lshl_add_u32 v{vOm}, v{vT15}, 4, v{vT[2]}")
    a(f"v_lshl_add_u32 v{vOm}, v{vH}, 8, v{vOm}")
    a(f"s_and_b32 s{sT2}, s{sW_}, 3")
    a(f"s_and_b32 s{sRt}, s{sM}, 3")
    a(f"s_lshl_b32 s{sRt}, s{sRt}, 2")
    a(f"s_lshl_b32 s{sT}, s{sB}, 4")
    a(f"s_add_u32 s{sRt}, s{sRt}, s{sT}")
    a(f"s_add_u32 s{sRt}, s{sRt}, s{sT2}")
    a(f"s_lshr_b32 s{sCt}, s{sM}, 2")
    a(f"s_and_b32 s{sR1}, s{sM}, 1")
    a(f"s_lshl_b32 s{sR1}, s{sR1}, 2")
    a(f"s_lshl_b32 s{sT}, s{sB}, 3")
    a(f"s_add_u32 s{sR1}, s{sR1}, s{sT}")
    a(f"s_add_u32 s{sR1}, s{sR1}, s{sT2}")
    a(f"s_lshr_b32 s{sC1}, s{sM}, 1")
    a(f"v_mul_u32_u24 v{vNat}, 1280, v{vT15}")
    a(f"v_lshl_add_u32 v{vNat}, v{vKg}, 3, v{vNat}")
    a(f"s_mul_i32 s{sT}, s{sRt}, {16*1280}")
    a(f"s_mul_i32 s{sT2}, s{sCt}, 160")
    a(f"s_add_u32 s{sNat}, s{sT}, s{sT2}")
    a(f"v_lshlrev_b32 v{vHo}, 4, v{vT15}")
    a(f"v_lshl_add_u32 v{vHo}, v{vH}, 9, v{vHo}")
    a(f"v_lshl_add_u32 v{vHo}, v{vG1}, 3, v{vHo}")
    a(f"v_lshlrev_b32 v{vSplit}, 3, v{vT15}")
    a(f"v_lshl_add_u32 v{vSplit}, v{vKg}, 8, v{vSplit}")
    a(f"s_mul_i32 s{sSrcW}, s{sCt}, {20*5120}")
    a(f"s_add_u32 s{sSrcW}, s{sSrcW}, {OFF_WO}")
    a(f"s_add_u32 s{sDstW}, s{sWoff}, {3*SLOT}")
    a(f"v_min_u32 v{vKp}, 19, v{vL}")
    a(f"v_lshlrev_b32 v{vKp}, 7, v{vKp}")
    a(f"v_add_u32 v{vKp}, s{sWoff}, v{vKp}")
    a(f"v_add_u32 v{vKp}, {SLOT}, v{vKp}")
    a(f"v_mov_b32 v{vGp}, 0")
    a(f"s_mov_b32 s{sGp}, s{sKVb}")
    a(f"buffer_load_dword v{vJunk}, v{vKp}, {ws}, s{sSrcA} offen sc1")
    prof_mark(a, 0)
    a("s_waitcnt vmcnt(1)")
    a("s_barrier")
    def w1_src(dst):
        a(f"s_min_u32 s{dst}, s{sC1}, 13")
        a(f"s_mul_i32 s{dst}, s{dst}, 163840")
        a(f"s_add_u32 s{dst}, s{dst}, {OFF_W1}")
    def kread(off):
        a(f"ds_read_b128 v[{K1}:{K1+3}], v{vK1a} offset:{off}")
        a(f"ds_read_b64 v[{K2}:{K2+1}], v{vK2a} offset:{off}")
    def vread(off):
        a(f"s_mov_b64 exec, s[{sVm}:{sVm+1}]")
        a(f"ds_read_b128 v[{V[0]}:{V[0]+3}], v{vVa} offset:{off}")
        a(f"ds_read_b128 v[{V[1]}:{V[1]+3}], v{vVa} offset:{off+640}")
        a(f"s_mov_b64 exec, -1")
    def qk1(x): return f"v_mfma_f32_32x32x16_bf16 v[{Sx[x]}:{Sx[x]+15}], v[{K1}:{K1+3}], v[{Q1[x]}:{Q1[x]+3}], 0"
    def qk2(x): return f"v_mfma_f32_32x32x8_bf16 v[{Sx[x]}:{Sx[x]+15}], v[{K2}:{K2+1}], v[{Q2[x]}:{Q2[x]+1}], v[{Sx[x]}:{Sx[x]+15}]"
    def pv(x, k): return f"v_mfma_f32_32x32x16_bf16 v[{O[x]}:{O[x]+15}], v[{V[k]}:{V[k]+3}], v[{P[x]+4*k}:{P[x]+4*k+3}], v[{O[x]}:{O[x]+15}]"
    def vgroup(x, g):
        s = Sx[x] + 4*g
        for i in range(4):
            a(f"v_exp_f32 v{s+i}, v{s+i}")
        a(f"v_cvt_pk_bf16_f32 v{P[x]+2*g}, v{s}, v{s+1}")
        a(f"v_cvt_pk_bf16_f32 v{P[x]+2*g+1}, v{s+2}, v{s+3}")
    prof_mark(a, 1)
    kread(0)
    Lnq = a.newlabel("prep")
    a(f"s_cmp_ge_u32 s{sW_}, 5")
    a(f"s_cbranch_scc1 {Lnq}")
    for k in range(4):
        a(f"buffer_load_dwordx4 v{vPs}, s[{SP}:{SP+3}], s{sPb} offen lds")
        if k < 3:
            a(f"s_add_u32 m0, m0, 1024")
            a(f"s_add_u32 s{sPb}, s{sPb}, s{sIb if k == 1 else sIa}")
    a.label(Lnq)
    def next_unitA():
        a(f"s_add_u32 s{sSrcA}, s{sSrcA}, {SLOT}")
        a(f"s_add_u32 s{sSlotN}, s{sSlotN}, {SLOT}")
        a(f"s_cmp_ge_u32 s{sSlotN}, {3*SLOT}")
        a(f"s_cselect_b32 s{sSlotN}, 0, s{sSlotN}")
        a(f"s_add_u32 m0, s{sSlotN}, s{sWoff}")
    a("s_waitcnt lgkmcnt(0)")
    a(qk1(0)); a(qk2(0))
    next_unitA()
    a("s_nop 5")
    Lm, LhB, LhBr, LhA, LhAr = [a.newlabel("att") for _ in range(5)]
    a.label(Lm)
    for u in range(4):
        a(f"s_setprio {(2-u) % 4}")
        a(qk1(1))
        vgroup(0, 0)
        a(qk2(1))
        if u == 3:
            a(f"buffer_load_dword v{vJunk}, v{vKp}, {ws}, s{sSrcA} offen sc1")
            a(f"buffer_load_dword v{vJunk}, v{vGp}, {ws}, s{sGp} offen sc1")
            if MARKSET == "wait" and asmlib.PROF:
                a("s_memtime s[96:97]")
                a("s_waitcnt lgkmcnt(0)")
            a("s_waitcnt vmcnt(2)")
            if MARKSET == "wait" and asmlib.PROF:
                for i in range(7):
                    a(f"s_mov_b32 s{60+2*i}, s{62+2*i}")
                a("s_memtime s[74:75]")
                a("s_waitcnt lgkmcnt(0)")
                a("s_sub_u32 s74, s74, s96")
                a("s_add_u32 s74, s74, s86")
            a("s_barrier")
            if MARKSET == "trip" and asmlib.PROF:
                for i in range(7):
                    a(f"s_mov_b32 s{60+2*i}, s{62+2*i}")
                a("s_memtime s[74:75]")
                a("s_waitcnt lgkmcnt(0)")
            a(f"v_add_u32 v{vK1a}, s{sSlotN}, v{vK1b}")
            a(f"v_add_u32 v{vK2a}, s{sSlotN}, v{vK2b}")
            kread(0)
        else:
            kread((u+1)*2560)
        vgroup(0, 1)
        a(pv(1, 0))
        if u == 0: dma_piece(0, sSrcA, KVSC)
        if u == 1: dma_piece(2, sSrcA, KVSC)
        vgroup(0, 2)
        a(pv(1, 1))
        vread(u*2560)
        vgroup(0, 3)
        a("s_waitcnt lgkmcnt(2)")
        a(qk1(0))
        vgroup(1, 0)
        a(qk2(0))
        if u == 0: dma_piece(1, sSrcA, KVSC)
        if u == 1:
            a(f"s_cmp_ge_u32 s{sTrip}, 3")
            a(f"s_cbranch_scc1 {LhB}")
            a.label(LhBr)
        vgroup(1, 1)
        a("s_waitcnt lgkmcnt(0)")
        a(pv(0, 0))
        vgroup(1, 2)
        a(pv(0, 1))
        if u == 3:
            a(f"v_add_u32 v{vVa}, s{sSlotN}, v{vVb}")
            next_unitA()
            a(f"s_bitcmp1_b32 {0b01001011}, s{sTrip}")
            a(f"s_cbranch_scc1 {LhA}")
            a.label(LhAr)
            a(f"s_add_u32 s{sTrip}, s{sTrip}, 1")
            a(f"s_cmp_lt_u32 s{sTrip}, 8")
        vgroup(1, 3)
    a(f"s_cbranch_scc1 {Lm}")
    prof_mark(a, 2)
    prof_mark(a, 0, "tail")
    a("s_setprio 0")
    a(pv(1, 0))
    a(pv(1, 1))
    for g in range(3):
        a(f"ds_write_b128 v{vCw}, v[{O[0]+4*g}:{O[0]+4*g+3}] offset:{1024*g}")
    a(f"ds_write_b32 v{vCw}, v{O[0]+12} offset:3072")
    def flag_addr(dst, phase, s_tb32, s_idx=None):
        a(f"s_lshl_b32 s{dst}, s{s_tb32}, 7")
        if s_idx is not None:
            a(f"s_lshl_b32 s{sT}, s{s_idx}, 2")
            a(f"s_add_u32 s{dst}, s{dst}, s{sT}")
        a(f"s_add_u32 s{dst}, s{dst}, {OFF_FL + phase*64*128}")
    sFw, sFr = sPd, sPs
    flag_addr(sFw, 0, sQb, sM)
    a("s_waitcnt lgkmcnt(0)")
    a("s_barrier")
    for g in range(3):
        a(f"ds_read_b128 v[{O[0]+4*g}:{O[0]+4*g+3}], v{vCr} offset:{1024*g}")
    a(f"ds_read_b32 v{O[0]+12}, v{vCr} offset:3072")
    a("s_waitcnt lgkmcnt(0)")
    prof_mark(a, 1, "tail")
    Ob = O[1]
    a(f"v_add_f32 v{Ob+12}, v{Ob+12}, v{O[0]+12}")
    for r in range(0, 12, 2):
        a(f"v_pk_add_f32 v[{Ob+r}:{Ob+r+1}], v[{Ob+r}:{Ob+r+1}], v[{O[0]+r}:{O[0]+r+1}]")
    Lslow, Lfin, Lok = a.newlabel("slow"), a.newlabel("fin"), a.newlabel("ok")
    a.label(Lfin)
    a(f"v_rcp_f32 v{Ob+14}, v{Ob+12}")
    a("s_nop 0")
    for r in range(0, 12, 2):
        a(f"v_pk_mul_f32 v[{Ob+r}:{Ob+r+1}], v[{Ob+r}:{Ob+r+1}], v[{Ob+14}:{Ob+15}] op_sel_hi:[1,0]")
    for k in range(6):
        a(f"v_cvt_pk_bf16_f32 v{P[0]+k}, v{Ob+2*k}, v{Ob+2*k+1}")
    def dual(fn):
        Ls, Lr = a.newlabel("wt"), a.newlabel("wt")
        a(f"s_cmp_eq_u32 s{sFast}, 0")
        a(f"s_cbranch_scc1 {Ls}")
        fn("")
        a.label(Lr)
        def out():
            a.label(Ls)
            fn("sc1")
            a(f"s_branch {Lr}")
        ool.append(out)
    def put_flag(sc):
        a("s_waitcnt vmcnt(0)")
        a("s_mov_b64 exec, 1")
        a(f"buffer_store_dword v{vOneI}, v{vZero}, {ws}, s{sFw} offen {sc}")
        a("s_mov_b64 exec, -1")
    def o_store(sc):
        sc = sc or DSC
        a(f"buffer_store_dwordx4 v[{P[0]}:{P[0]+3}], v{vOm}, {ws}, s{sOm} offen {sc}")
        a(f"s_mov_b32 exec_hi, 0")
        a(f"buffer_store_dwordx2 v[{P[0]+4}:{P[0]+5}], v{vOr}, {ws}, s{sOr} offen {sc}")
        a(f"s_mov_b32 exec_hi, -1")
    dual(o_store)
    a(f"s_cmp_lg_u32 s{sRedo}, 0")
    a(f"s_cbranch_scc1 {Lok}")
    a(f"v_mov_b32 v{vT[3]}, v{Ob+12}")
    for r in range(12):
        a(f"v_fma_f32 v{vT[3]}, v{Ob+r}, 0, v{vT[3]}")
    a(f"s_mov_b32 s{sT}, {f2u(2.0**-64):#x}")
    a(f"v_cmp_nle_f32 s[{sCmp}:{sCmp+1}], s{sT}, v{vT[3]}")
    a(f"s_mov_b32 s{sT}, {f2u(2.0**64):#x}")
    a(f"v_cmp_nge_f32 vcc, s{sT}, v{vT[3]}")
    a("s_nop 1")
    a(f"s_or_b64 vcc, vcc, s[{sCmp}:{sCmp+1}]")
    a(f"s_cbranch_vccnz {Lslow}")
    a.label(Lok)
    prof_mark(a, 2, "tail")
    dual(put_flag)
    prof_mark(a, 3, "tail")
    a("s_barrier")
    Lprod = a.newlabel("prod")
    a(f"s_cmp_ge_u32 s{sW_}, 4")
    a(f"s_cbranch_scc1 {Lprod}")

    def wait_flags(n):
        Lp, Lq = a.newlabel("poll"), a.newlabel("poll")
        a(f"s_mov_b32 s{sT2}, 0")
        a(f"s_mov_b64 exec, {(1 << n) - 1:#x}" if n < 32 else "s_mov_b32 exec_hi, 0")
        a.label(Lp)
        a(f"buffer_load_dword v{vT[5]}, v{vL4}, {ws}, s{sFr} offen sc1")
        a(f"s_add_u32 s{sT2}, s{sT2}, 1")
        a(f"s_cmp_gt_u32 s{sT2}, {TIMEOUT}")
        a(f"s_cbranch_scc1 {Lq}")
        a("s_waitcnt vmcnt(0)")
        a(f"v_cmp_ne_u32 vcc, 1, v{vT[5]}")
        a(f"s_cbranch_vccnz {Lp}")
        a.label(Lq)
        a("s_mov_b64 exec, -1")

    G = Regs(GBASE)
    vSt = G.alloc(8, 4)
    vB0, vB1 = G.alloc(), G.alloc()
    Wf = [[G.alloc(4, 4) for _ in range(5)] for _ in range(2)]
    HACC = G.alloc(20, 4)
    ACC = G.alloc(64, 4)
    X = [G.alloc(4, 4) for _ in range(XD)]
    sT32 = sTask

    def wread(big, n0, s, buf, f):
        NF = 4 if big else 5
        CH = 5 if big else 4
        slot = (n0 + s//CH + 3) % 8
        w = Wf[buf][f]
        a(f"ds_read_b128 v[{w}:{w+3}], v{vA[slot//3]} offset:{(slot % 3)*SLOT + ((s % CH)*NF + f)*1024}")
    def gemm(big, n0, nsteps, accb, init=None, split_from=None, zero=False):
        NF = 4 if big else 5
        CH = 5 if big else 4
        AR = 16 if big else 4
        tag = f"g{n0}"
        acc = [accb + AR*f for f in range(NF)]
        cnt = []
        def xload():
            s = len(cnt)
            x = X[s % XD]
            if s % 4 == 0 and s:
                a(f"s_add_u32 s{sXo}, s{sXo}, 4096")
            if split_from is not None and s >= split_from:
                a(f"buffer_load_dwordx2 v[{x}:{x+1}], v{vSplit}, {ws}, s{sXo} offen offset:{(s % 4)*1024} sc1")
                a(f"buffer_load_dwordx2 v[{x+2}:{x+3}], v{vSplit}, {ws}, s{sXo} offen offset:{(s % 4)*1024+128} sc1")
                cnt.append(2)
            else:
                a(f"buffer_load_dwordx4 v[{x}:{x+3}], v{vL16}, {ws}, s{sXo} offen offset:{(s % 4)*1024} sc1")
                cnt.append(1)
        def mf(d, w, x, first):
            n = 16 if big else 4
            c = "0" if (first and zero) else f"v[{d}:{d+n-1}]"
            op = "v_mfma_f32_32x32x16_bf16" if big else "v_mfma_f32_16x16x32_bf16"
            return f"{op} v[{d}:{d+n-1}], v[{w}:{w+3}], v[{x}:{x+3}], {c}"
        prof_mark(a, 0, tag)
        for s in range(XPRE):
            xload()
        prof_mark(a, 1, tag)
        if init: init(sum(cnt))
        prof_mark(a, 2, tag)
        drained = True
        for s in range(nsteps):
            if s in (nsteps//4, nsteps//2, 3*nsteps//4):
                prof_mark(a, 3 + (nsteps//4, nsteps//2, 3*nsteps//4).index(s), tag)
                if tag == MARKSET and asmlib.PROF: a("s_waitcnt lgkmcnt(0)")
            buf = s & 1
            last = s == nsteps-1
            edge = (s % CH == CH-1) or last
            vm = sum(cnt[s+1:])
            if edge or s == 0:
                a(f"s_waitcnt lgkmcnt(0) vmcnt({vm})")
                if edge and n0 + s//CH < 26:
                    a("s_barrier")
            for f in range(NF):
                if not (edge or s == 0):
                    a(f"s_waitcnt lgkmcnt({NF-1})" + (f" vmcnt({vm})" if f == 0 else ""))
                a(mf(acc[f], Wf[buf][f], X[s % XD], s == 0))
                if not last:
                    wread(big, n0, s+1, buf ^ 1, f)
                if f in (0, 2) and len(cnt) < nsteps and len(cnt) < s + XD:
                    xload()
        prof_mark(a, 6, tag)
        return acc
    def lane_reduce(q, ops):
        for op in ops:
            a(f"v_mov_b32 v{q+2}, v{q}")
            a(f"v_mov_b32 v{q+3}, v{q+1}")
            a("s_nop 1")
            a(f"{op} v{q}, v{q+2}")
            a(f"{op} v{q+1}, v{q+3}")
            a(f"v_pk_add_f32 v[{q}:{q+1}], v[{q}:{q+1}], v[{q+2}:{q+3}]")

    for f in range(5):
        wread(False, 0, 0, 0, f)
    a(f"s_lshr_b32 s{sT32}, s{sRt}, 1")
    flag_addr(sFr, 0, sT32)
    a(f"s_mul_i32 s{sXo}, s{sRt}, {20*1024}")
    a(f"s_add_u32 s{sXo}, s{sXo}, {OFF_O}")
    for k in range(10):
        a(f"v_lshlrev_b32 v{HACC+2*k}, 16, v{vRes+k}")
        a(f"v_and_b32 v{HACC+2*k+1}, 0xffff0000, v{vRes+k}")
    prof_mark(a, 4, "tail")
    wait_flags(32)
    prof_mark(a, 5, "tail")
    prof_mark(a, 3)
    def init_o(n):
        a(f"s_mul_i32 s{sTo}, s{sT32}, 40960")
        a(f"s_and_b32 s{sT3}, s{sRt}, 1")
        a(f"s_lshl_b32 s{sT2}, s{sT3}, 8")
        a(f"s_add_u32 s{sTo}, s{sTo}, s{sT2}")
        a(f"s_mul_i32 s{sT2}, s{sCt}, 5120")
        a(f"s_add_u32 s{sTo}, s{sTo}, s{sT2}")
        a(f"s_add_u32 s{sTo}, s{sTo}, {OFF_H}")
        a(f"s_add_u32 s{sOm}, s{sTo}, 4096")
        a(f"s_lshl_b32 s{sT2}, s{sCt}, 1")
        a(f"s_add_u32 s{sT3}, s{sT3}, s{sT2}")
        flag_addr(sFw, 1, sT32, sT3)
        flag_addr(sFr, 1, sR1)
        a(f"s_lshl_b32 s{sOr}, s{sCt}, 14")
        a(f"s_lshl_b32 s{sT2}, s{sRt}, 7")
        a(f"s_add_u32 s{sOr}, s{sOr}, s{sT2}")
        a(f"s_add_u32 s{sOr}, s{sOr}, {OFF_ST}")
        a(f"v_lshlrev_b32 v{vB0}, 1, v{vL4}")
        a(f"v_lshrrev_b32 v{vB1}, 5, v{vL}")
        a(f"v_lshlrev_b32 v{vB1}, 4, v{vB1}")
        a(f"s_min_u32 s{sTb}, s{sC1}, 13")
        a(f"s_lshl_b32 s{sTb}, s{sTb}, 9")
        a(f"s_add_u32 s{sTb}, s{sTb}, {OFF_CS}")
    acc = gemm(False, 0, 20, HACC, init_o, split_from=16)
    a("s_nop 3")
    def h_store(sc):
        for f in range(5):
            for k in range(2):
                a(f"v_cvt_pk_bf16_f32 v{vRes+2*f+k}, v{acc[f]+2*k}, v{acc[f]+2*k+1}")
            a(f"buffer_store_dwordx2 v[{vRes+2*f}:{vRes+2*f+1}], v{vHo}, {ws}, s{sTo if f < 4 else sOm} offen offset:{1024*(f % 4)} {sc or DSC}")
        a(f"v_pk_add_f32 v[{vSt}:{vSt+1}], v[{HACC}:{HACC+1}], v[{HACC+2}:{HACC+3}]")
        a(f"v_pk_mul_f32 v[{vSt+2}:{vSt+3}], v[{HACC}:{HACC+1}], v[{HACC}:{HACC+1}]")
        for k in range(1, 10):
            r = HACC + 2*k
            if k > 1:
                a(f"v_pk_add_f32 v[{vSt}:{vSt+1}], v[{vSt}:{vSt+1}], v[{r}:{r+1}]")
            a(f"v_pk_fma_f32 v[{vSt+2}:{vSt+3}], v[{r}:{r+1}], v[{r}:{r+1}], v[{vSt+2}:{vSt+3}]")
        a(f"v_add_f32 v{vSt}, v{vSt}, v{vSt+1}")
        a(f"v_add_f32 v{vSt+1}, v{vSt+2}, v{vSt+3}")
        lane_reduce(vSt, ("v_permlane32_swap_b32", "v_permlane16_swap_b32"))
        a(f"s_mov_b64 exec, 0xffff")
        a(f"buffer_store_dwordx2 v[{vSt}:{vSt+1}], v{vB0}, {ws}, s{sOr} offen {sc or DSC}")
        put_flag(sc)
    dual(h_store)
    prof_mark(a, 4)
    prof_mark(a, 7, "g0")

    Lidle, Lf2 = a.newlabel("idle"), a.newlabel("f2")
    a(f"s_cmp_ge_u32 s{sC1}, 14")
    a(f"s_cbranch_scc1 {Lidle}")
    for f in range(4):
        wread(True, 5, 0, 0, f)
    for k in range(16):
        a(f"buffer_load_dwordx4 v[{ACC+4*k}:{ACC+4*k+3}], v{vB1}, {ws}, s{sTb} offen offset:{32*k} sc1")
    a(f"s_mul_i32 s{sXo}, s{sR1}, {40*1024}")
    a(f"s_add_u32 s{sXo}, s{sXo}, {OFF_H}")
    a(f"v_and_b32 v{vT[2]}, 31, v{vL}")
    a(f"v_lshlrev_b32 v{vT[2]}, 3, v{vT[2]}")
    a(f"v_lshl_add_u32 v{vT[2]}, v{vB1}, 12, v{vT[2]}")
    a(f"s_lshl_b32 s{sT3}, s{sR1}, 8")
    a(f"s_add_u32 s{sT3}, s{sT3}, {OFF_ST}")
    wait_flags(16)
    prof_mark(a, 5)
    for k in range(4):
        a(f"buffer_load_dword v{vSt+k}, v{vT[2]}, {ws}, s{sT3} offen sc1")
        if k < 3:
            a(f"s_add_u32 s{sT3}, s{sT3}, 16384")
    def init_f1(n):
        a(f"v_bfe_u32 v{vT[3]}, v{vL}, 4, 1")
        a(f"v_mul_u32_u24 v{vB0}, {54*1024}, v{vT[3]}")
        a(f"v_lshl_add_u32 v{vB0}, v{vB1}, 4, v{vB0}")
        a(f"v_and_b32 v{vT[3]}, 15, v{vL}")
        a(f"v_lshl_add_u32 v{vB0}, v{vT[3]}, 4, v{vB0}")
        a(f"s_mul_i32 s{sTo}, s{sR1}, {2*54*1024}")
        a(f"s_lshl_b32 s{sT}, s{sC1}, 12")
        a(f"s_add_u32 s{sTo}, s{sTo}, s{sT}")
        a(f"s_add_u32 s{sTo}, s{sTo}, {OFF_H1}")
        flag_addr(sFw, 2, sR1, sC1)
        a(f"s_waitcnt vmcnt({n})")
        a(f"v_pk_add_f32 v[{vSt}:{vSt+1}], v[{vSt}:{vSt+1}], v[{vSt+2}:{vSt+3}]")
        a(f"v_add_f32 v{vSt}, v{vSt}, v{vSt+1}")
        a(f"v_mov_b32 v{vSt+1}, v{vSt}")
        a("s_nop 1")
        a(f"v_permlane32_swap_b32 v{vSt}, v{vSt+1}")
        a(f"v_add_f32 v{vSt}, v{vSt}, v{vSt+1}")
        a(f"v_mul_f32 v{vSt}, {f2u(-1.0/D):#x}, v{vSt}")
        for r in range(0, 64, 2):
            a(f"v_pk_mul_f32 v[{ACC+r}:{ACC+r+1}], v[{ACC+r}:{ACC+r+1}], v[{vSt}:{vSt+1}] op_sel_hi:[1,0]")
        a("s_nop 0")
    acc1 = gemm(True, 5, 40, ACC, init_f1)
    a("s_nop 6")
    def h1_store(sc):
        Lsk = a.newlabel("sk")
        for f in range(4):
            pk = X[0] + 8*f
            if f == 2:
                a(f"s_cmp_eq_u32 s{sC1}, 13")
                a(f"s_cbranch_scc1 {Lsk}")
            for p in range(2):
                for k in range(4*p, 4*p+4):
                    a(f"v_cvt_pk_bf16_f32 v{pk+k}, v{acc1[f]+2*k}, v{acc1[f]+2*k+1}")
                for k in range(4*p, 4*p+4):
                    a(f"v_pk_max_i16 v{pk+k}, v{pk+k}, 0")
                a(f"buffer_store_dwordx4 v[{pk+4*p}:{pk+4*p+3}], v{vB0}, {ws}, s{sTo} offen offset:{1024*f+512*p} {sc or DSC}")
        a.label(Lsk)
        put_flag(sc)
    dual(h1_store)
    prof_mark(a, 7, "g5")
    a.label(Lf2)
    def idle():
        a.label(Lidle)
        for _ in range(8):
            a("s_barrier")
        a(f"s_branch {Lf2}")
    ool.append(idle)
    prof_mark(a, 6)

    for f in range(5):
        wread(False, 13, 0, 0, f)
    flag_addr(sFr, 2, sT32)
    a(f"s_mul_i32 s{sXo}, s{sRt}, {54*1024}")
    a(f"s_add_u32 s{sXo}, s{sXo}, {OFF_H1}")
    a(f"v_and_b32 v{vT[0]}, 15, v{vL}")
    a(f"v_lshlrev_b32 v{vT[2]}, 3, v{vT[0]}")
    a(f"v_lshrrev_b32 v{vT[0]}, 4, v{vL}")
    a(f"v_lshl_add_u32 v{vT[2]}, v{vT[0]}, 15, v{vT[2]}")
    a(f"s_lshl_b32 s{sT3}, s{sRt}, 7")
    a(f"s_add_u32 s{sT3}, s{sT3}, {OFF_ST}")
    a(f"s_add_u32 s{sTo}, s{sT3}, 16384")
    srd(a, SIN, sPtr+8, sPtr+9, S*D*2)
    wait_flags(14)
    prof_mark(a, 7)
    a(f"buffer_load_dwordx2 v[{vSt}:{vSt+1}], v{vT[2]}, {ws}, s{sT3} offen sc1")
    a(f"buffer_load_dwordx2 v[{vSt+4}:{vSt+5}], v{vT[2]}, {ws}, s{sTo} offen sc1")
    def init_f2(n):
        q = vSt
        a(f"s_waitcnt vmcnt({n})")
        a(f"v_pk_add_f32 v[{q}:{q+1}], v[{q}:{q+1}], v[{q+4}:{q+5}]")
        lane_reduce(q, ("v_permlane32_swap_b32", "v_permlane16_swap_b32"))
        a(f"v_mul_f32 v{q}, {f2u(1.0/D):#x}, v{q}")
        a(f"v_mul_f32 v{q+1}, {f2u(1.0/D):#x}, v{q+1}")
        a(f"v_fma_f32 v{q+1}, -v{q}, v{q}, v{q+1}")
        a(f"v_max_f32 v{q+1}, 0, v{q+1}")
        a(f"v_add_f32 v{q+1}, {f2u(EPS):#x}, v{q+1}")
        a(f"v_rsq_f32 v{q}, v{q+1}")
    acc2 = gemm(False, 13, 54, ACC, init_f2, zero=True)
    a("s_nop 3")
    for f in range(5):
        for k in range(2):
            r = acc2[f] + 2*k
            h = HACC + 4*f + 2*k
            a(f"v_pk_fma_f32 v[{r}:{r+1}], v[{r}:{r+1}], v[{vSt}:{vSt+1}], v[{h}:{h+1}] op_sel_hi:[1,0,1]")
        for k in range(2):
            a(f"v_cvt_pk_bf16_f32 v{vRes+2*f+k}, v{acc2[f]+2*k}, v{acc2[f]+2*k+1}")
        a(f"buffer_store_dwordx2 v[{vRes+2*f}:{vRes+2*f+1}], v{vNat}, s[{SIN}:{SIN+3}], s{sNat} offen offset:{32*f}")
    prof_end(a, 1)
    a.label(END)
    a("s_endpgm")

    a.label(Lprod)
    vW = vT[0]
    sPo = sWoff
    a(f"s_sub_u32 s{sT}, s{sW_}, 4")
    a(f"s_mul_i32 s{sPo}, s{sT}, 5120")
    a(f"v_add_u32 v{vW}, s{sPo}, v{vL16}")
    a(f"s_mul_i32 s{sTb}, s{sT}, 2560")
    a(f"v_add_u32 v{vT[1]}, s{sTb}, v{vL16}")
    def chunk(src, dst):
        a(f"s_add_u32 m0, s{dst}, s{sPo}")
        a(f"s_add_u32 s{sT}, s{src}, 4096")
        for k in range(4):
            a(f"buffer_load_dwordx4 v{vW}, {ws}, s{src} offen offset:{1024*k} sc1 lds")
        a(f"s_add_u32 m0, m0, 4096")
        a(f"s_add_u32 s{src}, s{src}, {SLOT}")
        a(f"buffer_load_dwordx4 v{vW}, {ws}, s{sT} offen sc1 lds")
        a(f"s_add_u32 s{dst}, s{dst}, {SLOT}")
        a(f"s_cmp_ge_u32 s{dst}, {8*SLOT}")
        a(f"s_cselect_b32 s{dst}, 0, s{dst}")
    a(f"s_mov_b32 s{sDstW}, {7*SLOT}")
    chunk(sSrcW, sDstW)
    w1_src(sSrcW)
    a(f"s_add_u32 s{sSrcW}, s{sSrcW}, {SLOT}")
    a(f"s_mov_b32 s{sDstW}, {SLOT}")
    a(f"s_mov_b32 s{sNW}, -2")
    L1, L1b, L2 = a.newlabel("pl"), a.newlabel("pl"), a.newlabel("pl")
    a(f"s_branch {L1b}")
    a.label(L1)
    a(f"s_cmp_lt_i32 s{sNW}, 0")
    a(f"s_cbranch_scc1 {L1b}")
    a("s_waitcnt vmcnt(25)")
    a("s_barrier")
    a.label(L1b)
    chunk(sSrcW, sDstW)
    a(f"s_add_i32 s{sNW}, s{sNW}, 1")
    a(f"s_cmp_lt_i32 s{sNW}, 5")
    a(f"s_cbranch_scc1 {L1}")
    a(f"s_mul_i32 s{sSrcW}, s{sCt}, {54*5120}")
    a(f"s_add_u32 s{sSrcW}, s{sSrcW}, {OFF_W2}")
    a.label(L2)
    a("s_waitcnt vmcnt(30)")
    a("s_barrier")
    chunk(sSrcW, sDstW)
    a(f"s_add_i32 s{sNW}, s{sNW}, 1")
    a(f"s_cmp_lt_i32 s{sNW}, 18")
    a(f"s_cbranch_scc1 {L2}")
    a("s_waitcnt vmcnt(30)")
    a("s_barrier")
    a(f"s_add_u32 m0, s{sDstW}, s{sTb}")
    a("s_nop 0")
    for k in range(3):
        if k == 2: a("s_mov_b32 exec_hi, 0")
        a(f"buffer_load_dwordx4 v{vT[1]}, {ws}, s{sSrcW} offen offset:{1024*k} sc1 lds")
    for vm in (28, 23, 18, 13, 8, 3, 0):
        a(f"s_waitcnt vmcnt({vm})")
        a("s_barrier")
    prof_end(a, 1)
    a("s_endpgm")

    a.label(LhB)
    Lb2 = a.newlabel("hb")
    a(f"s_cmp_eq_u32 s{sTrip}, 3")
    a(f"s_cbranch_scc0 {Lb2}")
    a(f"s_mov_b32 s{sT}, {OFF_PF}")
    a(f"buffer_load_dwordx4 v[{PF}:{PF+3}], v{vL16}, {ws}, s{sT} offen sc1")
    a(f"s_cmp_ge_u32 s{sW_}, 4")
    a(f"s_cbranch_scc1 {LhBr}")
    for f in range(5):
        a(f"buffer_load_dwordx2 v[{vRes+2*f}:{vRes+2*f+1}], v{vNat}, s[{SIN}:{SIN+3}], s{sNat} offen offset:{32*f} {os.environ.get('RSC','sc1')}")
    a(f"s_branch {LhBr}")
    a.label(Lb2)
    a(f"s_mov_b32 m0, s{sDstW}")
    a(f"s_add_u32 s{sDstW}, s{sDstW}, {SLOT}")
    for k in range(3):
        dma_piece(k, sSrcW, "sc1")
    a(f"s_add_u32 s{sSrcW}, s{sSrcW}, {SLOT}")
    Lg5 = a.newlabel("hb")
    a(f"s_lshl_b32 s{sT}, s{sM}, 3")
    a(f"s_add_u32 s{sT}, s{sT}, s{sW_}")
    a(f"s_cmp_eq_u32 s{sTrip}, 4")
    a(f"s_cbranch_scc0 {Lg5}")
    if PRETOUCH:
        a(f"s_cmp_eq_u32 s{sFast}, 0")
        a(f"s_cbranch_scc1 {LhBr}")
        a(f"s_mul_i32 s{sT2}, s{sB}, {16*20480}")
        a(f"s_mul_i32 s{sT3}, s{sT}, {10*128}")
        a(f"s_add_u32 s{sGp}, s{sT2}, s{sT3}")
        a(f"s_add_u32 s{sGp}, s{sGp}, {OFF_O}")
        a(f"v_min_u32 v{vGp}, 46, v{vL}")
        a(f"v_lshlrev_b32 v{vGp}, 7, v{vGp}")
        a(f"v_add_u32 v{vT[0]}, {OFF_H - OFF_O - 10*128}, v{vGp}")
        a(f"v_cmp_lt_u32 vcc, 9, v{vL}")
        a(f"s_mul_i32 s{sT2}, s{sB}, {16*55296 - 16*20480}")
        a(f"s_mul_i32 s{sT3}, s{sT}, {17*128}")
        a(f"s_add_u32 s{sT2}, s{sT2}, s{sT3}")
        a(f"s_add_u32 s{sT2}, s{sT2}, {OFF_H1 - OFF_O - 20*128}")
        a(f"v_add_u32 v{vT[1]}, s{sT2}, v{vGp}")
        a(f"v_cndmask_b32 v{vGp}, v{vGp}, v{vT[0]}, vcc")
        a(f"v_cmp_lt_u32 vcc, 19, v{vL}")
        a("s_nop 1")
        a(f"v_cndmask_b32 v{vGp}, v{vGp}, v{vT[1]}, vcc")
    a(f"s_branch {LhBr}")
    a.label(Lg5)
    if PF1:
        a(f"s_sub_u32 s{sT2}, s{sTrip}, 5")
        a(f"s_lshl_b32 s{sT2}, s{sT2}, 8")
        a(f"s_add_u32 s{sT}, s{sT}, s{sT2}")
        a(f"s_mul_i32 s{sT}, s{sT}, {PF1*128}")
        a(f"s_add_u32 s{sGp}, s{sT}, {OFF_W1}")
        a(f"v_min_u32 v{vGp}, {PF1-1}, v{vL}")
        a(f"v_lshlrev_b32 v{vGp}, 7, v{vGp}")
    else:
        a(f"v_mov_b32 v{vGp}, 0")
    a(f"s_branch {LhBr}")
    a.label(LhA)
    La1, La3, La6, LaB, Lq, Lq2 = [a.newlabel("ha") for _ in range(6)]
    a(f"s_cmp_eq_u32 s{sTrip}, 1")
    a(f"s_cbranch_scc1 {La1}")
    a(f"s_cmp_eq_u32 s{sTrip}, 3")
    a(f"s_cbranch_scc1 {La3}")
    a(f"s_cmp_eq_u32 s{sTrip}, 6")
    a(f"s_cbranch_scc1 {La6}")
    a(f"s_cmp_ge_u32 s{sTask}, 1280")
    a(f"s_cbranch_scc1 {LhAr}")
    a(f"s_cmp_ge_u32 s{sTask}, 740")
    a(f"s_cbranch_scc1 {LaB}")
    for q in range(4):
        a(f"ds_read_b64_tr_b16 v[{PF+4*q}:{PF+4*q+1}], v{vPa} offset:{32*q}")
        a(f"ds_read_b64_tr_b16 v[{PF+4*q+2}:{PF+4*q+3}], v{vPb} offset:{32*q}")
    for q in range(4):
        a(f"s_lshl_b32 s{sT}, s{sTb}, 2")
        a(f"s_add_u32 s{sT}, s{sT}, {q}")
        a(f"s_mul_i32 s{sT2}, s{sT}, 13108")
        a(f"s_lshr_b32 s{sT2}, s{sT2}, 16")
        a(f"s_mul_i32 s{sT3}, s{sT2}, 5")
        a(f"s_sub_u32 s{sT}, s{sT}, s{sT3}")
        a(f"s_lshl_b32 s{sT}, s{sT}, 10")
        a(f"s_mul_i32 s{sT2}, s{sT2}, s{sPs}")
        a(f"s_add_u32 s{sT}, s{sT}, s{sT2}")
        a(f"s_add_u32 s{sT}, s{sT}, s{sPd}")
        a(f"s_waitcnt lgkmcnt({6-2*q})")
        a(f"buffer_store_dwordx4 v[{PF+4*q}:{PF+4*q+3}], v{vL16}, {ws}, s{sT} offen sc1")
    a(f"s_branch {LhAr}")
    a.label(LaB)
    for q in range(4):
        o = (q >> 1)*2048 + (q & 1)*64
        a(f"ds_read_b64_tr_b16 v[{PF+4*q}:{PF+4*q+1}], v{vPa} offset:{o}")
        a(f"ds_read_b64_tr_b16 v[{PF+4*q+2}:{PF+4*q+3}], v{vPa} offset:{o+512}")
    for r in range(4):
        a(f"v_mov_b32 v{pOne+r}, 0x3f803f80")
    a(f"s_add_u32 s{sT}, s{sPd}, 4096")
    a("s_waitcnt lgkmcnt(0)")
    for q in range(4):
        d = PC + 16*(q & 1)
        c = "0" if q < 2 else f"v[{d}:{d+15}]"
        a(f"v_mfma_f32_32x32x16_bf16 v[{d}:{d+15}], v[{pOne}:{pOne+3}], v[{PF+4*q}:{PF+4*q+3}], {c}")
        a(f"buffer_store_dwordx4 v[{PF+4*q}:{PF+4*q+3}], v{vL16}, {ws}, s{sPd if q < 2 else sT} offen offset:{1024*(q & 1)} sc1")
    a(f"s_lshl_b32 s{sT}, s{sTb}, 8")
    a(f"s_add_u32 s{sT}, s{sT}, {OFF_CS}")
    a("s_nop 7")
    a("s_nop 2")
    a("s_mov_b32 exec_lo, 0")
    a(f"v_mov_b32 v{PC}, v{PC+16}")
    a("s_mov_b32 exec_lo, -1")
    a(f"buffer_atomic_add_f32 v{PC}, v{vL4}, {ws}, s{sT} offen")
    a(f"s_branch {LhAr}")
    a.label(La1)
    a(f"s_cmp_lg_u32 s{sW_}, 0")
    a(f"s_cbranch_scc1 {LhAr}")
    a(f"s_lshl_b32 s{sT}, s{sB}, 5")
    a(f"s_add_u32 s{sT}, s{sT}, s{sM}")
    a(f"s_lshl_b32 s{sT}, s{sT}, 2")
    a(f"s_add_u32 s{sT}, s{sT}, {OFF_PF}")
    a(f"s_getreg_b32 s{sT2}, hwreg(HW_REG_XCC_ID, 0, 4)")
    a(f"s_add_u32 s{sT2}, s{sT2}, 1")
    a(f"v_mov_b32 v{vT[5]}, s{sT2}")
    a("s_mov_b64 exec, 1")
    a(f"buffer_store_dword v{vT[5]}, v{vZero}, {ws}, s{sT} offen sc1")
    a("s_mov_b64 exec, -1")
    a(f"s_branch {LhAr}")
    a.label(La3)
    a(f"s_mov_b32 s{sT2}, 0")
    a(f"s_mov_b32 s{sT}, {OFF_PF}")
    a.label(Lq)
    a(f"v_min3_u32 v{vT[0]}, v{PF}, v{PF+1}, v{PF+2}")
    a(f"v_min_u32 v{vT[0]}, v{vT[0]}, v{PF+3}")
    a(f"v_cmp_eq_u32 vcc, 0, v{vT[0]}")
    a(f"s_cbranch_vccz {Lq2}")
    a(f"buffer_load_dwordx4 v[{PF}:{PF+3}], v{vL16}, {ws}, s{sT} offen sc1")
    a(f"s_add_u32 s{sT2}, s{sT2}, 1")
    a(f"s_cmp_gt_u32 s{sT2}, {TIMEOUT}")
    a("s_waitcnt vmcnt(0)")
    a(f"s_cbranch_scc0 {Lq}")
    a.label(Lq2)
    a(f"v_max3_u32 v{vT[1]}, v{PF}, v{PF+1}, v{PF+2}")
    a(f"v_max_u32 v{vT[1]}, v{vT[1]}, v{PF+3}")
    a(f"s_getreg_b32 s{sT2}, hwreg(HW_REG_XCC_ID, 0, 4)")
    a(f"s_add_u32 s{sT2}, s{sT2}, 1")
    a(f"v_cmp_ne_u32 vcc, s{sT2}, v{vT[0]}")
    a(f"v_cmp_ne_u32 s[{sCmp}:{sCmp+1}], s{sT2}, v{vT[1]}")
    a(f"s_lshl_b32 s{sT}, s{sB}, 3")
    a("s_nop 1")
    a(f"s_or_b64 s[{sCmp}:{sCmp+1}], s[{sCmp}:{sCmp+1}], vcc")
    a(f"s_lshr_b64 s[{sCmp}:{sCmp+1}], s[{sCmp}:{sCmp+1}], s{sT}")
    a(f"s_and_b32 s{sT}, s{sCmp}, 0xff")
    a(f"s_cselect_b32 s{sFast}, 0, {0 if FORCE_SLOW else 1}")
    a(f"s_branch {LhAr}")
    a.label(La6)
    w1_src(sSrcA)
    a(f"s_branch {LhAr}")
    for f in ool:
        f()

    a.label(Lslow)
    vM, vMn, vAl = vT[0], vT[1], vT[4]
    a(f"s_mov_b32 s{sRedo}, 1")
    a(f"s_mul_i32 s{sT}, s{sKh}, 1280")
    a(f"v_subrev_u32 v{vK1a}, s{sT}, v{vK1b}")
    a(f"v_subrev_u32 v{vK2a}, s{sT}, v{vK2b}")
    a(f"v_subrev_u32 v{vVa}, s{sT}, v{vVb}")
    a(f"v_mov_b32 v{vM}, {f2u(-3.0e38):#x}")
    for r in range(16):
        a(f"v_mov_b32 v{O[1]+r}, 0")
    a(f"s_mov_b32 s{sTrip}, 0")
    Ls = a.newlabel("sl")
    a.label(Ls)
    a(f"s_mul_i32 s{sT}, s{sTrip}, 1280")
    a(f"s_lshr_b32 s{sT2}, s{sTrip}, 3")
    a(f"s_mul_i32 s{sT2}, s{sT2}, 10240")
    a(f"s_add_u32 s{sT}, s{sT}, s{sT2}")
    a(f"s_add_u32 s{sT}, s{sT}, s{sKVb}")
    a(f"buffer_load_dwordx4 v[{K1}:{K1+3}], v{vK1a}, {ws}, s{sT} offen")
    a(f"buffer_load_dwordx2 v[{K2}:{K2+1}], v{vK2a}, {ws}, s{sT} offen")
    a(f"s_mov_b64 exec, s[{sVm}:{sVm+1}]")
    a(f"buffer_load_dwordx4 v[{V[0]}:{V[0]+3}], v{vVa}, {ws}, s{sT} offen")
    a(f"buffer_load_dwordx4 v[{V[1]}:{V[1]+3}], v{vVa}, {ws}, s{sT} offen offset:640")
    a(f"s_mov_b64 exec, -1")
    a("s_waitcnt vmcnt(0)")
    a(qk1(1)); a(qk2(1))
    a("s_nop 7"); a("s_nop 4")
    s0 = Sx[1]
    a(f"v_max3_f32 v{vMn}, v{s0}, v{s0+1}, v{vM}")
    for r in range(2, 16, 2):
        a(f"v_max3_f32 v{vMn}, v{s0+r}, v{s0+r+1}, v{vMn}")
    a(f"v_mov_b32 v{vAl}, v{vMn}")
    a("s_nop 1")
    a(f"v_permlane32_swap_b32 v{vMn}, v{vAl}")
    a(f"v_max_f32 v{vMn}, v{vMn}, v{vAl}")
    a(f"v_sub_f32 v{vAl}, v{vM}, v{vMn}")
    a(f"v_exp_f32 v{vAl}, v{vAl}")
    a(f"v_mov_b32 v{vM}, v{vMn}")
    for r in range(16):
        a(f"v_sub_f32 v{s0+r}, v{s0+r}, v{vMn}")
        a(f"v_mul_f32 v{O[1]+r}, v{O[1]+r}, v{vAl}")
    for g in range(4):
        vgroup(1, g)
    a("s_nop 1")
    a(pv(1, 0)); a(pv(1, 1))
    a(f"s_add_u32 s{sTrip}, s{sTrip}, 1")
    a(f"s_cmp_lt_u32 s{sTrip}, 64")
    a("s_nop 7"); a("s_nop 3")
    a(f"s_cbranch_scc1 {Ls}")
    a(f"s_branch {Lfin}")
    return max(R.hi, G.hi), 8*SLOT

assert all((t*6554) >> 16 == t//10 for t in range(600))
assert all((t*2428) >> 16 == t//27 for t in range(560))
```

```python
import sys, os
import asmlib
asmlib.PROF = bool(os.environ.get('PROF'))
from asmlib import *
from layout import *
from k1c import gen_k1
from k2 import gen_k2
from kg import gen_gemm
from mega3 import gen_mega

HEAD = open("sequential_preLN__mha_block__dense_activation_relu__prompt.s.ref").read().split("; Override launch")[0]

def build(extra_empty=0, diag=None):
    a = Asm()
    ks = []
    v, l = gen_k1(a, "qkv_kernel");        ks.append(("qkv_kernel", 240, 768, v, l))
    v, l = gen_mega(a, "mega_kernel");     ks.append(("mega_kernel", 256, 512, v, l))
    launches = list(ks)
    if extra_empty:
        kernel_header(a, "nop_kernel"); a("s_endpgm")
        ks.append(("nop_kernel", 256, 256, 8, 0))
        launches = launches + [ks[-1]]*extra_empty
    if diag is not None:
        kidx, which = diag
        kernel_header(a, "diag_kernel")
        a("s_cmp_ge_u32 s2, 1")
        a("s_cbranch_scc1 diag_end")
        a("s_load_dwordx2 s[4:5], s[0:1], 64")
        a("s_waitcnt lgkmcnt(0)")
        a(f"s_add_u32 s4, s4, {asmlib.PROF_OFF + kidx*256*16*64 + 4*which}")
        a("s_addc_u32 s5, s5, 0")
        a("s_load_dword s6, s[4:5], 0")
        a("s_waitcnt lgkmcnt(0)")
        a("s_mov_b32 s10, 0")
        a.label("diag_loop")
        a("s_memrealtime s[8:9]")
        a("s_waitcnt lgkmcnt(0)")
        a("s_add_u32 s10, s10, 1")
        a("s_cmp_gt_u32 s10, 100000")
        a("s_cbranch_scc1 diag_end")
        a("s_sub_u32 s8, s8, s6")
        a("s_cmp_lt_u32 s8, 10000")
        a("s_cbranch_scc1 diag_loop")
        a.label("diag_end")
        a("s_endpgm")
        ks.append(("diag_kernel", 1, 64, 8, 0))
        launches = launches + [ks[-1]]
    out = HEAD
    for n, g, b, v, l in launches:
        out += f"; @launch kernel={n} grid=({g},1,1) block=({b},1,1) lds={l}\n"
    out += '.amdgcn_target "amdgcn-amd-amdhsa--gfx950"\n'
    out += a.text()
    for n, g, b, v, l in ks:
        out += kernel_desc(n, v)
    return out

if __name__ == "__main__":
    path = sys.argv[1] if len(sys.argv) > 1 else "sequential_preLN__mha_block__dense_activation_relu__prompt.s"
    extra = int(sys.argv[2]) if len(sys.argv) > 2 else 0
    diag = tuple(int(x) for x in sys.argv[3].split(',')) if len(sys.argv) > 3 else None
    open(path, "w").write(build(extra, diag))
    print("wrote", path)
```

```python
from asmlib import *
import asmlib, os
from layout import *

ROT = int(os.environ.get('K1ROT', '1'))
K1PF = int(os.environ.get('K1PF', '0'))
K1SC = os.environ.get('K1SC', 'sc1')
K1NOMF = int(os.environ.get('K1NOMF', '0'))
K1NODMA = int(os.environ.get('K1NODMA', '0'))
K1NOST = int(os.environ.get('K1NOST', '0'))
K1SPLIT = int(os.environ.get('K1SPLIT', '5'))

def gen_k1(a, name):
    kernel_header(a, name)
    END = f"{name}_end"
    sW_, sI, sJ, sC, sXo, sWo, sSt, sT, sCnt, sMask = 20, 21, 22, 23, 24, 25, 26, 27, 28, 29
    sWf, sWt, sXb, sWb, sSc, sT2, sHS, sT3, sPo, sOc = 30, 31, 36, 37, 38, 39, 40, 41, 42, 43
    SX, SWq, SO, SP = 12, 16, 32, 44
    sOff = list(range(48, 56))
    XB = 131072
    a(f"s_cmp_ge_u32 s2, 240")
    a(f"s_cbranch_scc1 {END}")
    prof_start(a)
    a("s_load_dwordx4 s[4:7], s[0:1], 0")
    a("s_load_dwordx2 s[8:9], s[0:1], 64")
    R = Regs(1)
    vL = R.alloc()
    vT = [R.alloc() for _ in range(8)]
    vXa = [R.alloc() for _ in range(4)]
    vWa = [R.alloc() for _ in range(4)]
    vJ, vPf, vS16, vS8, vH = [R.alloc() for _ in range(5)]
    vSel = R.alloc(4, 4)
    vCs = R.alloc(4, 4)
    B = [[R.alloc(4, 4) for _ in range(4)] for _ in range(2)]
    acc = [[R.alloc(16, 4) for _ in range(2)] for _ in range(2)]
    E = R.alloc(32, 4)
    a(f"v_lshrrev_b32 v{vT[0]}, 6, v0")
    a(f"v_and_b32 v{vL}, 63, v0")
    a(f"v_readfirstlane_b32 s{sW_}, v{vT[0]}")
    a(f"s_and_b32 s{sT}, s2, 1")
    a(f"s_mul_i32 s{sT}, s{sT}, 30")
    a(f"s_lshr_b32 s{sC}, s2, 3")
    a(f"s_add_u32 s{sT}, s{sT}, s{sC}")
    a(f"s_lshr_b32 s{sJ}, s{sT}, 2")
    a(f"s_and_b32 s{sT}, s{sT}, 3")
    a(f"s_bfe_u32 s{sI}, s2, 0x20001")
    a(f"s_lshl_b32 s{sI}, s{sI}, 2")
    a(f"s_add_u32 s{sI}, s{sI}, s{sT}")
    Lprod, Lstat = a.newlabel("k1prod"), a.newlabel("k1stat")
    a(f"s_cmp_ge_u32 s{sW_}, 8")
    a(f"s_cbranch_scc1 {Lprod}")

    a(f"s_lshl_b32 s{sT}, s{sC}, 3")
    a(f"s_add_u32 s{sT}, s{sT}, s{sW_}")
    a(f"s_mul_i32 s{sC}, s{sT}, 2731")
    a(f"s_lshr_b32 s{sC}, s{sC}, 16")
    a(f"s_mul_i32 s{sT2}, s{sC}, 24")
    a(f"s_sub_u32 s{sT}, s{sT}, s{sT2}")
    a(f"s_and_b32 s{sT2}, s{sI}, 12")
    a(f"s_lshl_b32 s{sT2}, s{sT2}, 1")
    a(f"s_add_u32 s{sT2}, s{sT2}, s{sT}")
    a(f"s_mul_i32 s{sXo}, s{sT2}, {64*1280}")
    a(f"s_lshl_b32 s{sT2}, s{sC}, 7")
    a(f"s_add_u32 s{sXo}, s{sXo}, s{sT2}")
    a(f"s_lshl_b32 s{sT2}, s{sC}, 4")
    a(f"s_add_u32 s{sT2}, s{sT2}, s{sT}")
    a(f"s_sub_u32 s{sT2}, s{sT2}, 8")
    a(f"s_mul_i32 s{sWo}, s{sT2}, {4*3840}")
    a(f"s_and_b32 s{sT2}, s2, 1")
    a(f"s_mul_i32 s{sT2}, s{sT2}, {7*256}")
    a(f"s_add_u32 s{sWo}, s{sWo}, s{sT2}")
    a(f"v_mul_u32_u24 v{vT[0]}, 1280, v{vL}")
    a(f"v_lshrrev_b32 v{vT[1]}, 4, v{vL}")
    a(f"v_mul_u32_u24 v{vT[3]}, 3840, v{vT[1]}")
    a(f"v_and_b32 v{vT[2]}, 15, v{vL}")
    a(f"v_lshl_add_u32 v{vT[3]}, v{vT[2]}, 7, v{vT[3]}")
    a(f"s_cmp_lt_u32 s{sT}, 8")
    a(f"s_cselect_b64 vcc, -1, 0")
    a(f"s_cselect_b32 s{sPo}, s{sXo}, s{sWo}")
    a(f"v_cndmask_b32 v{vPf}, v{vT[3]}, v{vT[0]}, vcc")
    a("s_waitcnt lgkmcnt(0)")
    a(f"s_cselect_b32 s{SP}, s4, s6")
    a(f"s_cselect_b32 s{SP+1}, s5, s7")
    a(f"s_mov_b32 s{SP+2}, {D*3*D*2}")
    a(f"s_cselect_b32 s{SP+2}, {S*D*2}, s{SP+2}")
    a(f"s_mov_b32 s{SP+3}, 0x20000")
    def warm(late):
        if K1PF == 0 or (K1PF == 1 and late): return
        L = a.newlabel("k1w")
        if K1PF == 2:
            a(f"s_cmp_lt_u32 s{sC}, {K1SPLIT}")
            a(f"s_cbranch_scc{1 if late else 0} {L}")
        a(f"buffer_load_dword v{vJ}, v{vPf}, s[{SP}:{SP+3}], s{sPo} offen sc1")
        a.label(L)
    warm(False)
    srd(a, SO, 8, 9, WS_END)
    Lz = a.newlabel("k1z")
    a(f"s_cmp_ge_u32 s2, {SZ_Z//8192}")
    a(f"s_cbranch_scc1 {Lz}")
    for r in range(4):
        a(f"v_mov_b32 v{E+r}, 0")
    a(f"v_lshlrev_b32 v{vT[0]}, 4, v0")
    a(f"s_lshl_b32 s{sT}, s2, 13")
    a(f"s_add_u32 s{sT}, s{sT}, {OFF_Z}")
    a(f"buffer_store_dwordx4 v[{E}:{E+3}], v{vT[0]}, s[{SO}:{SO+3}], s{sT} offen sc1")
    a.label(Lz)
    a(f"s_and_b32 s{sWf}, s{sW_}, 1")
    a(f"s_bfe_u32 s{sWt}, s{sW_}, 0x10001")
    a(f"s_lshl_b32 s{sT}, s{sWt}, 13")
    a(f"s_and_b32 s{sT2}, s{sW_}, 3")
    a(f"s_lshl_b32 s{sT2}, s{sT2}, 12")
    a(f"s_cmp_ge_u32 s{sW_}, 4")
    a(f"s_cselect_b32 s{sT}, s{sT2}, s{sT}")
    a(f"v_and_b32 v{vT[0]}, 31, v{vL}")
    a(f"v_lshlrev_b32 v{vS16}, 4, v{vT[0]}")
    a(f"v_lshlrev_b32 v{vS8}, 3, v{vT[0]}")
    a(f"v_lshrrev_b32 v{vH}, 5, v{vL}")
    a(f"v_bfe_u32 v{vT[2]}, v{vL}, 1, 3")
    a(f"v_xor_b32 v{vT[2]}, v{vT[2]}, v{vH}")
    a(f"v_lshl_add_u32 v{vT[0]}, v{vT[0]}, 7, s{sT}")
    for sp in range(4):
        a(f"v_xor_b32 v{vT[3]}, {2*sp}, v{vT[2]}")
        a(f"v_lshl_add_u32 v{vXa[sp]}, v{vT[3]}, 4, v{vT[0]}")
    a(f"s_mov_b32 s{sCnt}, 0")
    a(f"s_cbranch_scc1 {Lstat}")

    a("s_setprio 2")
    a(f"s_lshl_b32 s{sOc}, s{sWf}, 1")
    a(f"s_add_u32 s{sOc}, s{sOc}, s{sWt}")
    a(f"v_bfe_u32 v{vT[3]}, v{vL}, 2, 2")
    a(f"v_lshl_add_u32 v{vT[4]}, v{vH}, 3, v{vT[3]}")
    a(f"v_lshlrev_b32 v{vT[4]}, 8, v{vT[4]}")
    a(f"v_xor_b32 v{vT[3]}, s{sOc}, v{vT[3]}")
    a(f"v_lshl_add_u32 v{vT[4]}, v{vT[3]}, 6, v{vT[4]}")
    a(f"v_and_b32 v{vT[3]}, 1, v{vT[1]}")
    a(f"v_lshl_add_u32 v{vT[4]}, v{vT[3]}, 5, v{vT[4]}")
    a(f"v_and_b32 v{vT[5]}, 3, v{vL}")
    a(f"v_lshl_add_u32 v{vT[4]}, v{vT[5]}, 3, v{vT[4]}")
    a(f"v_add_u32 v{vWa[0]}, 16384, v{vT[4]}")
    a(f"v_xor_b32 v{vWa[1]}, 64, v{vWa[0]}")
    a(f"v_xor_b32 v{vT[3]}, v{vT[3]}, v{vL}")
    a(f"v_and_b32 v{vT[3]}, 1, v{vT[3]}")
    a(f"v_sub_u32 v{vT[3]}, v{vT[3]}, 1" .replace(f"v_sub_u32 v{vT[3]}, v{vT[3]}, 1", f"v_add_u32 v{vT[3]}, -1, v{vT[3]}"))
    for r in range(4):
        a(f"v_and_b32 v{vSel+r}, 0x3f803f80, v{vT[3]}")
        a(f"v_mov_b32 v{vCs+r}, 0")
    for f in range(2):
        for t in range(2):
            for r in range(16):
                a(f"v_mov_b32 v{acc[f][t]+r}, 0")

    def rd(sp, b, off):
        w0, w1, x0, x1 = B[b]
        o = off + sp*4096
        return [[f"ds_read_b64_tr_b16 v[{w0}:{w0+1}], v{vWa[0]} offset:{o}", f"ds_read_b64_tr_b16 v[{w0+2}:{w0+3}], v{vWa[0]} offset:{o+1024}"],
                [f"ds_read_b128 v[{x0}:{x0+3}], v{vXa[sp]} offset:{off}"],
                [f"ds_read_b128 v[{x1}:{x1+3}], v{vXa[sp]} offset:{off+4096}"],
                [f"ds_read_b64_tr_b16 v[{w1}:{w1+1}], v{vWa[1]} offset:{o}", f"ds_read_b64_tr_b16 v[{w1+2}:{w1+3}], v{vWa[1]} offset:{o+1024}"]]
    def mf(d, w, x, vtype):
        p, q = (w, x) if not vtype else (x, w)
        return f"v_mfma_f32_32x32x16_bf16 v[{d}:{d+15}], v[{p}:{p+3}], v[{q}:{q+3}], v[{d}:{d+15}]"
    def flip(regs):
        for r in regs:
            a(f"v_xor_b32 v{r}, 0x10000, v{r}")
    def mainloop(vtype, addr):
        addr()
        prof_mark(a, 0)
        a("s_barrier")
        prof_mark(a, 1)
        a("s_waitcnt lgkmcnt(0)") if asmlib.PROF else None
        for g in rd(0, 0, 0):
            for x in g: a(x)
        warm(True)
        Lm = a.newlabel("k1m")
        a.label(Lm)
        for half in range(2):
            off = half*32768
            for sp in range(4):
                b = sp & 1
                w0, w1, x0, x1 = B[b]
                r = rd(0, b ^ 1, 32768 - off) if sp == 3 else rd(sp+1, b ^ 1, off)
                ms = [mf(acc[0][0], w0, x0, vtype), mf(acc[0][1], w0, x1, vtype), mf(acc[1][0], w1, x0, vtype), mf(acc[1][1], w1, x1, vtype),
                      f"v_mfma_f32_16x16x32_bf16 v[{vCs}:{vCs+3}], v[{w0}:{w0+3}], v[{vSel}:{vSel+3}], v[{vCs}:{vCs+3}]"]
                waits = [3, 4, 3, None, None]
                for k, m in enumerate(ms):
                    if waits[k] is not None:
                        a(f"s_waitcnt lgkmcnt({waits[k]})")
                    if not K1NOMF: a(m)
                    if sp == 3 and k == 0:
                        a("s_barrier")
                    if sp == 2 and half == 1 and k == 4:
                        flip(vXa + vWa[:2])
                    if k < 4:
                        for x in r[k]: a(x)
        if asmlib.PROF and os.environ.get('K1PAIR'):
            for i in range(3, 7):
                a(f"s_mov_b32 s{60+2*i}, s{62+2*i}")
            a("s_memtime s[74:75]")
            a("s_waitcnt lgkmcnt(0)")
        a(f"s_add_u32 s{sCnt}, s{sCnt}, 1")
        a(f"s_cmp_lt_u32 s{sCnt}, 5")
        a(f"s_cbranch_scc1 {Lm}")
        prof_mark(a, 2)
        a(f"s_lshl_b32 s{sT}, s{sOc}, 7")
        a(f"s_add_u32 s{sT}, s{sT}, {XB+1024}")
        a(f"v_and_b32 v{vT[0]}, 1, v{vL}")
        a(f"v_lshl_add_u32 v{vT[0]}, v{vT[0]}, 6, s{sT}")
        a(f"v_lshl_add_u32 v{vT[0]}, v{vT[1]}, 4, v{vT[0]}")
        a("s_mov_b32 exec_lo, 0x00030003")
        a("s_mov_b32 exec_hi, 0x00030003")
        a(f"ds_write_b128 v{vT[0]}, v[{vCs}:{vCs+3}]")
        a("s_mov_b64 exec, -1")
        a("s_waitcnt lgkmcnt(0)")
        a("s_barrier")

    LV = a.newlabel("k1v")
    a(f"s_cmp_ge_u32 s{sJ}, 10")
    a(f"s_cbranch_scc1 {LV}")
    vO16 = [vT[4], vT[5], vT[6], vT[7]]
    def qk_addr():
        a(f"s_lshl_b32 s{sT}, s{sI}, 2")
        a(f"s_lshl_b32 s{sT2}, s{sWt}, 1")
        a(f"s_add_u32 s{sT}, s{sT}, s{sT2}")
        a(f"s_mul_i32 s{sXo}, s{sT}, 1280")
        a(f"s_lshr_b32 s{sT}, s{sT}, 3")
        a(f"s_mul_i32 s{sT}, s{sT}, 10240")
        a(f"s_add_u32 s{sT}, s{sT}, {OFF_KV}")
        a(f"s_cmp_lt_u32 s{sJ}, 5")
        a(f"s_cselect_b32 s{sT}, {OFF_Q}, s{sT}")
        a(f"s_mov_b32 s{sHS}, 163840")
        a(f"s_cselect_b32 s{sHS}, 81920, s{sHS}")
        a(f"s_cselect_b32 s{sT2}, 0, 5")
        a(f"s_cselect_b32 s{sSc}, {f2u(QSCALE):#x}, 1.0")
        a(f"s_add_u32 s{sXo}, s{sXo}, s{sT}")
        a(f"s_add_u32 s{sWo}, s{sXo}, s{sHS}")
        a(f"s_sub_u32 s{sT2}, s{sJ}, s{sT2}")
        a(f"s_lshl_b32 s{sSt}, s{sT2}, 4")
        for g in range(8):
            a(f"s_xor_b32 s{sT}, s{sOc}, {g >> 2}")
            a(f"s_lshl_b32 s{sT}, s{sT}, 2")
            a(f"s_add_u32 s{sT}, s{sT}, s{sSt}")
            a(f"s_add_u32 s{sT}, s{sT}, {g & 3}")
            a(f"s_mul_i32 s{sT2}, s{sT}, 13108")
            a(f"s_lshr_b32 s{sT2}, s{sT2}, 16")
            a(f"s_mul_i32 s{sT3}, s{sT2}, 5")
            a(f"s_sub_u32 s{sT}, s{sT}, s{sT3}")
            a(f"s_lshl_b32 s{sT2}, s{sT2}, 1")
            a(f"s_cmp_gt_u32 s{sT}, 2")
            a(f"s_cselect_b32 s{sT3}, 3, 0")
            a(f"s_addc_u32 s{sT2}, s{sT2}, 0")
            a(f"s_sub_u32 s{sT}, s{sT}, s{sT3}")
            a(f"s_mul_i32 s{sT2}, s{sT2}, s{sHS}")
            a(f"s_lshl_b32 s{sT3}, s{sT}, 9")
            a(f"s_add_u32 s{sT2}, s{sT2}, s{sT3}")
            a(f"s_lshr_b32 s{sT}, s{sT}, 1")
            a(f"s_add_u32 s{sOff[g]}, s{sT2}, s{sT}")
        a("s_mov_b32 vcc_lo, 0")
        a("s_mov_b32 vcc_hi, -1")
        for k in range(4):
            a(f"v_mov_b32 v{vT[2]}, s{sOff[2*k]}")
            a(f"v_mov_b32 v{vT[3]}, s{sOff[2*k+1]}")
            a(f"v_cndmask_b32 v{vT[2]}, v{vT[2]}, v{vT[3]}, vcc")
            a(f"v_and_b32 v{vT[2]}, -2, v{vT[2]}")
            a(f"v_add_u32 v{vO16[k]}, v{vT[2]}, v{vS16}")
        a(f"s_lshl_b32 s{sT}, s{sWt}, 8")
        a(f"s_add_u32 s{sT}, s{sT}, {XB}")
        a(f"v_lshrrev_b32 v{vWa[2]}, 1, v{vS8}")
        a(f"v_add_u32 v{vWa[2]}, s{sT}, v{vWa[2]}")
        a(f"s_lshl_b32 s{sT}, s{sOc}, 7")
        a(f"s_add_u32 s{sT}, s{sT}, {XB+1024}")
        a(f"v_lshl_add_u32 v{vWa[3]}, v{vH}, 4, s{sT}")
    mainloop(False, qk_addr)
    q = B[0][0]
    a(f"ds_read2_b32 v[{q}:{q+1}], v{vWa[2]} offset0:0 offset1:128")
    a(f"ds_read2_b32 v[{q+2}:{q+3}], v{vWa[2]} offset0:32 offset1:160")
    a(f"v_xor_b32 v{vT[0]}, 128, v{vWa[3]}")
    for f in range(2):
        for g in range(4):
            a(f"ds_read_b128 v[{E+16*f+4*g}:{E+16*f+4*g+3}], v{vWa[3] if f == 0 else vT[0]} offset:{32*g}")
    a("s_waitcnt lgkmcnt(4)")
    a(f"v_mul_f32 v{q+1}, s{sSc}, v{q+1}")
    a(f"v_mul_f32 v{q+3}, s{sSc}, v{q+3}")
    for f in range(2):
        if f == 1: a("s_waitcnt lgkmcnt(0)")
        for tb in range(2):
            nm = q + 2*tb
            A_ = acc[f][tb]
            for r in range(0, 16, 2):
                a(f"v_pk_fma_f32 v[{A_+r}:{A_+r+1}], v[{E+16*f+r}:{E+16*f+r+1}], v[{nm}:{nm+1}], v[{A_+r}:{A_+r+1}] op_sel_hi:[1,0,1]")
            for r in range(0, 16, 2):
                a(f"v_pk_mul_f32 v[{A_+r}:{A_+r+1}], v[{A_+r}:{A_+r+1}], v[{nm}:{nm+1}] op_sel:[0,1] op_sel_hi:[1,1]")
            for k in range(8):
                a(f"v_cvt_pk_bf16_f32 v{A_+k}, v{A_+2*k}, v{A_+2*k+1}")
            for p in range(2):
                pp = A_ + 4*p
                if p == 1: a("s_nop 0")
                a(f"v_permlane32_swap_b32 v{pp}, v{pp+2}")
                a(f"v_permlane32_swap_b32 v{pp+1}, v{pp+3}")
        for p in range(2):
            k = 2*f + p
            Ln = a.newlabel("k1n")
            a(f"s_bitcmp1_b32 s{sOff[2*k]}, 0")
            a(f"s_cselect_b32 exec_lo, 0, -1")
            a(f"s_bitcmp1_b32 s{sOff[2*k+1]}, 0")
            a(f"s_cselect_b32 exec_hi, 0, -1")
            for tb in range(2):
                pp = acc[f][tb] + 4*p
                a(f"buffer_store_dwordx4 v[{pp}:{pp+3}], v{vO16[k]}, s[{SO}:{SO+3}], s{sXo} offen offset:{1280*tb} {K1SC}")
            a(f"s_not_b64 exec, exec")
            a(f"s_cbranch_execz {Ln}")
            a(f"v_sub_u32 v{vT[2]}, v{vO16[k]}, v{vS8}")
            for tb in range(2):
                pp = acc[f][tb] + 4*p
                a(f"buffer_store_dwordx2 v[{pp}:{pp+1}], v{vT[2]}, s[{SO}:{SO+3}], s{sXo} offen offset:{1280*tb} {K1SC}")
                a(f"buffer_store_dwordx2 v[{pp+2}:{pp+3}], v{vT[2]}, s[{SO}:{SO+3}], s{sWo} offen offset:{1280*tb} {K1SC}")
            a.label(Ln)
        a("s_mov_b64 exec, -1")
    prof_end(a, 0)
    a("s_endpgm")

    a.label(LV)
    def v_addr():
        a(f"s_sub_u32 s{sT2}, s{sJ}, 10")
        a(f"s_lshl_b32 s{sT2}, s{sT2}, 7")
        a(f"v_mul_u32_u24 v{vT[6]}, 320, v{vH}")
        for f in range(2):
            a(f"s_xor_b32 s{sT}, s{sOc}, {f}")
            a(f"s_lshl_b32 s{sT}, s{sT}, 5")
            a(f"s_add_u32 s{sT}, s{sT}, s{sT2}")
            a(f"v_and_b32 v{vT[2]}, 31, v{vL}")
            a(f"v_add_u32 v{vT[2]}, s{sT}, v{vT[2]}")
            a(f"v_mul_u32_u24 v{vT[3]}, 3277, v{vT[2]}")
            a(f"v_lshrrev_b32 v{vT[3]}, 16, v{vT[3]}")
            a(f"v_mul_u32_u24 v{vT[7]}, 20, v{vT[3]}")
            a(f"v_sub_u32 v{vT[2]}, v{vT[2]}, v{vT[7]}")
            a(f"v_mul_u32_u24 v{vT[3]}, 163840, v{vT[3]}")
            a(f"v_lshl_add_u32 v{vT[3]}, v{vT[2]}, 4, v{vT[3]}")
            a(f"v_add_u32 v{vT[4+f]}, v{vT[3]}, v{vT[6]}")
        a(f"s_lshr_b32 s{sT}, s{sI}, 1")
        a(f"s_mul_i32 s{sT}, s{sT}, 20480")
        a(f"s_and_b32 s{sT2}, s{sI}, 1")
        a(f"s_lshl_b32 s{sT2}, s{sT2}, 1")
        a(f"s_add_u32 s{sT2}, s{sT2}, s{sWt}")
        a(f"s_mul_i32 s{sT2}, s{sT2}, 2560")
        a(f"s_add_u32 s{sXo}, s{sT}, s{sT2}")
        a(f"s_add_u32 s{sXo}, s{sXo}, {OFF_KV+10240}")
        a(f"s_lshl_b32 s{sT}, s{sWt}, 8")
        a(f"s_add_u32 s{sT}, s{sT}, {XB}")
        a(f"v_lshl_add_u32 v{vWa[2]}, v{vH}, 4, s{sT}")
        a(f"s_lshl_b32 s{sT}, s{sOc}, 7")
        a(f"s_add_u32 s{sT}, s{sT}, {XB+1024}")
        a(f"v_lshrrev_b32 v{vWa[3]}, 1, v{vS8}")
        a(f"v_add_u32 v{vWa[3]}, s{sT}, v{vWa[3]}")
    mainloop(True, v_addr)
    a(f"v_xor_b32 v{vT[0]}, 128, v{vWa[3]}")
    a(f"ds_read_b32 v{vCs}, v{vWa[3]}")
    a(f"ds_read_b32 v{vCs+1}, v{vT[0]}")
    NMs = [E, B[0][0]]
    for tb in range(2):
        for g in range(4):
            a(f"ds_read_b128 v[{NMs[tb]+4*g}:{NMs[tb]+4*g+3}], v{vWa[2]} offset:{tb*128 + g*32}")
        for g in range(4):
            a(f"ds_read_b128 v[{NMs[tb]+16+4*g}:{NMs[tb]+16+4*g+3}], v{vWa[2]} offset:{512 + tb*128 + g*32}")
        if tb == 0: a("s_waitcnt lgkmcnt(6)")
    for tb in range(2):
        NM, RS = NMs[tb], NMs[tb] + 16
        a(f"s_waitcnt lgkmcnt({8 if tb == 0 else 0})")
        for f in range(2):
            A_ = acc[f][tb]
            sel = "op_sel_hi:[1,0,1]" if f == 0 else "op_sel:[0,1,0] op_sel_hi:[1,1,1]"
            for r in range(0, 16, 2):
                a(f"v_pk_fma_f32 v[{A_+r}:{A_+r+1}], v[{NM+r}:{NM+r+1}], v[{vCs}:{vCs+1}], v[{A_+r}:{A_+r+1}] {sel}")
            for r in range(0, 16, 2):
                a(f"v_pk_mul_f32 v[{A_+r}:{A_+r+1}], v[{A_+r}:{A_+r+1}], v[{RS+r}:{RS+r+1}]")
            for k in range(8):
                a(f"v_cvt_pk_bf16_f32 v{A_+k}, v{A_+2*k}, v{A_+2*k+1}")
            for gp in range(2):
                pp = A_ + 4*gp
                if gp == 1: a("s_nop 0")
                a(f"v_permlane32_swap_b32 v{pp}, v{pp+2}")
                a(f"v_permlane32_swap_b32 v{pp+1}, v{pp+3}")
            for gp in range(2):
                pp = A_ + 4*gp
                a(f"buffer_store_dwordx4 v[{pp}:{pp+3}], v{vT[4+f]}, s[{SO}:{SO+3}], s{sXo} offen offset:{tb*1280 + gp*640} {K1SC}")
    prof_end(a, 0)
    a.label(END)
    a("s_endpgm")

    a.label(Lstat)
    su, sq = [vCs, vCs+1], [vCs+2, vCs+3]
    for r in range(4):
        a(f"v_mov_b32 v{vCs+r}, 0")
    a(f"s_mov_b32 s{sMask}, 0xffff0000")
    a("s_barrier")
    warm(True)
    Ls = a.newlabel("k1s")
    def sreads(half):
        for sp in range(4):
            x = B[half][sp]
            a(f"ds_read_b128 v[{x}:{x+3}], v{vXa[sp]} offset:{half*32768}")
    sreads(0)
    a.label(Ls)
    for half in range(2):
        if half == 1:
            flip(vXa)
        for sp in range(4):
            a(f"s_waitcnt lgkmcnt({3-sp})")
            if sp == 3:
                a("s_barrier")
                sreads(half ^ 1)
            for r in range(0 if K1NOST else 4):
                x = B[half][sp] + r
                t0, t1 = vT[(2*r) % 8], vT[(2*r+1) % 8]
                a(f"v_lshlrev_b32 v{t0}, 16, v{x}")
                a(f"v_and_b32 v{t1}, s{sMask}, v{x}")
                a(f"v_add_f32 v{su[0]}, v{su[0]}, v{t0}")
                a(f"v_fmac_f32 v{sq[0]}, v{t0}, v{t0}")
                a(f"v_add_f32 v{su[1]}, v{su[1]}, v{t1}")
                a(f"v_fmac_f32 v{sq[1]}, v{t1}, v{t1}")
    a(f"s_add_u32 s{sCnt}, s{sCnt}, 1")
    a(f"s_cmp_lt_u32 s{sCnt}, 5")
    a(f"s_cbranch_scc1 {Ls}")
    a(f"v_add_f32 v{vT[0]}, v{su[0]}, v{su[1]}")
    a(f"v_add_f32 v{vT[1]}, v{sq[0]}, v{sq[1]}")
    a(f"v_mov_b32 v{vT[2]}, v{vT[0]}")
    a(f"v_mov_b32 v{vT[3]}, v{vT[1]}")
    a(f"s_and_b32 s{sT}, s{sW_}, 3")
    a(f"s_lshl_b32 s{sT}, s{sT}, 7")
    a(f"v_permlane32_swap_b32 v{vT[0]}, v{vT[2]}")
    a(f"v_permlane32_swap_b32 v{vT[1]}, v{vT[3]}")
    a(f"v_add_f32 v{vT[0]}, v{vT[0]}, v{vT[2]}")
    a(f"v_add_f32 v{vT[1]}, v{vT[1]}, v{vT[3]}")
    a(f"v_mul_f32 v{vT[0]}, {f2u(-1.0/D):#x}, v{vT[0]}")
    a(f"v_mul_f32 v{vT[1]}, {f2u(1.0/D):#x}, v{vT[1]}")
    a(f"v_fma_f32 v{vT[1]}, -v{vT[0]}, v{vT[0]}, v{vT[1]}")
    a(f"v_max_f32 v{vT[1]}, 0, v{vT[1]}")
    a(f"v_add_f32 v{vT[1]}, {f2u(EPS):#x}, v{vT[1]}")
    a(f"v_rsq_f32 v{vT[1]}, v{vT[1]}")
    a(f"s_add_u32 s{sT}, s{sT}, {XB}")
    a(f"v_lshrrev_b32 v{vT[2]}, 1, v{vS8}")
    a(f"v_add_u32 v{vT[2]}, s{sT}, v{vT[2]}")
    a("s_mov_b32 exec_hi, 0")
    a(f"ds_write2_b32 v{vT[2]}, v{vT[0]}, v{vT[1]} offset0:0 offset1:128")
    a("s_waitcnt lgkmcnt(0)")
    a("s_barrier")
    a("s_endpgm")

    a.label(Lprod)
    vXo = vXa
    vWo = vWa
    if ROT:
        a(f"s_mul_i32 s{sT}, s{sT}, 3")
        a(f"s_add_u32 s{sC}, s{sJ}, s{sT}")
        for _ in range(2):
            a(f"s_sub_u32 s{sT}, s{sC}, 10")
            a(f"s_cmp_ge_u32 s{sC}, 10")
            a(f"s_cselect_b32 s{sC}, s{sT}, s{sC}")
    else:
        a(f"s_mov_b32 s{sC}, 0")
    a(f"s_mul_i32 s{sXb}, s{sI}, 163840")
    a(f"s_lshl_b32 s{sWb}, s{sJ}, 8")
    a(f"s_sub_u32 s{sSt}, s{sW_}, 8")
    a(f"s_lshl_b32 s{sSt}, s{sSt}, 10")
    a(f"v_and_b32 v{vT[7]}, 255, v0")
    a(f"v_lshrrev_b32 v{vT[0]}, 3, v{vT[7]}")
    a(f"v_mul_u32_u24 v{vXo[0]}, 1280, v{vT[0]}")
    a(f"v_lshrrev_b32 v{vT[1]}, 4, v{vT[7]}")
    a(f"v_xor_b32 v{vT[2]}, v{vT[7]}, v{vT[1]}")
    a(f"v_and_b32 v{vT[2]}, 7, v{vT[2]}")
    a(f"v_lshl_add_u32 v{vXo[0]}, v{vT[2]}, 4, v{vXo[0]}")
    a(f"v_mul_u32_u24 v{vWo[0]}, 3840, v{vT[1]}")
    a(f"v_lshlrev_b32 v{vT[2]}, 2, v{vT[1]}")
    a(f"v_xor_b32 v{vT[2]}, v{vT[7]}, v{vT[2]}")
    a(f"v_and_b32 v{vT[2]}, 15, v{vT[2]}")
    a(f"v_lshl_add_u32 v{vWo[0]}, v{vT[2]}, 4, v{vWo[0]}")
    for k in range(1, 4):
        a(f"v_add_u32 v{vXo[k]}, {40960*k}, v{vXo[0]}")
        a(f"v_add_u32 v{vWo[k]}, {61440*k}, v{vWo[0]}")
    a("s_waitcnt lgkmcnt(0)")
    srd(a, SX, 4, 5, S*D*2)
    srd(a, SWq, 6, 7, D*3*D*2)
    if K1NODMA:
        a(f"s_mov_b32 s{SX+2}, 0")
        a(f"s_mov_b32 s{SWq+2}, 0")
    def dma_chunk():
        a(f"s_lshl_b32 s{sXo}, s{sC}, 7")
        a(f"s_mul_i32 s{sWo}, s{sC}, 245760")
        a(f"s_mov_b32 m0, s{sSt}")
        a(f"s_add_u32 s{sXo}, s{sXo}, s{sXb}")
        a(f"s_add_u32 s{sWo}, s{sWo}, s{sWb}")
        for k in range(4):
            a(f"buffer_load_dwordx4 v{vXo[k]}, s[{SX}:{SX+3}], s{sXo} offen lds")
            a(f"s_add_u32 m0, s{sSt}, {16384 + 4096*k}")
            a("s_nop 0")
            a(f"buffer_load_dwordx4 v{vWo[k]}, s[{SWq}:{SWq+3}], s{sWo} offen lds")
            if k < 3:
                a(f"s_add_u32 m0, s{sSt}, {4096*(k+1)}")
                a("s_nop 0")
        a(f"s_add_u32 s{sC}, s{sC}, 1")
        a(f"s_cmp_eq_u32 s{sC}, 10")
        a(f"s_cselect_b32 s{sC}, 0, s{sC}")
        a(f"s_add_u32 s{sSt}, s{sSt}, 32768")
        a(f"s_and_b32 s{sSt}, s{sSt}, 0x1ffff")
    Lp, Lpb = a.newlabel("k1p"), a.newlabel("k1p")
    a(f"s_mov_b32 s{sCnt}, 0")
    a.label(Lp)
    dma_chunk()
    a(f"s_add_u32 s{sCnt}, s{sCnt}, 1")
    a(f"s_cmp_eq_u32 s{sCnt}, 1")
    a(f"s_cbranch_scc1 {Lp}")
    a("s_waitcnt vmcnt(8)")
    a("s_barrier")
    a(f"s_cmp_lt_u32 s{sCnt}, 10")
    a(f"s_cbranch_scc1 {Lp}")
    a("s_waitcnt vmcnt(0)")
    a("s_barrier")
    a("s_endpgm")
    return R.hi, 131072 + 2048

assert all((q*13108) >> 16 == q//5 for q in range(200))
assert all((f*3277) >> 16 == f//20 for f in range(700))
assert all((n*2731) >> 16 == n//24 for n in range(260))
```

```python
from asmlib import *
import asmlib, os
from layout import *

SLOT = 20480
TIMEOUT = 200000
MARKSET = os.environ.get('MARKSET', 'main')
_pm = prof_mark
def prof_mark(a, i, set_='main'):
    if set_ == MARKSET: _pm(a, i)
PF1 = int(os.environ.get('PF1', '24'))
PRETOUCH = int(os.environ.get('PRETOUCH', '0'))
KVSC = os.environ.get('KVSC', 'sc1')
FORCE_SLOW = int(os.environ.get('FORCE_SLOW', '0'))
DSC = os.environ.get('DSC', 'sc1')
DSC1 = os.environ.get('DSC1', 'sc1')
OSC = os.environ.get('OSC', '')
WBL2 = int(os.environ.get('WBL2', '-1'))
OUTPF = int(os.environ.get('OUTPF', '0'))
XD = int(os.environ.get('XD', '12'))
XPRE = int(os.environ.get('XPRE', '8'))

def gen_mega(a, name):
    kernel_header(a, name)
    END = f"{name}_end"
    ool = []
    SWS, SIN, SP = 8, 12, 16
    (sW_, sB, sM, sQb, sKh, sT, sT2, sT3, sTrip, sSlotN, sSrcA, sKVb, sWoff,
     sSrcW, sDstW, sTask, sPd, sPs, sTb, sPb, sIa, sIb, sFast, sRedo) = range(20, 44)
    sVm, sCmp = 44, 46
    sPtr = 48
    sOm, sOr = 58, 59
    sRt, sCt, sR1, sC1, sNat, sXo, sTo, sNW = range(76, 84)
    sGp = sNW
    a("s_cmp_ge_u32 s2, 256")
    a(f"s_cbranch_scc1 {END}")
    prof_start(a)
    a("s_load_dwordx2 s[4:5], s[0:1], 64")
    a("s_load_dwordx2 s[6:7], s[0:1], 0")
    a(f"s_load_dwordx8 s[{sPtr}:{sPtr+7}], s[0:1], 16")
    a(f"s_load_dwordx2 s[{sPtr+8}:{sPtr+9}], s[0:1], 48")
    R = Regs(1)
    vL, vL16, vL4, vOneI, vZero = [R.alloc() for _ in range(5)]
    vT = [R.alloc() for _ in range(6)]
    vA = [R.alloc() for _ in range(3)]
    vNat, vHo, vSplit = [R.alloc() for _ in range(3)]
    vRes = R.alloc(10, 2)
    GBASE = R.n
    vDma = R.alloc()
    vK1b, vK2b, vVb, vK1a, vK2a, vVa = [R.alloc() for _ in range(6)]
    vPa, vPb, vCw, vCr, vOm, vOr = [R.alloc() for _ in range(6)]
    vKp, vGp, vJunk = [R.alloc() for _ in range(3)]
    Q1 = [R.alloc(4, 4) for _ in range(2)]
    Q2 = [R.alloc(2, 2) for _ in range(2)]
    K1 = R.alloc(4, 4)
    V = [R.alloc(4, 4) for _ in range(2)]
    K2 = R.alloc(2, 2)
    O = [R.alloc(16, 4) for _ in range(2)]
    P = [R.alloc(8, 4) for _ in range(2)]
    Sx = [R.alloc(16, 4) for _ in range(2)]
    PF = R.alloc(16, 4)
    PC = R.alloc(32, 4)
    pOne = R.alloc(4, 4)

    a(f"v_lshrrev_b32 v{vT[0]}, 6, v0")
    a(f"v_and_b32 v{vL}, 63, v0")
    a(f"v_readfirstlane_b32 s{sW_}, v{vT[0]}")
    a(f"v_lshlrev_b32 v{vL16}, 4, v{vL}")
    a(f"s_and_b32 s{sB}, s2, 7")
    a(f"s_lshr_b32 s{sM}, s2, 3")
    a(f"s_lshr_b32 s{sKh}, s{sW_}, 2")
    a(f"s_mul_i32 s{sWoff}, s{sW_}, 2560")
    a(f"v_add_u32 v{vDma}, s{sWoff}, v{vL16}")
    a(f"s_mul_i32 s{sKVb}, s{sM}, 163840")
    a(f"s_add_u32 s{sKVb}, s{sKVb}, {OFF_KV}")
    a(f"s_mov_b32 s{sSrcA}, s{sKVb}")
    a(f"s_add_u32 m0, s{sWoff}, {SLOT}")
    a(f"s_and_b32 s{sT2}, s{sW_}, 3")
    a(f"s_lshl_b32 s{sT2}, s{sT2}, 1")
    a(f"s_lshl_b32 s{sT}, s{sB}, 3")
    a(f"s_add_u32 s{sT}, s{sT}, s{sT2}")
    a(f"s_add_u32 s{sQb}, s{sT}, s{sKh}")
    a(f"s_mul_i32 s{sT3}, s{sM}, 81920")
    a(f"s_mul_i32 s{sT2}, s{sQb}, 1280")
    a(f"s_add_u32 s{sT2}, s{sT2}, s{sT3}")
    a(f"s_xor_b32 s{sT}, s{sQb}, 1")
    a(f"s_mul_i32 s{sT}, s{sT}, 1280")
    a(f"s_add_u32 s{sT}, s{sT}, s{sT3}")
    assert OFF_Q == 0
    a(f"v_lshlrev_b32 v{vT[1]}, 3, v{vL}")
    for k in range(2):
        a(f"v_mov_b32 v{Q2[k]}, 0")
        a(f"v_mov_b32 v{Q2[k]+1}, 0")
    a("s_waitcnt lgkmcnt(0)")
    srd(a, SWS, 4, 5, WS_END)
    ws = f"s[{SWS}:{SWS+3}]"
    def dma_piece(k, src, sc=""):
        if k == 2: a("s_mov_b32 exec_hi, 0")
        a(f"buffer_load_dwordx4 v{vDma}, {ws}, s{src} offen offset:{1024*k} {sc} lds")
        if k == 2: a("s_mov_b32 exec_hi, -1")
    for k in range(2):
        dma_piece(k, sSrcA, KVSC)
    a(f"buffer_load_dwordx4 v[{Q1[0]}:{Q1[0]+3}], v{vL16}, {ws}, s{sT} offen")
    a(f"buffer_load_dwordx4 v[{Q1[1]}:{Q1[1]+3}], v{vL16}, {ws}, s{sT2} offen")
    a("s_mov_b32 exec_hi, 0")
    a(f"buffer_load_dwordx4 v{vDma}, {ws}, s{sSrcA} offen offset:2048 {KVSC} lds")
    a(f"buffer_load_dwordx2 v[{Q2[0]}:{Q2[0]+1}], v{vT[1]}, {ws}, s{sT} offen offset:1024")
    a(f"buffer_load_dwordx2 v[{Q2[1]}:{Q2[1]+1}], v{vT[1]}, {ws}, s{sT2} offen offset:1024")
    a("s_mov_b32 exec_hi, -1")
    srd(a, SIN, 6, 7, S*D*2)
    Lnp, Lp1, Lpg, Lpw = [a.newlabel("prep") for _ in range(4)]
    vPs = PC
    vH, vKg, vG1 = PF, PF+1, PF+2
    vT15, vT31 = PF+3, PF+4
    a(f"s_mov_b32 s{SP}, s{sPtr}")
    a(f"s_mov_b32 s{SP+1}, s{sPtr+1}")
    a(f"s_mov_b32 s{SP+2}, {D*D*2}")
    a(f"s_mov_b32 s{SP+3}, 0x20000")
    a(f"v_lshrrev_b32 v{vKg}, 4, v{vL}")
    a(f"v_lshrrev_b32 v{vH}, 5, v{vL}")
    a(f"v_and_b32 v{vG1}, 1, v{vKg}")
    a(f"v_and_b32 v{vT15}, 15, v{vL}")
    a(f"v_and_b32 v{vT31}, 31, v{vL}")
    a(f"v_bfe_u32 v{vT[0]}, v{vL}, 2, 2")
    a(f"v_and_b32 v{vT[2]}, 3, v{vL}")
    a(f"v_lshlrev_b32 v{vT[2]}, 3, v{vT[2]}")
    a(f"v_lshl_add_u32 v{vT[2]}, v{vT[0]}, 7, v{vT[2]}")
    a(f"s_lshl_b32 s{sT}, s{sW_}, 12")
    a(f"s_add_u32 s{sT}, s{sT}, {3*SLOT}")
    a(f"v_add_u32 v{vT[2]}, s{sT}, v{vT[2]}")
    a(f"s_mov_b32 m0, s{sT}")
    a(f"v_lshl_add_u32 v{vPa}, v{vH}, 11, v{vT[2]}")
    a(f"v_lshl_add_u32 v{vPa}, v{vG1}, 9, v{vPa}")
    a(f"v_add_u32 v{vPb}, 1024, v{vPa}")
    a(f"v_lshrrev_b32 v{vPs}, 3, v{vL}")
    a(f"s_mul_i32 s{sTask}, s2, 5")
    a(f"s_add_u32 s{sTask}, s{sTask}, s{sW_}")
    a(f"s_cmp_ge_u32 s{sW_}, 5")
    a(f"s_cselect_b32 s{sTask}, 9999, s{sTask}")
    a(f"s_cbranch_scc1 {Lnp}")
    a(f"s_mov_b32 s{sT3}, s{sTask}")
    a(f"s_mov_b32 s{sPd}, {OFF_WO}")
    a(f"s_mov_b32 s{sPs}, {20*5120}")
    a(f"s_mov_b32 s{sIa}, 8")
    a(f"s_mov_b32 s{sIb}, 12")
    a(f"s_mov_b32 s{sPb}, 40")
    a(f"s_cmp_lt_u32 s{sTask}, 200")
    a(f"s_cbranch_scc1 {Lpw}")
    a(f"s_mov_b32 s{sIb}, 8")
    a(f"s_mov_b32 s{sPb}, 32")
    a(f"s_mov_b32 s{SP+2}, {DFF*D*2}")
    a(f"s_cmp_lt_u32 s{sTask}, 740")
    a(f"s_cbranch_scc0 {Lp1}")
    a(f"s_mov_b32 s{SP}, s{sPtr+6}")
    a(f"s_mov_b32 s{SP+1}, s{sPtr+7}")
    a(f"s_sub_u32 s{sT3}, s{sTask}, 200")
    a(f"s_mov_b32 s{sPd}, {OFF_W2}")
    a(f"s_mov_b32 s{sPs}, {54*5120}")
    a.label(Lpw)
    a(f"s_mul_i32 s{sT}, s{sT3}, 6554")
    a(f"s_lshr_b32 s{sT}, s{sT}, 16")
    a(f"s_mul_i32 s{sT2}, s{sT}, 10")
    a(f"s_sub_u32 s{sTb}, s{sT3}, s{sT2}")
    a(f"s_mul_i32 s{sT2}, s{sT}, 5120")
    a(f"s_add_u32 s{sPd}, s{sPd}, s{sT2}")
    a(f"s_mul_i32 s{sPb}, s{sPb}, s{sT}")
    a(f"s_mov_b32 s{sT3}, 1280")
    a(f"s_sub_u32 s{sT2}, s{sTask}, 160")
    a(f"s_cmp_lt_u32 s{sT2}, 40")
    a(f"s_cbranch_scc0 {Lpg}")
    a(f"s_mul_i32 s{sPb}, s{sT}, 160")
    a(f"s_sub_u32 s{sPb}, s{sPb}, {16*160 - 16}")
    a(f"s_mov_b32 s{sIa}, 40")
    a(f"s_mov_b32 s{sIb}, 40")
    a(f"v_lshl_add_u32 v{vPs}, v{vH}, 4, v{vPs}")
    a(f"v_lshl_add_u32 v{vPa}, v{vKg}, 10, v{vT[2]}")
    a(f"v_add_u32 v{vPb}, 512, v{vPa}")
    a(f"s_branch {Lpg}")
    a.label(Lp1)
    a(f"s_mov_b32 s{SP}, s{sPtr+4}")
    a(f"s_mov_b32 s{SP+1}, s{sPtr+5}")
    a(f"s_sub_u32 s{sT3}, s{sTask}, 740")
    a(f"s_mul_i32 s{sT}, s{sT3}, 2428")
    a(f"s_lshr_b32 s{sT}, s{sT}, 16")
    a(f"s_mul_i32 s{sT2}, s{sT}, 27")
    a(f"s_sub_u32 s{sTb}, s{sT3}, s{sT2}")
    a(f"s_lshr_b32 s{sT2}, s{sTb}, 1")
    a(f"s_mul_i32 s{sPd}, s{sT2}, 163840")
    a(f"s_lshl_b32 s{sT2}, s{sT}, 13")
    a(f"s_add_u32 s{sPd}, s{sPd}, s{sT2}")
    a(f"s_and_b32 s{sT2}, s{sTb}, 1")
    a(f"s_lshl_b32 s{sT2}, s{sT2}, 11")
    a(f"s_add_u32 s{sPd}, s{sPd}, s{sT2}")
    a(f"s_add_u32 s{sPd}, s{sPd}, {OFF_W1}")
    a(f"v_lshl_add_u32 v{vPa}, v{vH}, 10, v{vT[2]}")
    a(f"v_lshl_add_u32 v{vPa}, v{vG1}, 5, v{vPa}")
    a(f"s_lshl_b32 s{sPb}, s{sT}, 5")
    a(f"s_mov_b32 s{sT3}, 3456")
    a.label(Lpg)
    a(f"s_mul_i32 s{sPb}, s{sPb}, s{sT3}")
    a(f"s_lshl_b32 s{sT2}, s{sTb}, 7")
    a(f"s_add_u32 s{sPb}, s{sPb}, s{sT2}")
    a(f"s_mul_i32 s{sIa}, s{sIa}, s{sT3}")
    a(f"s_mul_i32 s{sIb}, s{sIb}, s{sT3}")
    a(f"v_mul_lo_u32 v{vPs}, v{vPs}, s{sT3}")
    a(f"v_and_b32 v{vT[3]}, 7, v{vL}")
    a(f"v_lshl_add_u32 v{vPs}, v{vT[3]}, 4, v{vPs}")
    a.label(Lnp)
    a(f"v_and_b32 v{vT[0]}, 0x13, v{vL}")
    a(f"v_bfe_u32 v{vT[1]}, v{vL}, 2, 1")
    a(f"v_lshl_add_u32 v{vT[0]}, v{vT[1]}, 3, v{vT[0]}")
    a(f"v_bfe_u32 v{vT[1]}, v{vL}, 3, 1")
    a(f"v_lshl_add_u32 v{vT[0]}, v{vT[1]}, 2, v{vT[0]}")
    a(f"s_mul_i32 s{sT}, s{sKh}, 1280")
    a(f"v_lshl_add_u32 v{vK2b}, v{vT[0]}, 3, s{sT}")
    a(f"v_add_u32 v{vK2b}, 1024, v{vK2b}")
    a(f"v_lshl_add_u32 v{vK1b}, v{vT[0]}, 4, s{sT}")
    a(f"v_lshl_add_u32 v{vK1b}, v{vH}, 9, v{vK1b}")
    a(f"v_lshl_add_u32 v{vVb}, v{vT31}, 4, s{sT}")
    a(f"v_mul_u32_u24 v{vT[1]}, 320, v{vH}")
    a(f"v_add_u32 v{vVb}, v{vVb}, v{vT[1]}")
    a(f"v_add_u32 v{vVb}, 10240, v{vVb}")
    a(f"s_mov_b32 s{sSlotN}, {SLOT}")
    a(f"v_add_u32 v{vK1a}, s{sSlotN}, v{vK1b}")
    a(f"v_add_u32 v{vK2a}, s{sSlotN}, v{vK2b}")
    a(f"v_add_u32 v{vVa}, s{sSlotN}, v{vVb}")
    a(f"s_mov_b32 s{sVm}, 0xfffff")
    a(f"s_mov_b32 s{sVm+1}, 0xfffff")
    for r in range(8):
        a(f"v_mov_b32 v{V[0]+r}, 0x3f803f80")
        a(f"v_mov_b32 v{P[1]+r}, 0")
    for r in range(16):
        a(f"v_mov_b32 v{O[0]+r}, 0")
        a(f"v_mov_b32 v{O[1]+r}, 0")
    a(f"s_mov_b32 s{sTrip}, 0")
    a(f"s_mov_b32 s{sFast}, 0")
    a(f"s_mov_b32 s{sRedo}, 0")
    a(f"v_lshlrev_b32 v{vL4}, 2, v{vL}")
    a(f"v_mov_b32 v{vOneI}, 1")
    a(f"v_mov_b32 v{vZero}, 0")
    a(f"v_mov_b32 v{vA[0]}, v{vL16}")
    a(f"v_add_u32 v{vA[1]}, {3*SLOT}, v{vL16}")
    a(f"v_add_u32 v{vA[2]}, {6*SLOT}, v{vL16}")
    a(f"s_and_b32 s{sT}, s{sW_}, 3")
    a(f"s_lshl_b32 s{sT}, s{sT}, 12")
    a(f"s_add_u32 s{sT2}, s{sT}, {7*SLOT}")
    a(f"s_add_u32 s{sT}, s{sT}, {SLOT}")
    a(f"s_cmp_eq_u32 s{sKh}, 0")
    a(f"s_cselect_b32 s{sT3}, s{sT}, s{sT2}")
    a(f"s_cselect_b32 s{sT2}, s{sT2}, s{sT}")
    a(f"v_add_u32 v{vCw}, s{sT3}, v{vL16}")
    a(f"v_add_u32 v{vCr}, s{sT2}, v{vL16}")
    a(f"s_mul_i32 s{sOm}, s{sQb}, {2*20*1024}")
    a(f"s_add_u32 s{sOm}, s{sOm}, {OFF_O}")
    a(f"s_lshl_b32 s{sT}, s{sM}, 7")
    a(f"s_add_u32 s{sOr}, s{sOm}, s{sT}")
    a(f"s_add_u32 s{sOr}, s{sOr}, 16384")
    a(f"s_lshl_b32 s{sT}, s{sM}, 9")
    a(f"s_add_u32 s{sOm}, s{sOm}, s{sT}")
    a(f"v_mul_u32_u24 v{vT[2]}, {20*1024}, v{vG1}")
    a(f"v_lshl_add_u32 v{vOr}, v{vT15}, 3, v{vT[2]}")
    a(f"v_lshl_add_u32 v{vOm}, v{vT15}, 4, v{vT[2]}")
    a(f"v_lshl_add_u32 v{vOm}, v{vH}, 8, v{vOm}")
    a(f"s_and_b32 s{sT2}, s{sW_}, 3")
    a(f"s_and_b32 s{sRt}, s{sM}, 3")
    a(f"s_lshl_b32 s{sRt}, s{sRt}, 2")
    a(f"s_lshl_b32 s{sT}, s{sB}, 4")
    a(f"s_add_u32 s{sRt}, s{sRt}, s{sT}")
    a(f"s_add_u32 s{sRt}, s{sRt}, s{sT2}")
    a(f"s_lshr_b32 s{sCt}, s{sM}, 2")
    a(f"s_and_b32 s{sR1}, s{sM}, 1")
    a(f"s_lshl_b32 s{sR1}, s{sR1}, 2")
    a(f"s_lshl_b32 s{sT}, s{sB}, 3")
    a(f"s_add_u32 s{sR1}, s{sR1}, s{sT}")
    a(f"s_add_u32 s{sR1}, s{sR1}, s{sT2}")
    a(f"s_lshr_b32 s{sC1}, s{sM}, 1")
    a(f"v_mul_u32_u24 v{vNat}, 1280, v{vT15}")
    a(f"v_lshl_add_u32 v{vNat}, v{vKg}, 3, v{vNat}")
    a(f"s_mul_i32 s{sT}, s{sRt}, {16*1280}")
    a(f"s_mul_i32 s{sT2}, s{sCt}, 160")
    a(f"s_add_u32 s{sNat}, s{sT}, s{sT2}")
    a(f"v_lshlrev_b32 v{vHo}, 4, v{vT15}")
    a(f"v_lshl_add_u32 v{vHo}, v{vH}, 9, v{vHo}")
    a(f"v_lshl_add_u32 v{vHo}, v{vG1}, 3, v{vHo}")
    a(f"v_lshlrev_b32 v{vSplit}, 3, v{vT15}")
    a(f"v_lshl_add_u32 v{vSplit}, v{vKg}, 8, v{vSplit}")
    a(f"s_mul_i32 s{sSrcW}, s{sCt}, {20*5120}")
    a(f"s_add_u32 s{sSrcW}, s{sSrcW}, {OFF_WO}")
    a(f"s_add_u32 s{sDstW}, s{sWoff}, {3*SLOT}")
    a(f"v_min_u32 v{vKp}, 19, v{vL}")
    a(f"v_lshlrev_b32 v{vKp}, 7, v{vKp}")
    a(f"v_add_u32 v{vKp}, s{sWoff}, v{vKp}")
    a(f"v_add_u32 v{vKp}, {SLOT}, v{vKp}")
    if PRETOUCH:
        a(f"s_lshl_b32 s{sT}, s{sM}, 3")
        a(f"s_add_u32 s{sT}, s{sT}, s{sW_}")
        a(f"s_mul_i32 s{sT2}, s{sB}, {16*20480}")
        a(f"s_mul_i32 s{sT3}, s{sT}, {10*128}")
        a(f"s_add_u32 s{sT2}, s{sT2}, s{sT3}")
        a(f"s_add_u32 s{sT2}, s{sT2}, {OFF_O}")
        a(f"v_min_u32 v{vT[0]}, {9 if PRETOUCH == 1 else 3}, v{vL}")
        a(f"v_mul_u32_u24 v{vT[0]}, 640, v{vT[0]}")
        a(f"v_add_u32 v{vGp}, s{sT2}, v{vT[0]}")
        a(f"v_add_u32 v{vT[1]}, {OFF_H - OFF_O - 1280}, v{vGp}")
        a(f"v_cmp_lt_u32 vcc, 1, v{vL}")
        a(f"s_mul_i32 s{sT2}, s{sB}, {16*55296}")
        a(f"s_mul_i32 s{sT3}, s{sT}, {27*128}")
        a(f"v_cndmask_b32 v{vGp}, v{vGp}, v{vT[1]}, vcc")
        a(f"s_add_u32 s{sT2}, s{sT2}, s{sT3}")
        a(f"s_add_u32 s{sT2}, s{sT2}, {OFF_H1 - 2560}")
        a(f"v_add_u32 v{vT[1]}, s{sT2}, v{vT[0]}")
        a(f"v_cmp_lt_u32 vcc, {3 if PRETOUCH == 1 else 64}, v{vL}")
        a(f"s_and_b32 s{sT2}, s{sT}, 15")
        a(f"s_lshl_b32 s{sT2}, s{sT2}, 7")
        a(f"v_cndmask_b32 v{vGp}, v{vGp}, v{vT[1]}, vcc")
        a(f"s_bfe_u32 s{sT3}, s{sT}, 0x30004")
        a(f"s_lshl_b32 s{sT3}, s{sT3}, 14")
        a(f"s_add_u32 s{sT2}, s{sT2}, s{sT3}")
        a(f"s_lshl_b32 s{sT3}, s{sB}, 11")
        a(f"s_add_u32 s{sT2}, s{sT2}, s{sT3}")
        a(f"s_add_u32 s{sT2}, s{sT2}, {OFF_ST - 4*128}")
        a(f"v_writelane_b32 v{vGp}, s{sT2}, 10")
        a(f"s_mov_b32 s{sGp}, 0")
    else:
        a(f"v_mov_b32 v{vGp}, 0")
        a(f"s_mov_b32 s{sGp}, s{sKVb}")
    a(f"buffer_load_dword v{vJunk}, v{vKp}, {ws}, s{sSrcA} offen sc1")
    Lnq, Lnr = a.newlabel("prep"), a.newlabel("prep")
    a(f"s_cmp_ge_u32 s{sW_}, 5")
    a(f"s_cbranch_scc1 {Lnq}")
    for k in range(4):
        a(f"buffer_load_dwordx4 v{vPs}, s[{SP}:{SP+3}], s{sPb} offen lds")
        if k < 3:
            a(f"s_add_u32 m0, m0, 1024")
            a(f"s_add_u32 s{sPb}, s{sPb}, s{sIb if k == 1 else sIa}")
    prof_mark(a, 0)
    a("s_waitcnt vmcnt(5)")
    a(f"s_branch {Lnr}")
    a.label(Lnq)
    a("s_waitcnt vmcnt(1)")
    a.label(Lnr)
    a("s_barrier")
    def w1_src(dst):
        a(f"s_min_u32 s{dst}, s{sC1}, 13")
        a(f"s_mul_i32 s{dst}, s{dst}, 163840")
        a(f"s_add_u32 s{dst}, s{dst}, {OFF_W1}")
    def kread(off):
        a(f"ds_read_b128 v[{K1}:{K1+3}], v{vK1a} offset:{off}")
        a(f"ds_read_b64 v[{K2}:{K2+1}], v{vK2a} offset:{off}")
    def vread(off):
        a(f"s_mov_b64 exec, s[{sVm}:{sVm+1}]")
        a(f"ds_read_b128 v[{V[0]}:{V[0]+3}], v{vVa} offset:{off}")
        a(f"ds_read_b128 v[{V[1]}:{V[1]+3}], v{vVa} offset:{off+640}")
        a(f"s_mov_b64 exec, -1")
    def qk1(x): return f"v_mfma_f32_32x32x16_bf16 v[{Sx[x]}:{Sx[x]+15}], v[{K1}:{K1+3}], v[{Q1[x]}:{Q1[x]+3}], 0"
    def qk2(x): return f"v_mfma_f32_32x32x8_bf16 v[{Sx[x]}:{Sx[x]+15}], v[{K2}:{K2+1}], v[{Q2[x]}:{Q2[x]+1}], v[{Sx[x]}:{Sx[x]+15}]"
    def pv(x, k): return f"v_mfma_f32_32x32x16_bf16 v[{O[x]}:{O[x]+15}], v[{V[k]}:{V[k]+3}], v[{P[x]+4*k}:{P[x]+4*k+3}], v[{O[x]}:{O[x]+15}]"
    def vgroup(x, g):
        s = Sx[x] + 4*g
        for i in range(4):
            a(f"v_exp_f32 v{s+i}, v{s+i}")
        a(f"v_cvt_pk_bf16_f32 v{P[x]+2*g}, v{s}, v{s+1}")
        a(f"v_cvt_pk_bf16_f32 v{P[x]+2*g+1}, v{s+2}, v{s+3}")
    prof_mark(a, 1)
    kread(0)
    def next_unitA():
        a(f"s_add_u32 s{sSrcA}, s{sSrcA}, {SLOT}")
        a(f"s_add_u32 s{sSlotN}, s{sSlotN}, {SLOT}")
        a(f"s_cmp_ge_u32 s{sSlotN}, {3*SLOT}")
        a(f"s_cselect_b32 s{sSlotN}, 0, s{sSlotN}")
        a(f"s_add_u32 m0, s{sSlotN}, s{sWoff}")
    a("s_waitcnt lgkmcnt(0)")
    a(qk1(0)); a(qk2(0))
    next_unitA()
    a("s_nop 5")
    Lm, LhB, LhBr, LhA, LhAr = [a.newlabel("att") for _ in range(5)]
    a.label(Lm)
    for u in range(4):
        a(f"s_setprio {(2-u) % 4}")
        a(qk1(1))
        vgroup(0, 0)
        a(qk2(1))
        if u == 3:
            a(f"buffer_load_dword v{vJunk}, v{vKp}, {ws}, s{sSrcA} offen sc1")
            a(f"buffer_load_dword v{vJunk}, v{vGp}, {ws}, s{sGp} offen sc1")
            if MARKSET == "wait" and asmlib.PROF:
                a("s_memtime s[96:97]")
                a("s_waitcnt lgkmcnt(0)")
            a("s_waitcnt vmcnt(2)")
            if MARKSET == "wait" and asmlib.PROF:
                for i in range(7):
                    a(f"s_mov_b32 s{60+2*i}, s{62+2*i}")
                a("s_memtime s[74:75]")
                a("s_waitcnt lgkmcnt(0)")
                a("s_sub_u32 s74, s74, s96")
                a("s_add_u32 s74, s74, s86")
            a("s_barrier")
            if MARKSET == "trip" and asmlib.PROF:
                for i in range(7):
                    a(f"s_mov_b32 s{60+2*i}, s{62+2*i}")
                a("s_memtime s[74:75]")
                a("s_waitcnt lgkmcnt(0)")
            a(f"v_add_u32 v{vK1a}, s{sSlotN}, v{vK1b}")
            a(f"v_add_u32 v{vK2a}, s{sSlotN}, v{vK2b}")
            kread(0)
            a(f"s_add_u32 s{sGp}, s{sGp}, 128")
        else:
            kread((u+1)*2560)
        vgroup(0, 1)
        a(pv(1, 0))
        if u == 0: dma_piece(0, sSrcA, KVSC)
        if u == 1: dma_piece(2, sSrcA, KVSC)
        vgroup(0, 2)
        a(pv(1, 1))
        vread(u*2560)
        vgroup(0, 3)
        a("s_waitcnt lgkmcnt(2)")
        a(qk1(0))
        vgroup(1, 0)
        a(qk2(0))
        if u == 0: dma_piece(1, sSrcA, KVSC)
        if u == 1:
            a(f"s_cmp_ge_u32 s{sTrip}, 3")
            a(f"s_cbranch_scc1 {LhB}")
            a.label(LhBr)
        vgroup(1, 1)
        a("s_waitcnt lgkmcnt(0)")
        a(pv(0, 0))
        vgroup(1, 2)
        a(pv(0, 1))
        if u == 3:
            a(f"v_add_u32 v{vVa}, s{sSlotN}, v{vVb}")
            next_unitA()
            a(f"s_bitcmp1_b32 {0b01001011}, s{sTrip}")
            a(f"s_cbranch_scc1 {LhA}")
            a.label(LhAr)
            a(f"s_add_u32 s{sTrip}, s{sTrip}, 1")
            a(f"s_cmp_lt_u32 s{sTrip}, 8")
        vgroup(1, 3)
    a(f"s_cbranch_scc1 {Lm}")
    prof_mark(a, 2)
    prof_mark(a, 0, "tail")
    a("s_setprio 0")
    a(pv(1, 0))
    a(pv(1, 1))
    for g in range(3):
        a(f"ds_write_b128 v{vCw}, v[{O[0]+4*g}:{O[0]+4*g+3}] offset:{1024*g}")
    a(f"ds_write_b32 v{vCw}, v{O[0]+12} offset:3072")
    def flag_addr(dst, phase, s_tb32, s_idx=None):
        a(f"s_lshl_b32 s{dst}, s{s_tb32}, 7")
        if s_idx is not None:
            a(f"s_lshl_b32 s{sT}, s{s_idx}, 2")
            a(f"s_add_u32 s{dst}, s{dst}, s{sT}")
        a(f"s_add_u32 s{dst}, s{dst}, {OFF_FL + phase*64*128}")
    sFw, sFr = sPd, sPs
    flag_addr(sFw, 0, sQb, sM)
    a("s_waitcnt lgkmcnt(0)")
    a("s_barrier")
    for g in range(3):
        a(f"ds_read_b128 v[{O[0]+4*g}:{O[0]+4*g+3}], v{vCr} offset:{1024*g}")
    a(f"ds_read_b32 v{O[0]+12}, v{vCr} offset:3072")
    a("s_waitcnt lgkmcnt(0)")
    prof_mark(a, 1, "tail")
    Ob = O[1]
    a(f"v_add_f32 v{Ob+12}, v{Ob+12}, v{O[0]+12}")
    for r in range(0, 12, 2):
        a(f"v_pk_add_f32 v[{Ob+r}:{Ob+r+1}], v[{Ob+r}:{Ob+r+1}], v[{O[0]+r}:{O[0]+r+1}]")
    Lslow, Lfin, Lok = a.newlabel("slow"), a.newlabel("fin"), a.newlabel("ok")
    a.label(Lfin)
    a(f"v_rcp_f32 v{Ob+14}, v{Ob+12}")
    a("s_nop 0")
    for r in range(0, 12, 2):
        a(f"v_pk_mul_f32 v[{Ob+r}:{Ob+r+1}], v[{Ob+r}:{Ob+r+1}], v[{Ob+14}:{Ob+15}] op_sel_hi:[1,0]")
    for k in range(6):
        a(f"v_cvt_pk_bf16_f32 v{P[0]+k}, v{Ob+2*k}, v{Ob+2*k+1}")
    def dual(fn):
        Ls, Lr = a.newlabel("wt"), a.newlabel("wt")
        a(f"s_cmp_eq_u32 s{sFast}, 0")
        a(f"s_cbranch_scc1 {Ls}")
        fn("")
        a.label(Lr)
        def out():
            a.label(Ls)
            fn("sc1")
            a(f"s_branch {Lr}")
        ool.append(out)
    def put_flag(sc):
        a("s_waitcnt vmcnt(0)")
        a("s_mov_b64 exec, 1")
        a(f"buffer_store_dword v{vOneI}, v{vZero}, {ws}, s{sFw} offen {sc}")
        a("s_mov_b64 exec, -1")
    def o_store(sc):
        sc = sc or DSC
        a(f"buffer_store_dwordx4 v[{P[0]}:{P[0]+3}], v{vOm}, {ws}, s{sOm} offen {sc}")
        a(f"s_mov_b32 exec_hi, 0")
        a(f"buffer_store_dwordx2 v[{P[0]+4}:{P[0]+5}], v{vOr}, {ws}, s{sOr} offen {sc}")
        a(f"s_mov_b32 exec_hi, -1")
    dual(o_store)
    a(f"s_cmp_lg_u32 s{sRedo}, 0")
    a(f"s_cbranch_scc1 {Lok}")
    a(f"v_mov_b32 v{vT[3]}, v{Ob+12}")
    for r in range(12):
        a(f"v_fma_f32 v{vT[3]}, v{Ob+r}, 0, v{vT[3]}")
    a(f"s_mov_b32 s{sT}, {f2u(2.0**-64):#x}")
    a(f"v_cmp_nle_f32 s[{sCmp}:{sCmp+1}], s{sT}, v{vT[3]}")
    a(f"s_mov_b32 s{sT}, {f2u(2.0**64):#x}")
    a(f"v_cmp_nge_f32 vcc, s{sT}, v{vT[3]}")
    a("s_nop 1")
    a(f"s_or_b64 vcc, vcc, s[{sCmp}:{sCmp+1}]")
    a(f"s_cbranch_vccnz {Lslow}")
    a.label(Lok)
    prof_mark(a, 2, "tail")
    dual(put_flag)
    prof_mark(a, 3, "tail")
    a("s_barrier")
    Lprod = a.newlabel("prod")
    a(f"s_cmp_ge_u32 s{sW_}, 4")
    a(f"s_cbranch_scc1 {Lprod}")

    def wait_flags(n):
        Lp, Lq = a.newlabel("poll"), a.newlabel("poll")
        a(f"s_mov_b32 s{sT2}, 0")
        a(f"s_mov_b64 exec, {(1 << n) - 1:#x}" if n < 32 else "s_mov_b32 exec_hi, 0")
        a.label(Lp)
        a(f"buffer_load_dword v{vT[5]}, v{vL4}, {ws}, s{sFr} offen sc1")
        a(f"s_add_u32 s{sT2}, s{sT2}, 1")
        a(f"s_cmp_gt_u32 s{sT2}, {TIMEOUT}")
        a(f"s_cbranch_scc1 {Lq}")
        a("s_waitcnt vmcnt(0)")
        a(f"v_cmp_ne_u32 vcc, 1, v{vT[5]}")
        a(f"s_cbranch_vccnz {Lp}")
        a.label(Lq)
        a("s_mov_b64 exec, -1")

    G = Regs(GBASE)
    vSt = G.alloc(8, 4)
    vB0, vB1 = G.alloc(), G.alloc()
    Wf = [[G.alloc(4, 4) for _ in range(5)] for _ in range(2)]
    HACC = G.alloc(20, 4)
    ACC = G.alloc(64, 4)
    X = [G.alloc(4, 4) for _ in range(XD)]
    sT32 = sTask

    def wread(big, n0, s, buf, f):
        NF = 4 if big else 5
        CH = 5 if big else 4
        slot = (n0 + s//CH + 3) % 8
        w = Wf[buf][f]
        a(f"ds_read_b128 v[{w}:{w+3}], v{vA[slot//3]} offset:{(slot % 3)*SLOT + ((s % CH)*NF + f)*1024}")
    def gemm(big, n0, nsteps, accb, init=None, split_from=None, zero=False):
        NF = 4 if big else 5
        CH = 5 if big else 4
        AR = 16 if big else 4
        tag = f"g{n0}"
        acc = [accb + AR*f for f in range(NF)]
        cnt = []
        def xload():
            s = len(cnt)
            x = X[s % XD]
            if s % 4 == 0 and s:
                a(f"s_add_u32 s{sXo}, s{sXo}, 4096")
            if split_from is not None and s >= split_from:
                a(f"buffer_load_dwordx2 v[{x}:{x+1}], v{vSplit}, {ws}, s{sXo} offen offset:{(s % 4)*1024} sc1")
                a(f"buffer_load_dwordx2 v[{x+2}:{x+3}], v{vSplit}, {ws}, s{sXo} offen offset:{(s % 4)*1024+128} sc1")
                cnt.append(2)
            else:
                a(f"buffer_load_dwordx4 v[{x}:{x+3}], v{vL16}, {ws}, s{sXo} offen offset:{(s % 4)*1024} sc1")
                cnt.append(1)
        def mf(d, w, x, first):
            n = 16 if big else 4
            c = "0" if (first and zero) else f"v[{d}:{d+n-1}]"
            op = "v_mfma_f32_32x32x16_bf16" if big else "v_mfma_f32_16x16x32_bf16"
            return f"{op} v[{d}:{d+n-1}], v[{w}:{w+3}], v[{x}:{x+3}], {c}"
        prof_mark(a, 0, tag)
        for s in range(XPRE):
            xload()
        prof_mark(a, 1, tag)
        if init: init(sum(cnt))
        prof_mark(a, 2, tag)
        drained = True
        for s in range(nsteps):
            if s in (nsteps//4, nsteps//2, 3*nsteps//4):
                prof_mark(a, 3 + (nsteps//4, nsteps//2, 3*nsteps//4).index(s), tag)
                if tag == MARKSET and asmlib.PROF: a("s_waitcnt lgkmcnt(0)")
            buf = s & 1
            last = s == nsteps-1
            edge = (s % CH == CH-1) or last
            vm = sum(cnt[s+1:])
            drain = last or s == 0
            if drain:
                a(f"s_waitcnt lgkmcnt(0) vmcnt({vm})")
                if last and n0 + s//CH < 26:
                    a("s_barrier")
            for f in range(NF):
                if not drain:
                    a(f"s_waitcnt lgkmcnt({NF-1})" + (f" vmcnt({vm})" if f == 0 else ""))
                a(mf(acc[f], Wf[buf][f], X[s % XD], s == 0))
                if edge and not last and f == 0:
                    a("s_barrier")
                if not last:
                    wread(big, n0, s+1, buf ^ 1, f)
                if f in (0, 2) and len(cnt) < nsteps and len(cnt) < s + XD:
                    xload()
        prof_mark(a, 6, tag)
        return acc
    def lane_reduce(q, ops):
        for op in ops:
            a(f"v_mov_b32 v{q+2}, v{q}")
            a(f"v_mov_b32 v{q+3}, v{q+1}")
            a("s_nop 1")
            a(f"{op} v{q}, v{q+2}")
            a(f"{op} v{q+1}, v{q+3}")
            a(f"v_pk_add_f32 v[{q}:{q+1}], v[{q}:{q+1}], v[{q+2}:{q+3}]")

    for f in range(5):
        wread(False, 0, 0, 0, f)
    a(f"s_lshr_b32 s{sT32}, s{sRt}, 1")
    flag_addr(sFr, 0, sT32)
    a(f"s_mul_i32 s{sXo}, s{sRt}, {20*1024}")
    a(f"s_add_u32 s{sXo}, s{sXo}, {OFF_O}")
    for k in range(10):
        a(f"v_lshlrev_b32 v{HACC+2*k}, 16, v{vRes+k}")
        a(f"v_and_b32 v{HACC+2*k+1}, 0xffff0000, v{vRes+k}")
    prof_mark(a, 4, "tail")
    wait_flags(32)
    prof_mark(a, 5, "tail")
    prof_mark(a, 3)
    def init_o(n):
        a(f"s_mul_i32 s{sTo}, s{sT32}, 40960")
        a(f"s_and_b32 s{sT3}, s{sRt}, 1")
        a(f"s_lshl_b32 s{sT2}, s{sT3}, 8")
        a(f"s_add_u32 s{sTo}, s{sTo}, s{sT2}")
        a(f"s_mul_i32 s{sT2}, s{sCt}, 5120")
        a(f"s_add_u32 s{sTo}, s{sTo}, s{sT2}")
        a(f"s_add_u32 s{sTo}, s{sTo}, {OFF_H}")
        a(f"s_add_u32 s{sOm}, s{sTo}, 4096")
        a(f"s_lshl_b32 s{sT2}, s{sCt}, 1")
        a(f"s_add_u32 s{sT3}, s{sT3}, s{sT2}")
        flag_addr(sFw, 1, sT32, sT3)
        flag_addr(sFr, 1, sR1)
        a(f"s_lshl_b32 s{sOr}, s{sCt}, 14")
        a(f"s_lshl_b32 s{sT2}, s{sRt}, 7")
        a(f"s_add_u32 s{sOr}, s{sOr}, s{sT2}")
        a(f"s_add_u32 s{sOr}, s{sOr}, {OFF_ST}")
        a(f"v_lshlrev_b32 v{vB0}, 1, v{vL4}")
        a(f"v_lshrrev_b32 v{vB1}, 5, v{vL}")
        a(f"v_lshlrev_b32 v{vB1}, 4, v{vB1}")
        a(f"s_min_u32 s{sTb}, s{sC1}, 13")
        a(f"s_lshl_b32 s{sTb}, s{sTb}, 9")
        a(f"s_add_u32 s{sTb}, s{sTb}, {OFF_CS}")
    acc = gemm(False, 0, 20, HACC, init_o, split_from=16)
    a("s_nop 3")
    def h_store(sc):
        for f in range(5):
            for k in range(2):
                a(f"v_cvt_pk_bf16_f32 v{vRes+2*f+k}, v{acc[f]+2*k}, v{acc[f]+2*k+1}")
            a(f"buffer_store_dwordx2 v[{vRes+2*f}:{vRes+2*f+1}], v{vHo}, {ws}, s{sTo if f < 4 else sOm} offen offset:{1024*(f % 4)} {sc or DSC}")
        a(f"v_pk_add_f32 v[{vSt}:{vSt+1}], v[{HACC}:{HACC+1}], v[{HACC+2}:{HACC+3}]")
        a(f"v_pk_mul_f32 v[{vSt+2}:{vSt+3}], v[{HACC}:{HACC+1}], v[{HACC}:{HACC+1}]")
        for k in range(1, 10):
            r = HACC + 2*k
            if k > 1:
                a(f"v_pk_add_f32 v[{vSt}:{vSt+1}], v[{vSt}:{vSt+1}], v[{r}:{r+1}]")
            a(f"v_pk_fma_f32 v[{vSt+2}:{vSt+3}], v[{r}:{r+1}], v[{r}:{r+1}], v[{vSt+2}:{vSt+3}]")
        a(f"v_add_f32 v{vSt}, v{vSt}, v{vSt+1}")
        a(f"v_add_f32 v{vSt+1}, v{vSt+2}, v{vSt+3}")
        lane_reduce(vSt, ("v_permlane32_swap_b32", "v_permlane16_swap_b32"))
        a(f"s_mov_b64 exec, 0xffff")
        a(f"buffer_store_dwordx2 v[{vSt}:{vSt+1}], v{vB0}, {ws}, s{sOr} offen {sc or DSC}")
        put_flag(sc)
    dual(h_store)
    prof_mark(a, 4)
    prof_mark(a, 7, "g0")

    Lidle, Lf2 = a.newlabel("idle"), a.newlabel("f2")
    a(f"s_cmp_ge_u32 s{sC1}, 14")
    a(f"s_cbranch_scc1 {Lidle}")
    for f in range(4):
        wread(True, 5, 0, 0, f)
    for k in range(16):
        a(f"buffer_load_dwordx4 v[{ACC+4*k}:{ACC+4*k+3}], v{vB1}, {ws}, s{sTb} offen offset:{32*k} sc1")
    a(f"s_mul_i32 s{sXo}, s{sR1}, {40*1024}")
    a(f"s_add_u32 s{sXo}, s{sXo}, {OFF_H}")
    a(f"v_and_b32 v{vT[2]}, 31, v{vL}")
    a(f"v_lshlrev_b32 v{vT[2]}, 3, v{vT[2]}")
    a(f"v_lshl_add_u32 v{vT[2]}, v{vB1}, 12, v{vT[2]}")
    a(f"s_lshl_b32 s{sT3}, s{sR1}, 8")
    a(f"s_add_u32 s{sT3}, s{sT3}, {OFF_ST}")
    wait_flags(16)
    prof_mark(a, 5)
    for k in range(4):
        a(f"buffer_load_dword v{vSt+k}, v{vT[2]}, {ws}, s{sT3} offen sc1")
        if k < 3:
            a(f"s_add_u32 s{sT3}, s{sT3}, 16384")
    def init_f1(n):
        a(f"v_bfe_u32 v{vT[3]}, v{vL}, 4, 1")
        a(f"v_mul_u32_u24 v{vB0}, {54*1024}, v{vT[3]}")
        a(f"v_lshl_add_u32 v{vB0}, v{vB1}, 4, v{vB0}")
        a(f"v_and_b32 v{vT[3]}, 15, v{vL}")
        a(f"v_lshl_add_u32 v{vB0}, v{vT[3]}, 4, v{vB0}")
        a(f"s_mul_i32 s{sTo}, s{sR1}, {2*54*1024}")
        a(f"s_lshl_b32 s{sT}, s{sC1}, 12")
        a(f"s_add_u32 s{sTo}, s{sTo}, s{sT}")
        a(f"s_add_u32 s{sTo}, s{sTo}, {OFF_H1}")
        flag_addr(sFw, 2, sR1, sC1)
        a(f"s_waitcnt vmcnt({n})")
        a(f"v_pk_add_f32 v[{vSt}:{vSt+1}], v[{vSt}:{vSt+1}], v[{vSt+2}:{vSt+3}]")
        a(f"v_add_f32 v{vSt}, v{vSt}, v{vSt+1}")
        a(f"v_mov_b32 v{vSt+1}, v{vSt}")
        a("s_nop 1")
        a(f"v_permlane32_swap_b32 v{vSt}, v{vSt+1}")
        a(f"v_add_f32 v{vSt}, v{vSt}, v{vSt+1}")
        a(f"v_mul_f32 v{vSt}, {f2u(-1.0/D):#x}, v{vSt}")
        for r in range(0, 64, 2):
            a(f"v_pk_mul_f32 v[{ACC+r}:{ACC+r+1}], v[{ACC+r}:{ACC+r+1}], v[{vSt}:{vSt+1}] op_sel_hi:[1,0]")
        a("s_nop 0")
    acc1 = gemm(True, 5, 40, ACC, init_f1)
    a("s_nop 6")
    def h1_store(sc):
        Lsk = a.newlabel("sk")
        for f in range(4):
            pk = X[0] + 8*f
            if f == 2:
                a(f"s_cmp_eq_u32 s{sC1}, 13")
                a(f"s_cbranch_scc1 {Lsk}")
            for p in range(2):
                for k in range(4*p, 4*p+4):
                    a(f"v_cvt_pk_bf16_f32 v{pk+k}, v{acc1[f]+2*k}, v{acc1[f]+2*k+1}")
                for k in range(4*p, 4*p+4):
                    a(f"v_pk_max_i16 v{pk+k}, v{pk+k}, 0")
                a(f"buffer_store_dwordx4 v[{pk+4*p}:{pk+4*p+3}], v{vB0}, {ws}, s{sTo} offen offset:{1024*f+512*p} {sc or DSC1}")
        a.label(Lsk)
        put_flag(sc)
    dual(h1_store)
    prof_mark(a, 7, "g5")
    a.label(Lf2)
    def idle():
        a.label(Lidle)
        for _ in range(8):
            a("s_barrier")
        a(f"s_branch {Lf2}")
    ool.append(idle)
    prof_mark(a, 6)

    for f in range(5):
        wread(False, 13, 0, 0, f)
    flag_addr(sFr, 2, sT32)
    a(f"s_mul_i32 s{sXo}, s{sRt}, {54*1024}")
    a(f"s_add_u32 s{sXo}, s{sXo}, {OFF_H1}")
    a(f"v_and_b32 v{vT[0]}, 15, v{vL}")
    a(f"v_lshlrev_b32 v{vT[2]}, 3, v{vT[0]}")
    a(f"v_lshrrev_b32 v{vT[0]}, 4, v{vL}")
    a(f"v_lshl_add_u32 v{vT[2]}, v{vT[0]}, 15, v{vT[2]}")
    a(f"s_lshl_b32 s{sT3}, s{sRt}, 7")
    a(f"s_add_u32 s{sT3}, s{sT3}, {OFF_ST}")
    a(f"s_add_u32 s{sTo}, s{sT3}, 16384")
    srd(a, SIN, sPtr+8, sPtr+9, S*D*2)
    wait_flags(14)
    prof_mark(a, 7)
    a(f"buffer_load_dwordx2 v[{vSt}:{vSt+1}], v{vT[2]}, {ws}, s{sT3} offen sc1")
    a(f"buffer_load_dwordx2 v[{vSt+4}:{vSt+5}], v{vT[2]}, {ws}, s{sTo} offen sc1")
    def init_f2(n):
        q = vSt
        a(f"s_waitcnt vmcnt({n})")
        a(f"v_pk_add_f32 v[{q}:{q+1}], v[{q}:{q+1}], v[{q+4}:{q+5}]")
        lane_reduce(q, ("v_permlane32_swap_b32", "v_permlane16_swap_b32"))
        a(f"v_mul_f32 v{q}, {f2u(1.0/D):#x}, v{q}")
        a(f"v_mul_f32 v{q+1}, {f2u(1.0/D):#x}, v{q+1}")
        a(f"v_fma_f32 v{q+1}, -v{q}, v{q}, v{q+1}")
        a(f"v_max_f32 v{q+1}, 0, v{q+1}")
        a(f"v_add_f32 v{q+1}, {f2u(EPS):#x}, v{q+1}")
        a(f"v_rsq_f32 v{q}, v{q+1}")
    acc2 = gemm(False, 13, 54, ACC, init_f2, zero=True)
    a("s_nop 3")
    for f in range(5):
        for k in range(2):
            r = acc2[f] + 2*k
            h = HACC + 4*f + 2*k
            a(f"v_pk_fma_f32 v[{r}:{r+1}], v[{r}:{r+1}], v[{vSt}:{vSt+1}], v[{h}:{h+1}] op_sel_hi:[1,0,1]")
        for k in range(2):
            a(f"v_cvt_pk_bf16_f32 v{vRes+2*f+k}, v{acc2[f]+2*k}, v{acc2[f]+2*k+1}")
        a(f"buffer_store_dwordx2 v[{vRes+2*f}:{vRes+2*f+1}], v{vNat}, s[{SIN}:{SIN+3}], s{sNat} offen offset:{32*f} {OSC}")
    prof_end(a, 1)
    a.label(END)
    a("s_endpgm")

    a.label(Lprod)
    vW = vT[0]
    sPo = sWoff
    a(f"s_sub_u32 s{sT}, s{sW_}, 4")
    a(f"s_mul_i32 s{sPo}, s{sT}, 5120")
    a(f"v_add_u32 v{vW}, s{sPo}, v{vL16}")
    a(f"s_mul_i32 s{sTb}, s{sT}, 2560")
    a(f"v_add_u32 v{vT[1]}, s{sTb}, v{vL16}")
    def chunk(src, dst):
        a(f"s_add_u32 m0, s{dst}, s{sPo}")
        a(f"s_add_u32 s{sT}, s{src}, 4096")
        for k in range(4):
            a(f"buffer_load_dwordx4 v{vW}, {ws}, s{src} offen offset:{1024*k} sc1 lds")
        a(f"s_add_u32 m0, m0, 4096")
        a(f"s_add_u32 s{src}, s{src}, {SLOT}")
        a(f"buffer_load_dwordx4 v{vW}, {ws}, s{sT} offen sc1 lds")
        a(f"s_add_u32 s{dst}, s{dst}, {SLOT}")
        a(f"s_cmp_ge_u32 s{dst}, {8*SLOT}")
        a(f"s_cselect_b32 s{dst}, 0, s{dst}")
    if OUTPF:
        srd(a, SIN, sPtr+8, sPtr+9, S*D*2)
        a(f"s_lshl_b32 s{sT2}, s{sM}, 2")
        a(f"s_add_u32 s{sT2}, s{sT2}, s{sT}")
        a(f"s_lshl_b32 s{sT3}, s{sB}, 7")
        a(f"s_add_u32 s{sT2}, s{sT2}, s{sT3}")
        a(f"s_mul_i32 s{sT2}, s{sT2}, 2560")
        a(f"v_lshlrev_b32 v{vT[2]}, 7, v{vL}")
        a(f"s_mov_b64 exec, 0xfffff")
        a(f"buffer_load_dword v{vT[3]}, v{vT[2]}, s[{SIN}:{SIN+3}], s{sT2} offen sc1")
        a(f"s_mov_b64 exec, -1")
    a(f"s_mov_b32 s{sDstW}, {7*SLOT}")
    chunk(sSrcW, sDstW)
    w1_src(sSrcW)
    a(f"s_add_u32 s{sSrcW}, s{sSrcW}, {SLOT}")
    a(f"s_mov_b32 s{sDstW}, {SLOT}")
    L0, L1, L2, L3, L4 = [a.newlabel("pl") for _ in range(5)]
    sNC = sTrip
    a(f"s_mov_b32 s{sNC}, 6")
    a(f"s_mov_b32 s{sNW}, -1")
    a(f"s_mov_b32 s{sT3}, 8")
    a.label(L1)
    a(f"s_cmp_lt_u32 s{sNC}, s{sT3}")
    a(f"s_cbranch_scc0 {L2}")
    a(f"s_cmp_eq_u32 s{sNC}, 13")
    a(f"s_cbranch_scc0 {L3}")
    a(f"s_mul_i32 s{sSrcW}, s{sCt}, {54*5120}")
    a(f"s_add_u32 s{sSrcW}, s{sSrcW}, {OFF_W2}")
    a.label(L3)
    chunk(sSrcW, sDstW)
    a(f"s_add_u32 s{sNC}, s{sNC}, 1")
    a(f"s_branch {L1}")
    a.label(L2)
    a(f"s_add_i32 s{sNW}, s{sNW}, 1")
    a(f"s_cmp_lg_u32 s{sNW}, 0")
    a(f"s_cbranch_scc1 {L4}")
    a("s_waitcnt vmcnt(10)")
    a.label(L4)
    a("s_waitcnt vmcnt(25)")
    a("s_barrier")
    if WBL2 >= 0:
        Lw = a.newlabel("wb")
        a(f"s_cmp_lg_u32 s{sNW}, {WBL2}")
        a(f"s_cbranch_scc1 {Lw}")
        a(f"s_lshl_b32 s{sT}, s{sM}, 3")
        a(f"s_add_u32 s{sT}, s{sT}, s{sW_}")
        a(f"s_cmp_lg_u32 s{sT}, {31*8+7}")
        a(f"s_cbranch_scc1 {Lw}")
        a("buffer_wbl2 sc1")
        a.label(Lw)
    a(f"s_bitcmp1_b32 {(1 << 4) | (1 << 12)}, s{sNW}")
    a(f"s_addc_u32 s{sT3}, s{sNW}, 8")
    a(f"s_cmp_lt_u32 s{sNW}, 19")
    a(f"s_cbranch_scc1 {L1}")
    a(f"s_add_u32 m0, s{sDstW}, s{sTb}")
    a("s_nop 0")
    for k in range(3):
        if k == 2: a("s_mov_b32 exec_hi, 0")
        a(f"buffer_load_dwordx4 v{vT[1]}, {ws}, s{sSrcW} offen offset:{1024*k} sc1 lds")
    for vm in (23, 18, 13, 8, 3, 0):
        a(f"s_waitcnt vmcnt({vm})")
        a("s_barrier")
    prof_end(a, 1)
    a("s_endpgm")

    a.label(LhB)
    Lb2 = a.newlabel("hb")
    a(f"s_cmp_eq_u32 s{sTrip}, 3")
    a(f"s_cbranch_scc0 {Lb2}")
    a(f"s_mov_b32 s{sT}, {OFF_PF}")
    a(f"buffer_load_dwordx4 v[{PF}:{PF+3}], v{vL16}, {ws}, s{sT} offen sc1")
    a(f"s_cmp_ge_u32 s{sW_}, 4")
    a(f"s_cbranch_scc1 {LhBr}")
    for f in range(5):
        a(f"buffer_load_dwordx2 v[{vRes+2*f}:{vRes+2*f+1}], v{vNat}, s[{SIN}:{SIN+3}], s{sNat} offen offset:{32*f} {os.environ.get('RSC','sc1')}")
    a(f"s_branch {LhBr}")
    a.label(Lb2)
    a(f"s_mov_b32 m0, s{sDstW}")
    a(f"s_add_u32 s{sDstW}, s{sDstW}, {SLOT}")
    for k in range(3):
        dma_piece(k, sSrcW, "sc1")
    a(f"s_add_u32 s{sSrcW}, s{sSrcW}, {SLOT}")
    Lg5 = a.newlabel("hb")
    a(f"s_lshl_b32 s{sT}, s{sM}, 3")
    a(f"s_add_u32 s{sT}, s{sT}, s{sW_}")
    a(f"s_cmp_eq_u32 s{sTrip}, 4")
    a(f"s_cbranch_scc0 {Lg5}")
    a(f"s_branch {LhBr}")
    a.label(Lg5)
    if PF1:
        a(f"s_sub_u32 s{sT2}, s{sTrip}, 5")
        a(f"s_lshl_b32 s{sT2}, s{sT2}, 8")
        a(f"s_add_u32 s{sT}, s{sT}, s{sT2}")
        a(f"s_mul_i32 s{sT}, s{sT}, {PF1*128}")
        a(f"s_add_u32 s{sGp}, s{sT}, {OFF_W1}")
        a(f"v_min_u32 v{vGp}, {PF1-1}, v{vL}")
        a(f"v_lshlrev_b32 v{vGp}, 7, v{vGp}")
    else:
        a(f"v_mov_b32 v{vGp}, 0")
    a(f"s_branch {LhBr}")
    a.label(LhA)
    La1, La3, La6, LaB, Lq, Lq2 = [a.newlabel("ha") for _ in range(6)]
    a(f"s_cmp_eq_u32 s{sTrip}, 1")
    a(f"s_cbranch_scc1 {La1}")
    a(f"s_cmp_eq_u32 s{sTrip}, 3")
    a(f"s_cbranch_scc1 {La3}")
    a(f"s_cmp_eq_u32 s{sTrip}, 6")
    a(f"s_cbranch_scc1 {La6}")
    a(f"s_cmp_ge_u32 s{sTask}, 1280")
    a(f"s_cbranch_scc1 {LhAr}")
    a(f"s_cmp_ge_u32 s{sTask}, 740")
    a(f"s_cbranch_scc1 {LaB}")
    for q in range(4):
        a(f"ds_read_b64_tr_b16 v[{PF+4*q}:{PF+4*q+1}], v{vPa} offset:{32*q}")
        a(f"ds_read_b64_tr_b16 v[{PF+4*q+2}:{PF+4*q+3}], v{vPb} offset:{32*q}")
    for q in range(4):
        a(f"s_lshl_b32 s{sT}, s{sTb}, 2")
        a(f"s_add_u32 s{sT}, s{sT}, {q}")
        a(f"s_mul_i32 s{sT2}, s{sT}, 13108")
        a(f"s_lshr_b32 s{sT2}, s{sT2}, 16")
        a(f"s_mul_i32 s{sT3}, s{sT2}, 5")
        a(f"s_sub_u32 s{sT}, s{sT}, s{sT3}")
        a(f"s_lshl_b32 s{sT}, s{sT}, 10")
        a(f"s_mul_i32 s{sT2}, s{sT2}, s{sPs}")
        a(f"s_add_u32 s{sT}, s{sT}, s{sT2}")
        a(f"s_add_u32 s{sT}, s{sT}, s{sPd}")
        a(f"s_waitcnt lgkmcnt({6-2*q})")
        a(f"buffer_store_dwordx4 v[{PF+4*q}:{PF+4*q+3}], v{vL16}, {ws}, s{sT} offen sc1")
    a(f"s_branch {LhAr}")
    a.label(LaB)
    for q in range(4):
        o = (q >> 1)*2048 + (q & 1)*64
        a(f"ds_read_b64_tr_b16 v[{PF+4*q}:{PF+4*q+1}], v{vPa} offset:{o}")
        a(f"ds_read_b64_tr_b16 v[{PF+4*q+2}:{PF+4*q+3}], v{vPa} offset:{o+512}")
    for r in range(4):
        a(f"v_mov_b32 v{pOne+r}, 0x3f803f80")
    a(f"s_add_u32 s{sT}, s{sPd}, 4096")
    a("s_waitcnt lgkmcnt(0)")
    for q in range(4):
        d = PC + 16*(q & 1)
        c = "0" if q < 2 else f"v[{d}:{d+15}]"
        a(f"v_mfma_f32_32x32x16_bf16 v[{d}:{d+15}], v[{pOne}:{pOne+3}], v[{PF+4*q}:{PF+4*q+3}], {c}")
        a(f"buffer_store_dwordx4 v[{PF+4*q}:{PF+4*q+3}], v{vL16}, {ws}, s{sPd if q < 2 else sT} offen offset:{1024*(q & 1)} sc1")
    a(f"s_lshl_b32 s{sT}, s{sTb}, 8")
    a(f"s_add_u32 s{sT}, s{sT}, {OFF_CS}")
    a("s_nop 7")
    a("s_nop 2")
    a("s_mov_b32 exec_lo, 0")
    a(f"v_mov_b32 v{PC}, v{PC+16}")
    a("s_mov_b32 exec_lo, -1")
    a(f"buffer_atomic_add_f32 v{PC}, v{vL4}, {ws}, s{sT} offen")
    a(f"s_branch {LhAr}")
    a.label(La1)
    a(f"s_lshl_b32 s{sT}, s{sM}, 3")
    a(f"s_add_u32 s{sT}, s{sT}, s{sW_}")
    a(f"s_lshl_b32 s{sT2}, s{sB}, 8")
    a(f"s_add_u32 s{sT}, s{sT}, s{sT2}")
    a(f"s_mul_i32 s{sT}, s{sT}, 1280")
    a(f"v_lshlrev_b32 v{vT[0]}, 7, v{vL}")
    a(f"s_mov_b64 exec, 0x3ff")
    a(f"buffer_load_dword v{vJunk}, v{vT[0]}, s[{SIN}:{SIN+3}], s{sT} offen sc1")
    a(f"s_mov_b64 exec, -1")
    a(f"s_cmp_lg_u32 s{sW_}, 0")
    a(f"s_cbranch_scc1 {LhAr}")
    a(f"s_lshl_b32 s{sT}, s{sB}, 5")
    a(f"s_add_u32 s{sT}, s{sT}, s{sM}")
    a(f"s_lshl_b32 s{sT}, s{sT}, 2")
    a(f"s_add_u32 s{sT}, s{sT}, {OFF_PF}")
    a(f"s_getreg_b32 s{sT2}, hwreg(HW_REG_XCC_ID, 0, 4)")
    a(f"s_add_u32 s{sT2}, s{sT2}, 1")
    a(f"v_mov_b32 v{vT[5]}, s{sT2}")
    a("s_mov_b64 exec, 1")
    a(f"buffer_store_dword v{vT[5]}, v{vZero}, {ws}, s{sT} offen sc1")
    a("s_mov_b64 exec, -1")
    a(f"s_branch {LhAr}")
    a.label(La3)
    a(f"s_mov_b32 s{sT2}, 0")
    a(f"s_mov_b32 s{sT}, {OFF_PF}")
    a.label(Lq)
    a(f"v_min3_u32 v{vT[0]}, v{PF}, v{PF+1}, v{PF+2}")
    a(f"v_min_u32 v{vT[0]}, v{vT[0]}, v{PF+3}")
    a(f"v_cmp_eq_u32 vcc, 0, v{vT[0]}")
    a(f"s_cbranch_vccz {Lq2}")
    a(f"buffer_load_dwordx4 v[{PF}:{PF+3}], v{vL16}, {ws}, s{sT} offen sc1")
    a(f"s_add_u32 s{sT2}, s{sT2}, 1")
    a(f"s_cmp_gt_u32 s{sT2}, {TIMEOUT}")
    a("s_waitcnt vmcnt(0)")
    a(f"s_cbranch_scc0 {Lq}")
    a.label(Lq2)
    a(f"v_max3_u32 v{vT[1]}, v{PF}, v{PF+1}, v{PF+2}")
    a(f"v_max_u32 v{vT[1]}, v{vT[1]}, v{PF+3}")
    a(f"s_getreg_b32 s{sT2}, hwreg(HW_REG_XCC_ID, 0, 4)")
    a(f"s_add_u32 s{sT2}, s{sT2}, 1")
    a(f"v_cmp_ne_u32 vcc, s{sT2}, v{vT[0]}")
    a(f"v_cmp_ne_u32 s[{sCmp}:{sCmp+1}], s{sT2}, v{vT[1]}")
    a(f"s_lshl_b32 s{sT}, s{sB}, 3")
    a("s_nop 1")
    a(f"s_or_b64 s[{sCmp}:{sCmp+1}], s[{sCmp}:{sCmp+1}], vcc")
    a(f"s_lshr_b64 s[{sCmp}:{sCmp+1}], s[{sCmp}:{sCmp+1}], s{sT}")
    a(f"s_and_b32 s{sT}, s{sCmp}, 0xff")
    a(f"s_cselect_b32 s{sFast}, 0, {0 if FORCE_SLOW else 1}")
    a(f"s_branch {LhAr}")
    a.label(La6)
    w1_src(sSrcA)
    a(f"s_branch {LhAr}")
    for f in ool:
        f()

    a.label(Lslow)
    vM, vMn, vAl = vT[0], vT[1], vT[4]
    a(f"s_mov_b32 s{sRedo}, 1")
    a(f"s_mul_i32 s{sT}, s{sKh}, 1280")
    a(f"v_subrev_u32 v{vK1a}, s{sT}, v{vK1b}")
    a(f"v_subrev_u32 v{vK2a}, s{sT}, v{vK2b}")
    a(f"v_subrev_u32 v{vVa}, s{sT}, v{vVb}")
    a(f"v_mov_b32 v{vM}, {f2u(-3.0e38):#x}")
    for r in range(16):
        a(f"v_mov_b32 v{O[1]+r}, 0")
    a(f"s_mov_b32 s{sTrip}, 0")
    Ls = a.newlabel("sl")
    a.label(Ls)
    a(f"s_mul_i32 s{sT}, s{sTrip}, 1280")
    a(f"s_lshr_b32 s{sT2}, s{sTrip}, 3")
    a(f"s_mul_i32 s{sT2}, s{sT2}, 10240")
    a(f"s_add_u32 s{sT}, s{sT}, s{sT2}")
    a(f"s_add_u32 s{sT}, s{sT}, s{sKVb}")
    a(f"buffer_load_dwordx4 v[{K1}:{K1+3}], v{vK1a}, {ws}, s{sT} offen")
    a(f"buffer_load_dwordx2 v[{K2}:{K2+1}], v{vK2a}, {ws}, s{sT} offen")
    a(f"s_mov_b64 exec, s[{sVm}:{sVm+1}]")
    a(f"buffer_load_dwordx4 v[{V[0]}:{V[0]+3}], v{vVa}, {ws}, s{sT} offen")
    a(f"buffer_load_dwordx4 v[{V[1]}:{V[1]+3}], v{vVa}, {ws}, s{sT} offen offset:640")
    a(f"s_mov_b64 exec, -1")
    a("s_waitcnt vmcnt(0)")
    a(qk1(1)); a(qk2(1))
    a("s_nop 7"); a("s_nop 4")
    s0 = Sx[1]
    a(f"v_max3_f32 v{vMn}, v{s0}, v{s0+1}, v{vM}")
    for r in range(2, 16, 2):
        a(f"v_max3_f32 v{vMn}, v{s0+r}, v{s0+r+1}, v{vMn}")
    a(f"v_mov_b32 v{vAl}, v{vMn}")
    a("s_nop 1")
    a(f"v_permlane32_swap_b32 v{vMn}, v{vAl}")
    a(f"v_max_f32 v{vMn}, v{vMn}, v{vAl}")
    a(f"v_sub_f32 v{vAl}, v{vM}, v{vMn}")
    a(f"v_exp_f32 v{vAl}, v{vAl}")
    a(f"v_mov_b32 v{vM}, v{vMn}")
    for r in range(16):
        a(f"v_sub_f32 v{s0+r}, v{s0+r}, v{vMn}")
        a(f"v_mul_f32 v{O[1]+r}, v{O[1]+r}, v{vAl}")
    for g in range(4):
        vgroup(1, g)
    a("s_nop 1")
    a(pv(1, 0)); a(pv(1, 1))
    a(f"s_add_u32 s{sTrip}, s{sTrip}, 1")
    a(f"s_cmp_lt_u32 s{sTrip}, 64")
    a("s_nop 7"); a("s_nop 3")
    a(f"s_cbranch_scc1 {Ls}")
    a(f"s_branch {Lfin}")
    return max(R.hi, G.hi), 8*SLOT

assert all((t*6554) >> 16 == t//10 for t in range(600))
assert all((t*2428) >> 16 == t//27 for t in range(560))
```

```python
class Asm:
    def __init__(self):
        self.lines = []
        self._lab = 0
    def __call__(self, s, *a):
        for ln in s.split("\n"):
            ln = ln.strip()
            if ln:
                self.lines.append("    " + ln)
    def label(self, name):
        self.lines.append(name + ":")
    def newlabel(self, p="L"):
        self._lab += 1
        return f"{p}_{self._lab}"
    def raw(self, s):
        self.lines.append(s)
    def c(self, s):
        self.lines.append("    ; " + s)
    def text(self):
        return "\n".join(self.lines) + "\n"

def vr(b, n=1):
    return f"v{b}" if n == 1 else f"v[{b}:{b+n-1}]"
def sr(b, n=1):
    return f"s{b}" if n == 1 else f"s[{b}:{b+n-1}]"

class Regs:
    def __init__(self, start=0, limit=256):
        self.n = start
        self.limit = limit
        self.hi = start
    def alloc(self, n=1, align=1):
        if n >= 2 and align < 2: align = 2
        b = (self.n + align - 1) // align * align
        self.n = b + n
        self.hi = max(self.hi, self.n)
        assert self.n <= self.limit, f"out of regs {self.n}"
        return b

def kernel_header(a, name):
    a.raw(".text")
    a.raw(f".globl {name}")
    a.raw(".p2align 8")
    a.raw(f".type {name},@function")
    a.label(name)

def kernel_desc(name, nvgpr, nsgpr=100, accum=None):
    if accum is None:
        accum = (nvgpr + 3) // 4 * 4
    return f""".section .rodata,"a"
.p2align 6
.amdhsa_kernel {name}
  .amdhsa_next_free_vgpr {nvgpr}
  .amdhsa_next_free_sgpr {nsgpr}
  .amdhsa_accum_offset {accum}
  .amdhsa_group_segment_fixed_size 0
  .amdhsa_kernarg_size 72
  .amdhsa_user_sgpr_count 2
  .amdhsa_user_sgpr_kernarg_segment_ptr 1
  .amdhsa_system_sgpr_workgroup_id_x 1
.end_amdhsa_kernel
"""

def srd(a, d, base_lo, base_hi, nbytes, off_sgpr=None, off_imm=0):
    if off_sgpr is not None:
        a(f"s_add_u32 s{d}, s{base_lo}, s{off_sgpr}")
        a(f"s_addc_u32 s{d+1}, s{base_hi}, 0")
        if off_imm:
            a(f"s_add_u32 s{d}, s{d}, {off_imm}")
            a(f"s_addc_u32 s{d+1}, s{d+1}, 0")
    elif off_imm:
        a(f"s_add_u32 s{d}, s{base_lo}, {off_imm}")
        a(f"s_addc_u32 s{d+1}, s{base_hi}, 0")
    else:
        a(f"s_mov_b32 s{d}, s{base_lo}")
        a(f"s_mov_b32 s{d+1}, s{base_hi}")
    a(f"s_mov_b32 s{d+2}, {nbytes}")
    a(f"s_mov_b32 s{d+3}, 0x20000")


PROF = False
PROF_OFF = 200*1024*1024
def prof_start(a):
    if not PROF: return
    a("s_memrealtime s[84:85]")
    a("s_memtime s[86:87]")
    for i in range(8):
        a(f"s_mov_b32 s{60+2*i}, 0")
def prof_mark(a, i):
    if not PROF: return
    import os
    a(f"s_mem{'real' if os.environ.get('RTMARK') else ''}time s[{60+2*i}:{61+2*i}]")
def prof_end(a, kidx):
    if not PROF: return
    a("s_waitcnt vmcnt(0) lgkmcnt(0)")
    a("s_memrealtime s[88:89]")
    a("s_memtime s[90:91]")
    a("s_load_dwordx2 s[92:93], s[0:1], 64")
    a("s_mov_b64 exec, -1")
    a("s_waitcnt lgkmcnt(0)")
    a(f"s_add_u32 s92, s92, {PROF_OFF + kidx*256*16*64}")
    a("s_addc_u32 s93, s93, 0")
    a("s_mov_b32 s94, 0x1000000")
    a("s_mov_b32 s95, 0x20000")
    a("v_mov_b32 v2, s84")
    a("v_mov_b32 v3, s88")
    a("s_sub_u32 s90, s90, s86")
    a("v_mov_b32 v4, s90")
    a("s_getreg_b32 s90, hwreg(HW_REG_XCC_ID)")
    a("v_mov_b32 v5, s90")
    for i in range(8):
        import os
        a(f"s_sub_u32 s90, s{60+2*i}, {'0' if os.environ.get('RTMARK') else 's86'}")
        a(f"v_mov_b32 v{6+i}, s90")
    a("v_lshrrev_b32 v1, 6, v0")
    a("v_lshlrev_b32 v1, 6, v1")
    a("s_lshl_b32 s90, s2, 10")
    a("s_mov_b64 exec, 1")
    a("buffer_store_dwordx4 v[2:5], v1, s[92:95], s90 offen")
    a("buffer_store_dwordx4 v[6:9], v1, s[92:95], s90 offen offset:16")
    a("buffer_store_dwordx4 v[10:13], v1, s[92:95], s90 offen offset:32")
```

```python
from asmlib import *
import asmlib, os
from layout import *

SLOT = 20480
TIMEOUT = 200000
MARKSET = os.environ.get('MARKSET', 'main')
_pm = prof_mark
def prof_mark(a, i, set_='main'):
    if set_ == MARKSET: _pm(a, i)
PF1 = int(os.environ.get('PF1', '24'))
PRETOUCH = int(os.environ.get('PRETOUCH', '0'))
KVSC = os.environ.get('KVSC', 'sc1')
FORCE_SLOW = int(os.environ.get('FORCE_SLOW', '0'))
DSC = os.environ.get('DSC', 'sc1')
DSC1 = os.environ.get('DSC1', 'sc1')
OSC = os.environ.get('OSC', '')
WBL2 = int(os.environ.get('WBL2', '-1'))
OUTPF = int(os.environ.get('OUTPF', '0'))
SCHED = {'A': {-1: [0, 1], 0: [2, 3]}, 'B': {-1: [], 0: [0, 1], 1: [2, 3]}, 'C': {-1: [0], 0: [1], 1: [2, 3]}, 'D': {-1: [], 0: [0, 1, 2, 3]}, 'E': {-1: [0, 1, 2, 3]}}[os.environ.get('SCHED', 'B')]
CPRIO = int(os.environ.get('CPRIO', '0'))
MAP = os.environ.get('MAP', 'head')
PFN = int(os.environ.get('PFN', '24'))
ODELAY = int(os.environ.get('ODELAY', '8'))
OGAP = int(os.environ.get('OGAP', '2'))
BARS = [int(x) for x in os.environ.get('BARS', '4,7,10,12,15,18,20,22,25').split(',')]
def _ints(k, d): return [int(x) for x in os.environ.get(k, d).split(',')]
EVA = _ints('EVA', '40,58,72')
EVB = _ints('EVB', '8,14,20')
XF1 = int(os.environ.get('XF1', '14'))
XF2 = int(os.environ.get('XF2', '12'))
BARS3 = [(int(x.rstrip('l')), x.endswith('l')) for x in os.environ.get('BARS3', '5,6,7,8,9,10,11,12,14,16,18,21,24').split(',')]
REREAD = int(os.environ.get('REREAD', '0'))
OGATHER = int(os.environ.get('OGATHER', '0'))
XF0 = int(os.environ.get('XF0', '8'))
B4LATE = int(os.environ.get('B4LATE', '1'))
ROT2 = int(os.environ.get('ROT2', '0'))
WA = int(os.environ.get('WA', '8'))
RESAT = int(os.environ.get('RESAT', '0'))
NST = int(os.environ.get('NST', '0'))
HOTX = int(os.environ.get('HOTX', '0'))
HOTW = int(os.environ.get('HOTW', '0'))
XD = int(os.environ.get('XD', '12'))
XPRE = int(os.environ.get('XPRE', '6'))

def gen_mega(a, name):
    kernel_header(a, name)
    END = f"{name}_end"
    ool = []
    SWS, SIN, SP = 8, 12, 16
    (sW_, sB, sM, sQb, sKh, sT, sT2, sT3, sTrip, sSlotN, sSrcA, sKVb, sWoff,
     sSrcW, sDstW, sTask, sPd, sPs, sTb, sPb, sIa, sIb, sFast, sRedo) = range(20, 44)
    sVm, sCmp = 44, 46
    sPtr = 48
    sOm, sOr = 58, 59
    sRt, sCt, sR1, sC1, sNat, sXo, sTo, sNW = range(76, 84)
    sGp = sNW
    sHead, sAq, sGi = 96, 97, 98
    a("s_cmp_ge_u32 s2, 256")
    a(f"s_cbranch_scc1 {END}")
    prof_start(a)
    a("s_load_dwordx2 s[4:5], s[0:1], 64")
    a("s_load_dwordx2 s[6:7], s[0:1], 0")
    a(f"s_load_dwordx8 s[{sPtr}:{sPtr+7}], s[0:1], 16")
    a(f"s_load_dwordx2 s[{sPtr+8}:{sPtr+9}], s[0:1], 48")
    R = Regs(1)
    vL, vL16, vL4, vOneI, vZero = [R.alloc() for _ in range(5)]
    vT = [R.alloc() for _ in range(6)]
    vA = [R.alloc() for _ in range(3)]
    vNat, vHo, vSplit = [R.alloc() for _ in range(3)]
    vRes = R.alloc(10, 2)
    GBASE = R.n
    vDma = R.alloc()
    vK1b, vK2b, vVb, vK1a, vK2a, vVa = [R.alloc() for _ in range(6)]
    vPa, vPb, vCw, vCr, vOm, vOr = [R.alloc() for _ in range(6)]
    vKp, vGp, vJunk, vWp = [R.alloc() for _ in range(4)]
    Q1 = [R.alloc(4, 4) for _ in range(2)]
    Q2 = [R.alloc(2, 2) for _ in range(2)]
    K1 = R.alloc(4, 4)
    V = [R.alloc(4, 4) for _ in range(2)]
    K2 = R.alloc(2, 2)
    O = [R.alloc(16, 4) for _ in range(2)]
    P = [R.alloc(8, 4) for _ in range(2)]
    Sx = [R.alloc(16, 4) for _ in range(2)]
    PF = R.alloc(16, 4)
    PC = R.alloc(32, 4)
    pOne = R.alloc(4, 4)
    STG = 256 - 20*NST
    assert STG >= PF, (STG, PF)

    a(f"v_lshrrev_b32 v{vT[0]}, 6, v0")
    a(f"v_and_b32 v{vL}, 63, v0")
    a(f"v_readfirstlane_b32 s{sW_}, v{vT[0]}")
    a(f"v_lshlrev_b32 v{vL16}, 4, v{vL}")
    a(f"s_and_b32 s{sB}, s2, 7")
    a(f"s_lshr_b32 s{sM}, s2, 3")
    a(f"s_lshr_b32 s{sKh}, s{sW_}, 2")
    a(f"s_mul_i32 s{sWoff}, s{sW_}, 2560")
    a(f"v_add_u32 v{vDma}, s{sWoff}, v{vL16}")
    if MAP == 'token':
        a(f"s_mov_b32 s{sHead}, s{sM}")
        a(f"s_mov_b32 s{sAq}, s{sB}")
    else:
        a(f"s_lshl_b32 s{sHead}, s{sB}, 2")
        a(f"s_lshr_b32 s{sT}, s2, 6")
        a(f"s_add_u32 s{sHead}, s{sHead}, s{sT}")
        a(f"s_and_b32 s{sAq}, s{sM}, 7")
    a(f"s_mul_i32 s{sKVb}, s{sHead}, 163840")
    a(f"s_add_u32 s{sKVb}, s{sKVb}, {OFF_KV}")
    a(f"s_mov_b32 s{sSrcA}, s{sKVb}")
    a(f"s_add_u32 m0, s{sWoff}, {SLOT}")
    a(f"s_and_b32 s{sT2}, s{sW_}, 3")
    a(f"s_lshl_b32 s{sT2}, s{sT2}, 1")
    a(f"s_lshl_b32 s{sT}, s{sAq}, 3")
    a(f"s_add_u32 s{sT}, s{sT}, s{sT2}")
    a(f"s_add_u32 s{sQb}, s{sT}, s{sKh}")
    a(f"s_mul_i32 s{sT3}, s{sHead}, 81920")
    a(f"s_mul_i32 s{sT2}, s{sQb}, 1280")
    a(f"s_add_u32 s{sT2}, s{sT2}, s{sT3}")
    a(f"s_xor_b32 s{sT}, s{sQb}, 1")
    a(f"s_mul_i32 s{sT}, s{sT}, 1280")
    a(f"s_add_u32 s{sT}, s{sT}, s{sT3}")
    assert OFF_Q == 0
    a(f"v_lshlrev_b32 v{vT[1]}, 3, v{vL}")
    for k in range(2):
        a(f"v_mov_b32 v{Q2[k]}, 0")
        a(f"v_mov_b32 v{Q2[k]+1}, 0")
    a("s_waitcnt lgkmcnt(0)")
    srd(a, SWS, 4, 5, WS_END)
    ws = f"s[{SWS}:{SWS+3}]"
    def dma_piece(k, src, sc=""):
        if k == 2: a("s_mov_b32 exec_hi, 0")
        a(f"buffer_load_dwordx4 v{vDma}, {ws}, s{src} offen offset:{1024*k} {sc} lds")
        if k == 2: a("s_mov_b32 exec_hi, -1")
    for k in range(2):
        dma_piece(k, sSrcA, KVSC)
    a(f"buffer_load_dwordx4 v[{Q1[0]}:{Q1[0]+3}], v{vL16}, {ws}, s{sT} offen")
    a(f"buffer_load_dwordx4 v[{Q1[1]}:{Q1[1]+3}], v{vL16}, {ws}, s{sT2} offen")
    a("s_mov_b32 exec_hi, 0")
    a(f"buffer_load_dwordx4 v{vDma}, {ws}, s{sSrcA} offen offset:2048 {KVSC} lds")
    a(f"buffer_load_dwordx2 v[{Q2[0]}:{Q2[0]+1}], v{vT[1]}, {ws}, s{sT} offen offset:1024")
    a(f"buffer_load_dwordx2 v[{Q2[1]}:{Q2[1]+1}], v{vT[1]}, {ws}, s{sT2} offen offset:1024")
    a("s_mov_b32 exec_hi, -1")
    srd(a, SIN, 6, 7, S*D*2)
    Lnp, Lp1, Lpg, Lpw = [a.newlabel("prep") for _ in range(4)]
    vPs = PC
    vH, vKg, vG1 = PF, PF+1, PF+2
    vT15, vT31 = PF+3, PF+4
    a(f"s_mov_b32 s{SP}, s{sPtr}")
    a(f"s_mov_b32 s{SP+1}, s{sPtr+1}")
    a(f"s_mov_b32 s{SP+2}, {D*D*2}")
    a(f"s_mov_b32 s{SP+3}, 0x20000")
    a(f"v_lshrrev_b32 v{vKg}, 4, v{vL}")
    a(f"v_lshrrev_b32 v{vH}, 5, v{vL}")
    a(f"v_and_b32 v{vG1}, 1, v{vKg}")
    a(f"v_and_b32 v{vT15}, 15, v{vL}")
    a(f"v_and_b32 v{vT31}, 31, v{vL}")
    a(f"v_bfe_u32 v{vT[0]}, v{vL}, 2, 2")
    a(f"v_and_b32 v{vT[2]}, 3, v{vL}")
    a(f"v_lshlrev_b32 v{vT[2]}, 3, v{vT[2]}")
    a(f"v_lshl_add_u32 v{vT[2]}, v{vT[0]}, 7, v{vT[2]}")
    a(f"s_lshl_b32 s{sT}, s{sW_}, 12")
    a(f"s_add_u32 s{sT}, s{sT}, {3*SLOT}")
    a(f"v_add_u32 v{vT[2]}, s{sT}, v{vT[2]}")
    a(f"v_lshl_add_u32 v{vPa}, v{vH}, 11, v{vT[2]}")
    a(f"v_lshl_add_u32 v{vPa}, v{vG1}, 9, v{vPa}")
    a(f"v_add_u32 v{vPb}, 1024, v{vPa}")
    a(f"v_lshrrev_b32 v{vPs}, 3, v{vL}")
    a(f"s_mul_i32 s{sTask}, s2, 5")
    a(f"s_add_u32 s{sTask}, s{sTask}, s{sW_}")
    a(f"s_cmp_ge_u32 s{sW_}, 5")
    a(f"s_cselect_b32 s{sTask}, 9999, s{sTask}")
    a(f"s_cbranch_scc1 {Lnp}")
    a(f"s_mov_b32 s{sT3}, s{sTask}")
    a(f"s_mov_b32 s{sPd}, {OFF_WO}")
    a(f"s_mov_b32 s{sPs}, {20*5120}")
    a(f"s_mov_b32 s{sIa}, 8")
    a(f"s_mov_b32 s{sIb}, 12")
    a(f"s_mov_b32 s{sPb}, 40")
    a(f"s_cmp_lt_u32 s{sTask}, 200")
    a(f"s_cbranch_scc1 {Lpw}")
    a(f"s_mov_b32 s{sIb}, 8")
    a(f"s_mov_b32 s{sPb}, 32")
    a(f"s_mov_b32 s{SP+2}, {DFF*D*2}")
    a(f"s_cmp_lt_u32 s{sTask}, 740")
    a(f"s_cbranch_scc0 {Lp1}")
    a(f"s_mov_b32 s{SP}, s{sPtr+6}")
    a(f"s_mov_b32 s{SP+1}, s{sPtr+7}")
    a(f"s_sub_u32 s{sT3}, s{sTask}, 200")
    a(f"s_mov_b32 s{sPd}, {OFF_W2}")
    a(f"s_mov_b32 s{sPs}, {54*5120}")
    a.label(Lpw)
    a(f"s_mul_i32 s{sT}, s{sT3}, 6554")
    a(f"s_lshr_b32 s{sT}, s{sT}, 16")
    a(f"s_mul_i32 s{sT2}, s{sT}, 10")
    a(f"s_sub_u32 s{sTb}, s{sT3}, s{sT2}")
    a(f"s_bfe_u32 s{sT2}, s{sT}, 0x10001")
    a(f"s_mul_i32 s{sT2}, s{sT2}, 27")
    a(f"s_lshr_b32 s{sT3}, s{sT}, 1")
    a(f"s_add_u32 s{sT2}, s{sT2}, s{sT3}")
    a(f"s_and_b32 s{sT3}, s{sT}, 1")
    a(f"s_add_u32 s{sT2}, s{sT2}, s{sT3}")
    a(f"s_cmp_lt_u32 s{sTask}, 200")
    a(f"s_cselect_b32 s{sT2}, s{sT}, s{sT2}")
    a(f"s_mul_i32 s{sT2}, s{sT2}, 5120")
    a(f"s_add_u32 s{sPd}, s{sPd}, s{sT2}")
    a(f"s_mul_i32 s{sPb}, s{sPb}, s{sT}")
    a(f"s_mov_b32 s{sT3}, 1280")
    a(f"s_sub_u32 s{sT2}, s{sTask}, 160")
    a(f"s_cmp_lt_u32 s{sT2}, 40")
    a(f"s_cbranch_scc0 {Lpg}")
    a(f"s_mul_i32 s{sPb}, s{sT}, 160")
    a(f"s_sub_u32 s{sPb}, s{sPb}, {16*160 - 16}")
    a(f"s_mov_b32 s{sIa}, 40")
    a(f"s_mov_b32 s{sIb}, 40")
    a(f"v_lshl_add_u32 v{vPs}, v{vH}, 4, v{vPs}")
    a(f"v_lshl_add_u32 v{vPa}, v{vKg}, 10, v{vT[2]}")
    a(f"v_add_u32 v{vPb}, 512, v{vPa}")
    a(f"s_branch {Lpg}")
    a.label(Lp1)
    a(f"s_mov_b32 s{SP}, s{sPtr+4}")
    a(f"s_mov_b32 s{SP+1}, s{sPtr+5}")
    a(f"s_sub_u32 s{sT3}, s{sTask}, 740")
    a(f"s_mul_i32 s{sT}, s{sT3}, 2428")
    a(f"s_lshr_b32 s{sT}, s{sT}, 16")
    a(f"s_mul_i32 s{sT2}, s{sT}, 27")
    a(f"s_sub_u32 s{sTb}, s{sT3}, s{sT2}")
    a(f"s_lshr_b32 s{sT2}, s{sTb}, 1")
    a(f"s_mul_i32 s{sPd}, s{sT2}, 163840")
    a(f"s_lshl_b32 s{sT2}, s{sT}, 12")
    a(f"s_sub_u32 s{sT3}, {81920 + 39*2048}, s{sT2}")
    a(f"s_bitcmp1_b32 s{sTb}, 0")
    a(f"s_cselect_b32 s{sT2}, s{sT3}, s{sT2}")
    a(f"s_mov_b32 s{sPs}, 2048")
    a(f"s_cselect_b32 s{sPs}, {(-2048) & 0xffffffff:#x}, s{sPs}")
    a(f"s_add_u32 s{sPd}, s{sPd}, s{sT2}")
    a(f"s_add_u32 s{sPd}, s{sPd}, {OFF_W1}")
    a(f"v_lshl_add_u32 v{vPa}, v{vH}, 10, v{vT[2]}")
    a(f"v_lshl_add_u32 v{vPa}, v{vG1}, 5, v{vPa}")
    a(f"s_lshl_b32 s{sPb}, s{sT}, 5")
    a(f"s_mov_b32 s{sT3}, 3456")
    a.label(Lpg)
    a(f"s_mul_i32 s{sPb}, s{sPb}, s{sT3}")
    a(f"s_lshl_b32 s{sT2}, s{sTb}, 7")
    a(f"s_add_u32 s{sPb}, s{sPb}, s{sT2}")
    a(f"s_mul_i32 s{sIa}, s{sIa}, s{sT3}")
    a(f"s_mul_i32 s{sIb}, s{sIb}, s{sT3}")
    a(f"v_mul_lo_u32 v{vPs}, v{vPs}, s{sT3}")
    a(f"v_and_b32 v{vT[3]}, 7, v{vL}")
    a(f"v_lshl_add_u32 v{vPs}, v{vT[3]}, 4, v{vPs}")
    a.label(Lnp)
    a(f"v_and_b32 v{vT[0]}, 0x13, v{vL}")
    a(f"v_bfe_u32 v{vT[1]}, v{vL}, 2, 1")
    a(f"v_lshl_add_u32 v{vT[0]}, v{vT[1]}, 3, v{vT[0]}")
    a(f"v_bfe_u32 v{vT[1]}, v{vL}, 3, 1")
    a(f"v_lshl_add_u32 v{vT[0]}, v{vT[1]}, 2, v{vT[0]}")
    a(f"s_mul_i32 s{sT}, s{sKh}, 1280")
    a(f"v_lshl_add_u32 v{vK2b}, v{vT[0]}, 3, s{sT}")
    a(f"v_add_u32 v{vK2b}, 1024, v{vK2b}")
    a(f"v_lshl_add_u32 v{vK1b}, v{vT[0]}, 4, s{sT}")
    a(f"v_lshl_add_u32 v{vK1b}, v{vH}, 9, v{vK1b}")
    a(f"v_lshl_add_u32 v{vVb}, v{vT31}, 4, s{sT}")
    a(f"v_mul_u32_u24 v{vT[1]}, 320, v{vH}")
    a(f"v_add_u32 v{vVb}, v{vVb}, v{vT[1]}")
    a(f"v_add_u32 v{vVb}, 10240, v{vVb}")
    a(f"s_mov_b32 s{sSlotN}, {SLOT}")
    a(f"v_add_u32 v{vK1a}, s{sSlotN}, v{vK1b}")
    a(f"v_add_u32 v{vK2a}, s{sSlotN}, v{vK2b}")
    a(f"v_add_u32 v{vVa}, s{sSlotN}, v{vVb}")
    a(f"s_mov_b32 s{sVm}, 0xfffff")
    a(f"s_mov_b32 s{sVm+1}, 0xfffff")
    for r in range(8):
        a(f"v_mov_b32 v{V[0]+r}, 0x3f803f80")
        a(f"v_mov_b32 v{P[1]+r}, 0")
    for r in range(16):
        a(f"v_mov_b32 v{O[0]+r}, 0")
        a(f"v_mov_b32 v{O[1]+r}, 0")
    a(f"s_mov_b32 s{sTrip}, 0")
    a(f"s_mov_b32 s{sFast}, 0")
    a(f"s_mov_b32 s{sRedo}, 0")
    a(f"v_lshlrev_b32 v{vL4}, 2, v{vL}")
    a(f"v_mov_b32 v{vOneI}, 1")
    a(f"v_mov_b32 v{vZero}, 0")
    a(f"v_mov_b32 v{vA[0]}, v{vL16}")
    a(f"v_add_u32 v{vA[1]}, {3*SLOT}, v{vL16}")
    a(f"v_add_u32 v{vA[2]}, {6*SLOT}, v{vL16}")
    a(f"s_lshl_b32 s{sT}, s{sW_}, 12")
    a(f"v_add_u32 v{vCw}, s{sT}, v{vL16}")
    a(f"v_xor_b32 v{vCr}, 0x4000, v{vCw}")
    a(f"s_mul_i32 s{sOm}, s{sQb}, {2*20*1024}")
    a(f"s_add_u32 s{sOm}, s{sOm}, {OFF_O}")
    a(f"s_lshl_b32 s{sT}, s{sHead}, 7")
    a(f"s_add_u32 s{sOr}, s{sOm}, s{sT}")
    a(f"s_add_u32 s{sOr}, s{sOr}, 16384")
    a(f"s_lshl_b32 s{sT}, s{sHead}, 9")
    a(f"s_add_u32 s{sOm}, s{sOm}, s{sT}")
    a(f"v_mul_u32_u24 v{vT[2]}, {20*1024}, v{vG1}")
    a(f"v_lshl_add_u32 v{vOr}, v{vT15}, 3, v{vT[2]}")
    a(f"v_lshl_add_u32 v{vOm}, v{vT15}, 4, v{vT[2]}")
    a(f"v_lshl_add_u32 v{vOm}, v{vH}, 8, v{vOm}")
    a(f"s_and_b32 s{sT2}, s{sW_}, 3")
    a(f"s_and_b32 s{sRt}, s{sM}, 3")
    a(f"s_lshl_b32 s{sRt}, s{sRt}, 2")
    a(f"s_lshl_b32 s{sT}, s{sB}, 4")
    a(f"s_add_u32 s{sRt}, s{sRt}, s{sT}")
    a(f"s_add_u32 s{sRt}, s{sRt}, s{sT2}")
    a(f"s_lshr_b32 s{sCt}, s{sM}, 2")
    a(f"s_and_b32 s{sR1}, s{sM}, 1")
    a(f"s_lshl_b32 s{sR1}, s{sR1}, 2")
    a(f"s_lshl_b32 s{sT}, s{sB}, 3")
    a(f"s_add_u32 s{sR1}, s{sR1}, s{sT}")
    a(f"s_add_u32 s{sR1}, s{sR1}, s{sT2}")
    a(f"s_lshr_b32 s{sC1}, s{sM}, 1")
    a(f"v_mul_u32_u24 v{vNat}, 1280, v{vT15}")
    a(f"v_lshl_add_u32 v{vNat}, v{vKg}, 3, v{vNat}")
    a(f"s_mul_i32 s{sT}, s{sRt}, {16*1280}")
    a(f"s_mul_i32 s{sT2}, s{sCt}, 160")
    a(f"s_add_u32 s{sNat}, s{sT}, s{sT2}")
    a(f"v_lshlrev_b32 v{vHo}, 4, v{vT15}")
    a(f"v_lshl_add_u32 v{vHo}, v{vH}, 9, v{vHo}")
    a(f"v_lshl_add_u32 v{vHo}, v{vG1}, 3, v{vHo}")
    a(f"v_lshlrev_b32 v{vSplit}, 3, v{vT15}")
    a(f"v_lshl_add_u32 v{vSplit}, v{vKg}, 8, v{vSplit}")
    a(f"s_mul_i32 s{sSrcW}, s{sCt}, {20*5120}")
    a(f"s_add_u32 s{sSrcW}, s{sSrcW}, {OFF_WO}")
    a(f"s_add_u32 s{sDstW}, s{sWoff}, {3*SLOT}")
    a(f"s_and_b32 s{sT}, s{sW_}, 3")
    a(f"s_mul_i32 s{sT}, s{sT}, 5120")
    a(f"v_add_u32 v{vWp}, s{sT}, v{vL16}")
    a(f"v_min_u32 v{vKp}, 19, v{vL}")
    a(f"v_lshlrev_b32 v{vKp}, 7, v{vKp}")
    a(f"v_add_u32 v{vKp}, s{sWoff}, v{vKp}")
    a(f"v_add_u32 v{vKp}, {SLOT}, v{vKp}")
    if PRETOUCH:
        a(f"s_lshl_b32 s{sT}, s{sM}, 3")
        a(f"s_add_u32 s{sT}, s{sT}, s{sW_}")
        a(f"s_mul_i32 s{sT2}, s{sB}, {16*20480}")
        a(f"s_mul_i32 s{sT3}, s{sT}, {10*128}")
        a(f"s_add_u32 s{sT2}, s{sT2}, s{sT3}")
        a(f"s_add_u32 s{sT2}, s{sT2}, {OFF_O}")
        a(f"v_min_u32 v{vT[0]}, {9 if PRETOUCH == 1 else 3}, v{vL}")
        a(f"v_mul_u32_u24 v{vT[0]}, 640, v{vT[0]}")
        a(f"v_add_u32 v{vGp}, s{sT2}, v{vT[0]}")
        a(f"v_add_u32 v{vT[1]}, {OFF_H - OFF_O - 1280}, v{vGp}")
        a(f"v_cmp_lt_u32 vcc, 1, v{vL}")
        a(f"s_mul_i32 s{sT2}, s{sB}, {16*55296}")
        a(f"s_mul_i32 s{sT3}, s{sT}, {27*128}")
        a(f"v_cndmask_b32 v{vGp}, v{vGp}, v{vT[1]}, vcc")
        a(f"s_add_u32 s{sT2}, s{sT2}, s{sT3}")
        a(f"s_add_u32 s{sT2}, s{sT2}, {OFF_H1 - 2560}")
        a(f"v_add_u32 v{vT[1]}, s{sT2}, v{vT[0]}")
        a(f"v_cmp_lt_u32 vcc, {3 if PRETOUCH == 1 else 64}, v{vL}")
        a(f"s_and_b32 s{sT2}, s{sT}, 15")
        a(f"s_lshl_b32 s{sT2}, s{sT2}, 7")
        a(f"v_cndmask_b32 v{vGp}, v{vGp}, v{vT[1]}, vcc")
        a(f"s_bfe_u32 s{sT3}, s{sT}, 0x30004")
        a(f"s_lshl_b32 s{sT3}, s{sT3}, 14")
        a(f"s_add_u32 s{sT2}, s{sT2}, s{sT3}")
        a(f"s_lshl_b32 s{sT3}, s{sB}, 11")
        a(f"s_add_u32 s{sT2}, s{sT2}, s{sT3}")
        a(f"s_add_u32 s{sT2}, s{sT2}, {OFF_ST - 4*128}")
        a(f"v_writelane_b32 v{vGp}, s{sT2}, 10")
        a(f"s_mov_b32 s{sGp}, 0")
    else:
        a(f"v_mov_b32 v{vGp}, 0")
        a(f"s_mov_b32 s{sGp}, s{sKVb}")
    KVW = MAP == 'token'
    GW = bool(PRETOUCH or PFN)
    a(f"s_mov_b32 s{sGi}, {128 if PRETOUCH else 0}")
    if KVW: a(f"buffer_load_dword v{vJunk}, v{vKp}, {ws}, s{sSrcA} offen sc1")
    prof_mark(a, 0)
    a(f"s_waitcnt vmcnt({int(KVW)})")
    a("s_barrier")
    def prep_dma(ks):
        L = a.newlabel("prep")
        a(f"s_cmp_ge_u32 s{sW_}, 5")
        a(f"s_cbranch_scc1 {L}")
        a(f"s_lshl_b32 s{sT}, s{sW_}, 12")
        for k in ks:
            a(f"s_add_u32 m0, s{sT}, {3*SLOT + 1024*k}")
            a("s_nop 0")
            a(f"buffer_load_dwordx4 v{vPs}, s[{SP}:{SP+3}], s{sPb} offen lds")
            a(f"s_add_u32 s{sPb}, s{sPb}, s{sIb if k == 1 else sIa}")
        a.label(L)
    def w1_src(dst):
        a(f"s_min_u32 s{dst}, s{sC1}, 13")
        a(f"s_mul_i32 s{dst}, s{dst}, 163840")
        a(f"s_add_u32 s{dst}, s{dst}, {OFF_W1}")
    def kread(off):
        a(f"ds_read_b128 v[{K1}:{K1+3}], v{vK1a} offset:{off}")
        a(f"ds_read_b64 v[{K2}:{K2+1}], v{vK2a} offset:{off}")
    def vread(off):
        a(f"s_mov_b64 exec, s[{sVm}:{sVm+1}]")
        a(f"ds_read_b128 v[{V[0]}:{V[0]+3}], v{vVa} offset:{off}")
        a(f"ds_read_b128 v[{V[1]}:{V[1]+3}], v{vVa} offset:{off+640}")
        a(f"s_mov_b64 exec, -1")
    def qk1(x): return f"v_mfma_f32_32x32x16_bf16 v[{Sx[x]}:{Sx[x]+15}], v[{K1}:{K1+3}], v[{Q1[x]}:{Q1[x]+3}], 0"
    def qk2(x): return f"v_mfma_f32_32x32x8_bf16 v[{Sx[x]}:{Sx[x]+15}], v[{K2}:{K2+1}], v[{Q2[x]}:{Q2[x]+1}], v[{Sx[x]}:{Sx[x]+15}]"
    def pv(x, k): return f"v_mfma_f32_32x32x16_bf16 v[{O[x]}:{O[x]+15}], v[{V[k]}:{V[k]+3}], v[{P[x]+4*k}:{P[x]+4*k+3}], v[{O[x]}:{O[x]+15}]"
    def vgroup(x, g):
        s = Sx[x] + 4*g
        for i in range(4):
            a(f"v_exp_f32 v{s+i}, v{s+i}")
        a(f"v_cvt_pk_bf16_f32 v{P[x]+2*g}, v{s}, v{s+1}")
        a(f"v_cvt_pk_bf16_f32 v{P[x]+2*g+1}, v{s+2}, v{s+3}")
    prof_mark(a, 1)
    kread(0)
    if SCHED[-1]: prep_dma(SCHED[-1])
    def next_unitA():
        a(f"s_add_u32 s{sSrcA}, s{sSrcA}, {SLOT}")
        a(f"s_add_u32 s{sSlotN}, s{sSlotN}, {SLOT}")
        a(f"s_cmp_ge_u32 s{sSlotN}, {3*SLOT}")
        a(f"s_cselect_b32 s{sSlotN}, 0, s{sSlotN}")
        a(f"s_add_u32 m0, s{sSlotN}, s{sWoff}")
    a("s_waitcnt lgkmcnt(0)")
    a(qk1(0)); a(qk2(0))
    next_unitA()
    a("s_nop 5")
    Lm, LhB, LhBr, LhA, LhAr = [a.newlabel("att") for _ in range(5)]
    a.label(Lm)
    for u in range(4):
        a(f"s_setprio {(2-u) % 4}")
        a(qk1(1))
        vgroup(0, 0)
        a(qk2(1))
        if u == 3:
            if KVW: a(f"buffer_load_dword v{vJunk}, v{vKp}, {ws}, s{sSrcA} offen sc1")
            if GW: a(f"buffer_load_dword v{vJunk}, v{vGp}, {ws}, s{sGp} offen sc1")
            if MARKSET == "wait" and asmlib.PROF:
                a("s_memtime s[92:93]")
                a("s_waitcnt lgkmcnt(0)")
            a(f"s_waitcnt vmcnt({int(KVW) + int(GW)})")
            if MARKSET == "wait" and asmlib.PROF:
                for i in range(7):
                    a(f"s_mov_b32 s{60+2*i}, s{62+2*i}")
                a("s_memtime s[74:75]")
                a("s_waitcnt lgkmcnt(0)")
                a("s_sub_u32 s74, s74, s92")
                a("s_add_u32 s74, s74, s86")
            a("s_barrier")
            if MARKSET == "trip" and asmlib.PROF:
                for i in range(7):
                    a(f"s_mov_b32 s{60+2*i}, s{62+2*i}")
                a("s_memtime s[74:75]")
                a("s_waitcnt lgkmcnt(0)")
            a(f"v_add_u32 v{vK1a}, s{sSlotN}, v{vK1b}")
            a(f"v_add_u32 v{vK2a}, s{sSlotN}, v{vK2b}")
            kread(0)
            if GW: a(f"s_add_u32 s{sGp}, s{sGp}, s{sGi}")
        else:
            kread((u+1)*2560)
        vgroup(0, 1)
        a(pv(1, 0))
        if u == 0: dma_piece(0, sSrcA, KVSC)
        if u == 1: dma_piece(2, sSrcA, KVSC)
        vgroup(0, 2)
        a(pv(1, 1))
        vread(u*2560)
        vgroup(0, 3)
        a("s_waitcnt lgkmcnt(2)")
        a(qk1(0))
        vgroup(1, 0)
        a(qk2(0))
        if u == 0: dma_piece(1, sSrcA, KVSC)
        vgroup(1, 1)
        a("s_waitcnt lgkmcnt(0)")
        a(pv(0, 0))
        vgroup(1, 2)
        a(pv(0, 1))
        if u == 3:
            a(f"v_add_u32 v{vVa}, s{sSlotN}, v{vVb}")
            a(f"s_branch {LhA}")
            a.label(LhAr)
            next_unitA()
            a(f"s_add_u32 s{sTrip}, s{sTrip}, 1")
            a(f"s_cmp_lt_u32 s{sTrip}, 8")
        vgroup(1, 3)
    a(f"s_cbranch_scc1 {Lm}")
    prof_mark(a, 2)
    prof_mark(a, 0, "tail")
    a("s_setprio 0")
    a(pv(1, 0))
    a(pv(1, 1))
    for g in range(3):
        a(f"ds_write_b128 v{vCw}, v[{O[0]+4*g}:{O[0]+4*g+3}] offset:{1024*g}")
    a(f"ds_write_b32 v{vCw}, v{O[0]+12} offset:3072")
    def flag_addr(dst, phase, s_tb32, s_idx=None):
        a(f"s_lshl_b32 s{dst}, s{s_tb32}, 7")
        if s_idx is not None:
            a(f"s_lshl_b32 s{sT}, s{s_idx}, 2")
            a(f"s_add_u32 s{dst}, s{dst}, s{sT}")
        a(f"s_add_u32 s{dst}, s{dst}, {OFF_FL + phase*64*128}")
    sFw, sFr = sPd, sPs
    if MAP == 'token':
        flag_addr(sFw, 0, sQb, sHead)
    else:
        a(f"s_lshl_b32 s{sT2}, s{sAq}, 3")
        flag_addr(sFw, 0, sT2, sHead)
    a("s_waitcnt lgkmcnt(0)")
    a("s_barrier")
    for g in range(3):
        a(f"ds_read_b128 v[{O[0]+4*g}:{O[0]+4*g+3}], v{vCr} offset:{1024*g}")
    a(f"ds_read_b32 v{O[0]+12}, v{vCr} offset:3072")
    a("s_waitcnt lgkmcnt(0)")
    prof_mark(a, 1, "tail")
    Ob = O[1]
    a(f"v_add_f32 v{Ob+12}, v{Ob+12}, v{O[0]+12}")
    for r in range(0, 12, 2):
        a(f"v_pk_add_f32 v[{Ob+r}:{Ob+r+1}], v[{Ob+r}:{Ob+r+1}], v[{O[0]+r}:{O[0]+r+1}]")
    Lslow, Lfin, Lok = a.newlabel("slow"), a.newlabel("fin"), a.newlabel("ok")
    a.label(Lfin)
    a(f"v_rcp_f32 v{Ob+14}, v{Ob+12}")
    a("s_nop 0")
    for r in range(0, 12, 2):
        a(f"v_pk_mul_f32 v[{Ob+r}:{Ob+r+1}], v[{Ob+r}:{Ob+r+1}], v[{Ob+14}:{Ob+15}] op_sel_hi:[1,0]")
    for k in range(6):
        a(f"v_cvt_pk_bf16_f32 v{P[0]+k}, v{Ob+2*k}, v{Ob+2*k+1}")
    def dual(fn):
        Ls, Lr = a.newlabel("wt"), a.newlabel("wt")
        a(f"s_cmp_eq_u32 s{sFast}, 0")
        a(f"s_cbranch_scc1 {Ls}")
        fn("")
        a.label(Lr)
        def out():
            a.label(Ls)
            fn("sc1")
            a(f"s_branch {Lr}")
        ool.append(out)
    def put_flag(sc):
        a("s_waitcnt vmcnt(0)")
        a("s_mov_b64 exec, 1")
        a(f"buffer_store_dword v{vOneI}, v{vZero}, {ws}, s{sFw} offen {sc}")
        a("s_mov_b64 exec, -1")
    def o_store(sc):
        sc = sc or DSC
        a(f"buffer_store_dwordx4 v[{P[0]}:{P[0]+3}], v{vOm}, {ws}, s{sOm} offen {sc}")
        a(f"s_mov_b32 exec_hi, 0")
        a(f"buffer_store_dwordx2 v[{P[0]+4}:{P[0]+5}], v{vOr}, {ws}, s{sOr} offen {sc}")
        a(f"s_mov_b32 exec_hi, -1")
    o_store("sc1")
    a(f"s_cmp_lg_u32 s{sRedo}, 0")
    a(f"s_cbranch_scc1 {Lok}")
    a(f"v_mov_b32 v{vT[3]}, v{Ob+12}")
    for r in range(12):
        a(f"v_fma_f32 v{vT[3]}, v{Ob+r}, 0, v{vT[3]}")
    a(f"s_mov_b32 s{sT}, {f2u(2.0**-64):#x}")
    a(f"v_cmp_nle_f32 s[{sCmp}:{sCmp+1}], s{sT}, v{vT[3]}")
    a(f"s_mov_b32 s{sT}, {f2u(2.0**64):#x}")
    a(f"v_cmp_nge_f32 vcc, s{sT}, v{vT[3]}")
    a("s_nop 1")
    a(f"s_or_b64 vcc, vcc, s[{sCmp}:{sCmp+1}]")
    a(f"s_cbranch_vccnz {Lslow}")
    a.label(Lok)
    prof_mark(a, 2, "tail")
    if MAP == 'token': dual(put_flag)
    else: a("s_waitcnt vmcnt(0)")
    prof_mark(a, 3, "tail")
    a("s_barrier")
    if MAP != 'token':
        L = a.newlabel("fl")
        a(f"s_cmp_lg_u32 s{sW_}, 4")
        a(f"s_cbranch_scc1 {L}")
        put_flag("sc1")
        a.label(L)
    Lprod = a.newlabel("prod")
    a(f"s_cmp_ge_u32 s{sW_}, 4")
    a(f"s_cbranch_scc1 {Lprod}")

    def wait_flags(n, delay=0, gap=0):
        Lp, Lq = a.newlabel("poll"), a.newlabel("poll")
        if delay: a(f"s_sleep {delay}")
        a(f"s_mov_b32 s{sT2}, 0")
        a(f"s_mov_b64 exec, {(1 << n) - 1:#x}" if n < 32 else "s_mov_b32 exec_hi, 0")
        a.label(Lp)
        a(f"buffer_load_dword v{vT[5]}, v{vL4}, {ws}, s{sFr} offen sc1")
        a(f"s_add_u32 s{sT2}, s{sT2}, 1")
        a(f"s_cmp_gt_u32 s{sT2}, {TIMEOUT}")
        a(f"s_cbranch_scc1 {Lq}")
        a("s_waitcnt vmcnt(0)")
        a(f"v_cmp_ne_u32 vcc, 1, v{vT[5]}")
        if gap:
            a(f"s_cbranch_vccz {Lq}")
            a(f"s_sleep {gap}")
            a(f"s_branch {Lp}")
        else:
            a(f"s_cbranch_vccnz {Lp}")
        a.label(Lq)
        a("s_mov_b64 exec, -1")

    G = Regs(GBASE)
    vSt = G.alloc(6, 2)
    vB0, vB1, vPl = G.alloc(), G.alloc(), G.alloc()
    vMf = G.alloc(2, 2)
    vCf = [G.alloc(2, 2) for _ in range(4)]
    NWP = 6
    LA = NWP - 1
    WP = [G.alloc(4, 4) for _ in range(NWP)]
    ACC = G.alloc(32, 4)
    XS = []
    while G.n + 4 <= 256:
        XS.append(G.alloc(4, 4))
    sT32, sX1, sX2, sXp, sFw2, sFr2 = sTask, sXo, sIa, sIb, sPb, sKVb
    SH = SP

    sRp = sSlotN
    def rot2(dst, n):
        a(f"s_and_b32 s{dst}, s{sM}, 3")
        a(f"s_lshl_b32 s{dst}, s{dst}, 1")
        a(f"s_add_u32 s{dst}, s{dst}, s{sCt}")
        for _ in range(2):
            a(f"s_sub_u32 s{sT}, s{dst}, {n}")
            a(f"s_cmp_ge_u32 s{dst}, {n}")
            a(f"s_cselect_b32 s{dst}, s{sT}, s{dst}")
    class Eng:
        def __init__(e):
            e.vm, e.lg = [], []
            e.free = list(XS)
            e.xreg = {}
            e.page = None
        def n(e): return sum(1 for l in a.lines if l.startswith("    ") and not l.startswith("    ;"))
        def vmem(e, ins, tag): a(ins); e.vm.append(tag)
        def lds(e, ins, tag): a(ins); e.lg.append(tag)
        def wait(e, vt=(), lt=()):
            parts = []
            for q, tags, nm, cap in ((e.vm, vt, "vmcnt", 63), (e.lg, lt, "lgkmcnt", 15)):
                idx = [k for k, t in enumerate(q) if t in tags]
                if idx:
                    parts.append(f"{nm}({min(len(q) - 1 - idx[-1], cap)})")
                    del q[:idx[-1]+1]
            if parts: a("s_waitcnt " + " ".join(parts))
        def xload(e, key, base, s, split=False):
            x = e.free.pop(0)
            e.xreg[key] = x
            if e.page != (base, s//4):
                e.page = (base, s//4)
                if ROT2 and base == sX2 and s//4 < 13:
                    c = s//4
                    if c in (0, 7):
                        rot2(sRp, 7 if c == 0 else 6)
                    else:
                        a(f"s_add_u32 s{sRp}, s{sRp}, 1")
                        a(f"s_cmp_eq_u32 s{sRp}, {7 if c < 7 else 6}")
                        a(f"s_cselect_b32 s{sRp}, 0, s{sRp}")
                    a(f"s_lshl_b32 s{sXp}, s{sRp}, 12")
                    a(f"s_add_u32 s{sXp}, s{sXp}, s{base}")
                    if c >= 7: a(f"s_add_u32 s{sXp}, s{sXp}, {7*4096}")
                else:
                    a(f"s_add_u32 s{sXp}, s{base}, {0 if HOTX else (s//4)*4096}")
            o = (s % 4)*1024
            if split:
                e.vmem(f"buffer_load_dwordx2 v[{x}:{x+1}], v{vSplit}, {ws}, s{sXp} offen offset:{o} sc1", key)
                e.vmem(f"buffer_load_dwordx2 v[{x+2}:{x+3}], v{vSplit}, {ws}, s{sXp} offen offset:{o+128} sc1", key)
            else:
                e.vmem(f"buffer_load_dwordx4 v[{x}:{x+3}], v{vL16}, {ws}, s{sXp} offen offset:{o} sc1", key)
    E = Eng()
    def wread(ops, i):
        if i >= len(ops) or ops[i].get('g') is None: return
        g = ops[i]['g']
        slot = (g//20 + 3) % 8
        w = WP[i % NWP]
        E.lds(f"ds_read_b128 v[{w}:{w+3}], v{vA[slot//3]} offset:{(slot % 3)*SLOT + (g % 20)*1024}", ('w', i))
    def run(ops, loads, fills, events, bars, maxfly, tag):
        lastuse = {}
        for i, o in enumerate(ops):
            if o.get('x') is not None: lastuse[o['x']] = i
        firstuse = {}
        for i, o in reversed(list(enumerate(ops))):
            if o.get('x') is not None: firstuse[o['x']] = i
        wrote = {}
        q = len(ops)//6
        for i, o in enumerate(ops):
            if i and i % q == 0 and i//q <= 5:
                prof_mark(a, i//q, tag)
                if tag == MARKSET and asmlib.PROF:
                    a("s_waitcnt lgkmcnt(0)"); E.lg.clear()
            d, kind = o['acc'], o['kind']
            n = 4 if kind == 's' else 16
            c = "0" if o.get('zero') else f"v[{d}:{d+n-1}]"
            if kind == 'c':
                assert not any(f[3] == o['needs'] for f in fills), "correction operands not ready"
                a(f"v_mfma_f32_32x32x8_bf16 v[{d}:{d+15}], v[{o['a']}:{o['a']+1}], v[{vMf}:{vMf+1}], {c}")
            else:
                assert o['x'] in E.xreg, (i, o)
                E.wait([o['x']], [('w', i)])
                w, x = WP[i % NWP], E.xreg[o['x']]
                op = "v_mfma_f32_16x16x32_bf16" if kind == 's' else "v_mfma_f32_32x32x16_bf16"
                a(f"{op} v[{d}:{d+n-1}], v[{w}:{w+3}], v[{x}:{x+3}], {c}")
            wrote[d] = E.n()
            if i in bars: a("s_barrier")
            wread(ops, i + LA)
            for k in [k for k, u in lastuse.items() if u == i-1]:
                E.free.append(E.xreg.pop(k))
            for fn in events.get(i, []): fn()
            burst = o.get('burst', 1)
            while burst and loads and E.free and (loads[0][4] is None or loads[0][4]()) and \
                    sum(1 for k in E.xreg if firstuse[k] > i) < maxfly(i):
                key, base, s_, split, _ = loads.pop(0)
                E.xload(key, base, s_, split)
                burst -= 1
            room = 2 if kind == 's' else 5
            while room and fills and fills[0][0] <= i and (fills[0][1] is None or E.n() - wrote[fills[0][1]] >= 13):
                fills.pop(0)[2]()
                room -= 1
        for k in list(E.xreg):
            E.free.append(E.xreg.pop(k))
        assert not loads and not fills, (loads, len(fills))
        prof_mark(a, 6, tag)
    def emark(i):
        prof_mark(a, i, "ev")
        if MARKSET == "ev" and asmlib.PROF:
            a("s_waitcnt lgkmcnt(0)"); E.lg.clear()
    def I(s_): return lambda: a(s_)
    def lane_reduce(q, ops_):
        out = []
        for op in ops_:
            out += [f"v_mov_b32 v{q+2}, v{q}", f"v_mov_b32 v{q+3}, v{q+1}", "s_nop 1\n" + f"{op} v{q}, v{q+2}", f"{op} v{q+1}, v{q+3}",
                    f"v_add_f32 v{q}, v{q}, v{q+2}", f"v_add_f32 v{q+1}, v{q+1}, v{q+3}"]
        return out
    def flag_store(srd_, s_addr):
        def fn(sc):
            a("s_mov_b64 exec, 1")
            a(f"buffer_store_dword v{vOneI}, v{vZero}, {srd_}, s{s_addr} offen {sc}")
            a("s_mov_b64 exec, -1")
        dual(fn)
        E.vm.append('flag')

    HACC = ACC
    ops0 = [dict(kind='s', acc=HACC + 4*f, g=5*s_ + f, x=(0, s_)) for s_ in range(20) for f in range(5)]
    for i_ in range(LA): wread(ops0, i_)
    a(f"s_lshr_b32 s{sT32}, s{sRt}, 1")
    if MAP == 'token':
        flag_addr(sFr, 0, sT32)
    else:
        a(f"s_lshl_b32 s{sT2}, s{sB}, 3")
        flag_addr(sFr, 0, sT2)
    a(f"s_mul_i32 s{sX1}, s{sRt}, {20*1024}")
    a(f"s_add_u32 s{sX1}, s{sX1}, {OFF_O}")
    for k in range(10):
        a(f"v_lshlrev_b32 v{HACC+2*k}, 16, v{vRes+k}")
        a(f"v_and_b32 v{HACC+2*k+1}, 0xffff0000, v{vRes+k}")
    a(f"s_min_u32 s{sTb}, s{sC1}, 13")
    a(f"s_lshl_b32 s{sTb}, s{sTb}, 9")
    a(f"s_add_u32 s{sTb}, s{sTb}, {OFF_CS}")
    a(f"v_and_b32 v{vT[0]}, 0x7c, v{vL4}")
    for f in range(4):
        a(f"buffer_load_dword v{vCf[f]}, v{vT[0]}, {ws}, s{sTb} offen offset:{128*f} sc1")
    a(f"s_mul_i32 s{sTo}, s{sT32}, 40960")
    a(f"s_and_b32 s{sT3}, s{sRt}, 1")
    a(f"s_lshl_b32 s{sT2}, s{sT3}, 8")
    a(f"s_add_u32 s{sTo}, s{sTo}, s{sT2}")
    a(f"s_mul_i32 s{sT2}, s{sCt}, 5120")
    a(f"s_add_u32 s{sTo}, s{sTo}, s{sT2}")
    a(f"s_add_u32 s{sTo}, s{sTo}, {OFF_H}")
    a(f"s_add_u32 s{sOm}, s{sTo}, 4096")
    a(f"s_lshl_b32 s{sT2}, s{sCt}, 1")
    a(f"s_add_u32 s{sT3}, s{sT3}, s{sT2}")
    flag_addr(sFw, 1, sT32, sT3)
    flag_addr(sFw2, 2, sR1, sC1)
    flag_addr(sFr2, 2, sT32)
    a(f"s_lshl_b32 s{sOr}, s{sCt}, 14")
    a(f"s_lshl_b32 s{sT2}, s{sRt}, 7")
    a(f"s_add_u32 s{sOr}, s{sOr}, s{sT2}")
    a(f"s_add_u32 s{sOr}, s{sOr}, {OFF_ST}")
    a(f"v_lshlrev_b32 v{vB0}, 1, v{vL4}")
    a(f"v_lshrrev_b32 v{vB1}, 5, v{vL}")
    a(f"s_mul_i32 s{sX2}, s{sRt}, {54*1024}")
    a(f"s_add_u32 s{sX2}, s{sX2}, {OFF_H1}")
    srd(a, SH, 4, 5, WS_END)
    a(f"s_cmp_ge_u32 s{sC1}, 14")
    a(f"s_cselect_b32 s{SH+2}, 0, s{SH+2}")
    srd(a, SIN, sPtr+8, sPtr+9, S*D*2)
    sh = f"s[{SH}:{SH+3}]"
    if OGATHER:
        a(f"v_min_u32 v{vT[1]}, 19, v{vL}")
        a(f"s_lshl_b32 s{sT}, s{sCt}, 7")
        a(f"v_lshl_add_u32 v{vT[1]}, v{vT[1]}, 10, s{sT}")
    prof_mark(a, 4, "tail")
    if MAP == 'token': wait_flags(32)
    else: wait_flags(32, ODELAY, OGAP)
    prof_mark(a, 5, "tail")
    prof_mark(a, 3)
    prof_mark(a, 0, "g0")
    if asmlib.PROF:
        a("s_waitcnt lgkmcnt(0)"); E.lg.clear()
    if OGATHER:
        E.vmem(f"buffer_load_dword v{vT[3]}, v{vT[1]}, {ws}, s{sX1} offen sc1", 'junk')
    loads0 = [[(0, s_), sX1, s_, s_ >= 16, None] for s_ in range(20)]
    for _ in range(XPRE):
        key, base, s_, split, _g = loads0.pop(0)
        E.xload(key, base, s_, split)
    def split_bf16(v, t, pattern):
        out = [f"v_cvt_pk_bf16_f32 v{t}, v{v}, v{v}", f"v_and_b32 v{v+1}, 0xffff0000, v{t}", f"v_sub_f32 v{v+1}, v{v}, v{v+1}"]
        if pattern == 'hl':
            out += [f"v_cvt_pk_bf16_f32 v{v}, v{v}, v{v+1}", f"v_mov_b32 v{v+1}, v{v}"]
        else:
            out += [f"v_cvt_pk_bf16_f32 v{v+1}, v{v+1}, v{v+1}", f"v_mov_b32 v{v}, v{t}"]
        return out
    for f in range(4):
        for x in split_bf16(vCf[f], vT[0], 'hl'): a(x)
    flag_addr(sFr, 1, sR1)
    run(ops0, loads0, [], {}, set() if B4LATE else {len(ops0)-1}, lambda i: XF0, "g0")
    a("s_nop 3")
    for f in range(5):
        for k in range(2):
            a(f"v_cvt_pk_bf16_f32 v{vRes+2*f+k}, v{HACC+4*f+2*k}, v{HACC+4*f+2*k+1}")
        a(f"buffer_store_dwordx2 v[{vRes+2*f}:{vRes+2*f+1}], v{vHo}, {ws}, s{sTo if f < 4 else sOm} offen offset:{1024*(f % 4)} sc1")
    a(f"v_pk_add_f32 v[{vSt}:{vSt+1}], v[{HACC}:{HACC+1}], v[{HACC+2}:{HACC+3}]")
    a(f"v_pk_mul_f32 v[{vSt+2}:{vSt+3}], v[{HACC}:{HACC+1}], v[{HACC}:{HACC+1}]")
    for k in range(1, 10):
        r = HACC + 2*k
        if k > 1:
            a(f"v_pk_add_f32 v[{vSt}:{vSt+1}], v[{vSt}:{vSt+1}], v[{r}:{r+1}]")
        a(f"v_pk_fma_f32 v[{vSt+2}:{vSt+3}], v[{r}:{r+1}], v[{r}:{r+1}], v[{vSt+2}:{vSt+3}]")
    a(f"v_add_f32 v{vSt}, v{vSt}, v{vSt+1}")
    a(f"v_add_f32 v{vSt+1}, v{vSt+2}, v{vSt+3}")
    for x in lane_reduce(vSt, ("v_permlane32_swap_b32", "v_permlane16_swap_b32")): a(x)
    a(f"s_mov_b64 exec, 0xffff")
    a(f"buffer_store_dwordx2 v[{vSt}:{vSt+1}], v{vB0}, {ws}, s{sOr} offen sc1")
    a(f"s_mov_b64 exec, -1")
    if B4LATE: a("s_barrier")

    NX = len(XS)
    ops = []
    for s_ in range(40):
        for b_ in range(2):
            ops.append(dict(kind='b', acc=ACC + 16*b_, g=100 + 2*s_ + b_, x=(1, s_), zero=(s_ == 0)))
    for b_ in range(2): ops.append(dict(kind='c', acc=ACC + 16*b_, a=vCf[b_], needs='mean'))
    iB = len(ops)
    for b_ in range(2, 4): ops.append(dict(kind='c', acc=ACC + 16*(b_ & 1), a=vCf[b_], zero=True, needs='mean'))
    KEEP = NX - 1
    for j_ in range(40):
        s_ = 39 - j_
        for b_ in range(2):
            ops.append(dict(kind='b', acc=ACC + 16*b_, g=180 + 2*j_ + b_, x=(1, s_) if j_ < KEEP else (3, s_)))
    i2 = len(ops)
    for s_ in range(54):
        for f in range(5):
            ops.append(dict(kind='s', acc=ACC + 4*f, g=260 + 5*s_ + f, x=(2, s_), zero=(s_ == 0)))
    for i_ in range(LA): wread(ops, i_)
    a(f"s_mul_i32 s{sX1}, s{sR1}, {40*1024}")
    a(f"s_add_u32 s{sX1}, s{sX1}, {OFF_H}")
    a(f"v_and_b32 v{vT[2]}, 31, v{vL}")
    a(f"v_lshlrev_b32 v{vT[2]}, 3, v{vT[2]}")
    a(f"v_lshl_add_u32 v{vT[2]}, v{vB1}, 16, v{vT[2]}")
    a(f"s_lshl_b32 s{sT3}, s{sR1}, 8")
    a(f"s_add_u32 s{sT3}, s{sT3}, {OFF_ST}")
    if REREAD:
        a(f"v_min_u32 v{vT[0]}, 19, v{vL}")
        a(f"v_lshrrev_b32 v{vT[1]}, 1, v{vT[0]}")
        a(f"v_and_b32 v{vT[0]}, 1, v{vT[0]}")
        a(f"v_lshlrev_b32 v{vT[0]}, 7, v{vT[0]}")
        a(f"v_lshl_add_u32 v{vT[0]}, v{vT[1]}, 9, v{vT[0]}")
    a("s_waitcnt vmcnt(0)")
    flag_store(ws, sFw)
    if REREAD:
        a(f"buffer_load_dword v{vT[3]}, v{vT[0]}, {ws}, s{sTo} offen sc1")
        a(f"v_bfe_u32 v{vT[1]}, v{vL}, 4, 1")
        a(f"v_mul_u32_u24 v{vT[1]}, {54*1024}, v{vT[1]}")
        a(f"v_and_b32 v{vT[0]}, 15, v{vL}")
        a(f"v_lshl_add_u32 v{vT[1]}, v{vT[0]}, 7, v{vT[1]}")
    prof_mark(a, 4)
    prof_mark(a, 7, "g0")
    a(f"v_bfe_u32 v{vT[4]}, v{vL}, 4, 1")
    a(f"v_mul_u32_u24 v{vB0}, {54*1024}, v{vT[4]}")
    a(f"v_lshl_add_u32 v{vB0}, v{vB1}, 8, v{vB0}")
    a(f"v_and_b32 v{vT[4]}, 15, v{vL}")
    a(f"v_lshl_add_u32 v{vB0}, v{vT[4]}, 4, v{vB0}")
    a(f"s_mul_i32 s{sTo}, s{sR1}, {2*54*1024}")
    a(f"s_lshl_b32 s{sT}, s{sC1}, 11")
    a(f"s_add_u32 s{sTo}, s{sTo}, s{sT}")
    a(f"s_add_u32 s{sTo}, s{sTo}, {OFF_H1}")
    wait_flags(16)
    E.vm.clear(); E.page = None
    prof_mark(a, 5)
    prof_mark(a, 0, "g1")
    if asmlib.PROF:
        a("s_waitcnt lgkmcnt(0)"); E.lg.clear()
    state = dict(A=False, B=False)
    loads = [[(1, s_), sX1, s_, False, None] for s_ in range(40)]
    loads += [[(3, s_), sX1, s_, False, None] for s_ in range(39 - KEEP, -1, -1)]
    loads += [[(2, s_), sX2, s_, False, (lambda: state['A']) if s_ < 28 else (lambda: state['B'])] for s_ in range(54)]
    for _ in range(XPRE):
        key, base, s_, split, _g = loads.pop(0)
        E.xload(key, base, s_, split)
    for k in range(4):
        E.vmem(f"buffer_load_dword v{vSt+k}, v{vT[2]}, {ws}, s{sT3} offen sc1", 'st1')
        if k < 3:
            a(f"s_add_u32 s{sT3}, s{sT3}, 16384")
    fills, events = [], {}
    def ev(i_, fn): events.setdefault(i_, []).append(fn)
    fills.append((30, None, lambda: E.wait(['st1']), 'mean'))
    for x in [f"v_add_f32 v{vSt}, v{vSt}, v{vSt+1}", f"v_add_f32 v{vSt+2}, v{vSt+2}, v{vSt+3}", f"v_add_f32 v{vSt}, v{vSt}, v{vSt+2}",
              f"v_mov_b32 v{vSt+1}, v{vSt}", f"s_nop 1\nv_permlane32_swap_b32 v{vSt}, v{vSt+1}", f"v_add_f32 v{vSt}, v{vSt}, v{vSt+1}",
              f"v_mul_f32 v{vMf}, {f2u(-1.0/D):#x}, v{vSt}"] + split_bf16(vMf, vT[0], 'hh') + \
             [f"s_mov_b32 exec_lo, 0\nv_mov_b32 v{vMf}, 0\nv_mov_b32 v{vMf+1}, 0\ns_mov_b32 exec_lo, -1"]:
        fills.append((30, None, I(x), 'mean'))
    def h1_epilogue(tag_):
        def fn():
            a("s_nop 7")
            a("s_nop 2")
            for b_ in range(2):
                A_ = ACC + 16*b_
                for p in range(2):
                    for k in range(4*p, 4*p+4):
                        a(f"v_cvt_pk_bf16_f32 v{A_+k}, v{A_+2*k}, v{A_+2*k+1}")
                    for k in range(4*p, 4*p+4):
                        a(f"v_pk_max_i16 v{A_+k}, v{A_+k}, 0")
                for p in range(2):
                    E.vmem(f"buffer_store_dwordx4 v[{A_+4*p}:{A_+4*p+3}], v{vB0}, {sh}, s{sTo} offen offset:{1024*b_+512*p} sc1", tag_)
            a("s_nop 1")
        return fn
    def publish(tag_):
        def fn():
            assert not any(f[3] == tag_ for f in fills)
            emark(0 if tag_ == 'stA' else 4)
            E.wait([tag_])
            emark(1 if tag_ == 'stA' else 5)
            flag_store(sh, sFw2)
            if REREAD:
                E.vmem(f"buffer_load_dword v{vT[5]}, v{vT[1]}, {sh}, s{sTo} offen sc1", 'junk')
            if tag_ == 'stA':
                a(f"s_add_u32 s{sFw2}, s{sFw2}, {64*128}")
                a(f"s_add_u32 s{sTo}, s{sTo}, {28*1024}")
                a(f"s_cmp_ge_u32 s{sC1}, 13")
                a(f"s_cselect_b32 s{SH+2}, 0, s{SH+2}")
        return fn
    def poll(n):
        def fn():
            a(f"v_min_u32 v{vT[4]}, {4*(n-1)}, v{vL4}")
            E.vmem(f"buffer_load_dword v{vPl}, v{vT[4]}, {ws}, s{sFr2} offen sc1", 'poll')
        return fn
    def check(key):
        def fn():
            Ls_, Lr_ = a.newlabel("spin"), a.newlabel("spin")
            emark(2 if key == 'A' else 6)
            E.wait(['poll'])
            a(f"v_cmp_ne_u32 vcc, 1, v{vPl}")
            a(f"s_cbranch_vccnz {Ls_}")
            a.label(Lr_)
            emark(3 if key == 'A' else 7)
            def out():
                L_ = a.newlabel("spin")
                a.label(Ls_)
                a(f"s_mov_b32 s{sT2}, 0")
                a.label(L_)
                a(f"buffer_load_dword v{vPl}, v{vT[4]}, {ws}, s{sFr2} offen sc1")
                a(f"s_add_u32 s{sT2}, s{sT2}, 1")
                a(f"s_cmp_gt_u32 s{sT2}, {TIMEOUT}")
                a("s_waitcnt vmcnt(0)")
                a(f"s_cbranch_scc1 {Lr_}")
                a(f"v_cmp_ne_u32 vcc, 1, v{vPl}")
                a(f"s_cbranch_vccnz {L_}")
                a(f"s_branch {Lr_}")
            ool.append(out)
            state[key] = True
            if key == 'A':
                a(f"s_add_u32 s{sFr2}, s{sFr2}, {64*128}")
        return fn
    fills.append((iB - 1, None, h1_epilogue('stA'), 'stA'))
    ev(iB + EVA[0], publish('stA'))
    ev(iB + EVA[1], poll(14))
    ev(iB + EVA[2], check('A'))
    for i_ in range(iB + EVA[2], i2): ops[i_]['burst'] = 4
    ops[i2-1]['burst'] = 16
    fills.append((i2 - 1, None, h1_epilogue('stB'), 'stB'))
    ev(i2 + 5*EVB[0], publish('stB'))
    ev(i2 + 5*EVB[1], poll(13))
    ev(i2 + 5*EVB[2], check('B'))
    def st2():
        a(f"v_and_b32 v{vT[0]}, 15, v{vL}")
        a(f"v_lshlrev_b32 v{vT[2]}, 3, v{vT[0]}")
        a(f"v_lshrrev_b32 v{vT[0]}, 4, v{vL}")
        a(f"v_lshl_add_u32 v{vT[2]}, v{vT[0]}, 15, v{vT[2]}")
        a(f"s_lshl_b32 s{sT3}, s{sRt}, 7")
        a(f"s_add_u32 s{sT3}, s{sT3}, {OFF_ST}")
        E.vmem(f"buffer_load_dwordx2 v[{vSt}:{vSt+1}], v{vT[2]}, {ws}, s{sT3} offen sc1", 'st2')
        a(f"s_add_u32 s{sT3}, s{sT3}, 16384")
        E.vmem(f"buffer_load_dwordx2 v[{vSt+4}:{vSt+5}], v{vT[2]}, {ws}, s{sT3} offen sc1", 'st2')
    ev(i2 + 5*30, st2)
    q = vSt
    RES = []
    def claim():
        for _ in range(5): RES.append(E.free.pop())
    ev(i2 + 5, claim)
    fills.append((i2 + 5*42, None, lambda: E.wait(['st2']), 'fin'))
    for x in [f"v_add_f32 v{q}, v{q}, v{q+4}", f"v_add_f32 v{q+1}, v{q+1}, v{q+5}"] + \
             lane_reduce(q, ("v_permlane32_swap_b32", "v_permlane16_swap_b32")) + \
             [f"v_mul_f32 v{q}, {f2u(1.0/D):#x}, v{q}", f"v_mul_f32 v{q+1}, {f2u(1.0/D):#x}, v{q+1}", f"v_fma_f32 v{q+1}, -v{q}, v{q}, v{q+1}",
              f"v_max_f32 v{q+1}, 0, v{q+1}", f"v_add_f32 v{q+1}, {f2u(EPS):#x}, v{q+1}", f"v_rsq_f32 v{q}, v{q+1}"] + \
             []:
        fills.append((i2 + 5*42, None, I(x), 'fin'))
    for k in range(10):
        fills.append((i2 + 5*42, None, lambda k=k: a(f"v_lshlrev_b32 v{RES[k//2]+2*(k%2)}, 16, v{vRes+k}"), 'fin'))
        fills.append((i2 + 5*42, None, lambda k=k: a(f"v_and_b32 v{RES[k//2]+2*(k%2)+1}, 0xffff0000, v{vRes+k}"), 'fin'))
    last_of = {}
    for i_, o in enumerate(ops):
        if o.get('g') is not None: last_of[o['g']//20] = i_
    bars = [last_of[c] - (LA - 1 if late else 0) for c, late in BARS3]
    ev(iB - 1, lambda: prof_mark(a, 6))
    ev(i2 - 1, lambda: prof_mark(a, 7))
    if asmlib.PROF and MARKSET == 'main':
        for i_ in (iB - 1, i2 - 1):
            ev(i_, lambda: (a("s_waitcnt lgkmcnt(0)"), E.lg.clear()))
    run(ops, loads, fills, events, set(bars), lambda i: XF1 if i < iB + EVA[2] else XF2, "g1")
    a("s_nop 3")
    for f in range(5):
        for k in range(2):
            r = ACC + 4*f + 2*k
            h = RES[f] + 2*k
            a(f"v_pk_fma_f32 v[{r}:{r+1}], v[{r}:{r+1}], v[{vSt}:{vSt+1}], v[{h}:{h+1}] op_sel_hi:[1,0,1]")
        for k in range(2):
            a(f"v_cvt_pk_bf16_f32 v{vRes+2*f+k}, v{ACC+4*f+2*k}, v{ACC+4*f+2*k+1}")
        a(f"buffer_store_dwordx2 v[{vRes+2*f}:{vRes+2*f+1}], v{vNat}, s[{SIN}:{SIN+3}], s{sNat} offen offset:{32*f}")
    prof_end(a, 1)
    a.label(END)
    a("s_endpgm")

    a.label(Lprod)
    if os.environ.get('NOW') == '2':
        for _ in range(len(bars) + 1): a("s_barrier")
        a("s_endpgm")
    vW = vT[0]
    sPo = sWoff
    a(f"s_sub_u32 s{sT}, s{sW_}, 4")
    a(f"s_mul_i32 s{sPo}, s{sT}, 5120")
    a(f"v_add_u32 v{vW}, s{sPo}, v{vL16}")
    a(f"s_mul_i32 s{sTb}, s{sT}, 2560")
    a(f"v_add_u32 v{vT[1]}, s{sTb}, v{vL16}")
    def chunk(src, dst):
        a(f"s_add_u32 m0, s{dst}, s{sPo}")
        a(f"s_add_u32 s{sT}, s{src}, 4096")
        for k in range(4):
            a(f"buffer_load_dwordx4 v{vW}, {ws}, s{src} offen offset:{1024*k} sc1 lds")
        a(f"s_add_u32 m0, m0, 4096")
        a(f"s_add_u32 s{src}, s{src}, {0 if HOTW else SLOT}")
        a(f"buffer_load_dwordx4 v{vW}, {ws}, s{sT} offen sc1 lds")
        a(f"s_add_u32 s{dst}, s{dst}, {SLOT}")
        a(f"s_cmp_ge_u32 s{dst}, {8*SLOT}")
        a(f"s_cselect_b32 s{dst}, 0, s{dst}")
    sNC = sTrip
    def issue(lo, hi):
        full = [c for c in range(lo, hi) if c < 26]
        for g_ in ([c for c in full if c < 13], [c for c in full if 13 <= c < 13+NST], [c for c in full if c >= 13+NST]):
            if not g_: continue
            if 13 <= g_[0] < 13+NST:
                for c in g_:
                    slot = (c + 3) % 8
                    a(f"v_add_u32 v{vT[2]}, {slot*SLOT}, v{vW}" if slot else f"v_mov_b32 v{vT[2]}, v{vW}")
                    for j_ in range(5):
                        r_ = STG + 20*(c-13) + 4*j_
                        a(f"ds_write_b128 v{vT[2]}, v[{r_}:{r_+3}] offset:{1024*j_}")
                continue
            if g_[0] == 13+NST:
                a(f"s_mul_i32 s{sSrcW}, s{sCt}, {54*5120}")
                a(f"s_add_u32 s{sSrcW}, s{sSrcW}, {OFF_W2 + NST*SLOT}")
                a(f"s_mov_b32 s{sDstW}, {((13+NST+3) % 8)*SLOT}")
            if False:
                n_ = 7 if g_[0] == 13 else 6
                a(f"s_mul_i32 s{sX1}, s{sCt}, {54*5120}")
                a(f"s_add_u32 s{sX1}, s{sX1}, {OFF_W2 + (g_[0]-13)*SLOT}")
                a(f"s_add_u32 s{sX2}, s{sX1}, {n_*SLOT}")
                if ROT2:
                    rot2(sRp, n_)
                    a(f"s_mul_i32 s{sRp}, s{sRp}, {SLOT}")
                    a(f"s_add_u32 s{sSrcW}, s{sX1}, s{sRp}")
                else:
                    a(f"s_mov_b32 s{sSrcW}, s{sX1}")
            L = a.newlabel("pl")
            a(f"s_mov_b32 s{sNC}, {len(g_)}")
            a.label(L)
            chunk(sSrcW, sDstW)
            a(f"s_sub_u32 s{sNC}, s{sNC}, 1")
            a(f"s_cmp_lg_u32 s{sNC}, 0")
            a(f"s_cbranch_scc1 {L}")
        if hi > 26 and lo <= 26:
            a(f"s_add_u32 m0, s{sDstW}, s{sTb}")
            a("s_nop 0")
            for k in range(3):
                if k == 2: a("s_mov_b32 exec_hi, 0")
                a(f"buffer_load_dwordx4 v{vT[1]}, {ws}, s{sSrcW} offen offset:{1024*k} sc1 lds")
    w1_src(sSrcW)
    a(f"s_mov_b32 s{sDstW}, 0")
    issue(5, 8)
    done = 8
    allb = [-LA] + bars
    for bi, bp in enumerate(allb):
        nxt = allb[bi+1] if bi+1 < len(allb) else len(ops)
        need = max(o['g']//20 for o in ops[max(bp+LA, 0):nxt+LA] if o.get('g') is not None)
        assert need < done, (bp, need, done)
        younger = sum((3 if c == 26 else 5) for c in range(need+1, done) if not 13 <= c < 13+NST)
        a(f"s_waitcnt vmcnt({younger}) lgkmcnt(0)")
        a("s_barrier")
        freed = max([4] + [c for c, l_ in last_of.items() if l_ <= bp])
        hi = min(freed + 9, 27)
        if bi: hi = min(hi, max(freed + 1 + WA, 13))
        if hi > done:
            issue(done, hi)
            done = hi
    assert done == 27
    prof_end(a, 1)
    a("s_endpgm")

    def job_prep2():
        LaB, Le = a.newlabel("ha"), a.newlabel("ha")
        a(f"s_cmp_ge_u32 s{sTask}, 1280")
        a(f"s_cbranch_scc1 {Le}")
        a(f"s_cmp_ge_u32 s{sTask}, 740")
        a(f"s_cbranch_scc1 {LaB}")
        for q in range(4):
            a(f"ds_read_b64_tr_b16 v[{PF+4*q}:{PF+4*q+1}], v{vPa} offset:{32*q}")
            a(f"ds_read_b64_tr_b16 v[{PF+4*q+2}:{PF+4*q+3}], v{vPb} offset:{32*q}")
        for q in range(4):
            a(f"s_lshl_b32 s{sT}, s{sTb}, 2")
            a(f"s_add_u32 s{sT}, s{sT}, {q}")
            a(f"s_mul_i32 s{sT2}, s{sT}, 13108")
            a(f"s_lshr_b32 s{sT2}, s{sT2}, 16")
            a(f"s_mul_i32 s{sT3}, s{sT2}, 5")
            a(f"s_sub_u32 s{sT}, s{sT}, s{sT3}")
            a(f"s_lshl_b32 s{sT}, s{sT}, 10")
            a(f"s_mul_i32 s{sT2}, s{sT2}, s{sPs}")
            a(f"s_add_u32 s{sT}, s{sT}, s{sT2}")
            a(f"s_add_u32 s{sT}, s{sT}, s{sPd}")
            a(f"s_waitcnt lgkmcnt({6-2*q})")
            a(f"buffer_store_dwordx4 v[{PF+4*q}:{PF+4*q+3}], v{vL16}, {ws}, s{sT} offen sc1")
        a(f"s_branch {Le}")
        a.label(LaB)
        for q in range(4):
            o = (q >> 1)*2048 + (q & 1)*64
            a(f"ds_read_b64_tr_b16 v[{PF+4*q}:{PF+4*q+1}], v{vPa} offset:{o}")
            a(f"ds_read_b64_tr_b16 v[{PF+4*q+2}:{PF+4*q+3}], v{vPa} offset:{o+512}")
        for r in range(4):
            a(f"v_mov_b32 v{pOne+r}, 0x3f803f80")
        a(f"s_add_u32 s{sT}, s{sPd}, s{sPs}")
        a("s_waitcnt lgkmcnt(0)")
        for q in range(4):
            d = PC + 16*(q & 1)
            c = "0" if q < 2 else f"v[{d}:{d+15}]"
            a(f"v_mfma_f32_32x32x16_bf16 v[{d}:{d+15}], v[{pOne}:{pOne+3}], v[{PF+4*q}:{PF+4*q+3}], {c}")
            a(f"buffer_store_dwordx4 v[{PF+4*q}:{PF+4*q+3}], v{vL16}, {ws}, s{sPd if q < 2 else sT} offen offset:{1024*(q & 1)} sc1")
        a(f"s_lshl_b32 s{sT}, s{sTb}, 8")
        a(f"s_add_u32 s{sT}, s{sT}, {OFF_CS}")
        a("s_nop 7")
        a("s_nop 2")
        a("s_mov_b32 exec_lo, 0")
        a(f"v_mov_b32 v{PC}, v{PC+16}")
        a("s_mov_b32 exec_lo, -1")
        a(f"buffer_atomic_add_f32 v{PC}, v{vL4}, {ws}, s{sT} offen")
        a.label(Le)
    def job_xwarm():
        a(f"s_lshl_b32 s{sT}, s{sM}, 3")
        a(f"s_add_u32 s{sT}, s{sT}, s{sW_}")
        a(f"s_lshl_b32 s{sT2}, s{sB}, 8")
        a(f"s_add_u32 s{sT}, s{sT}, s{sT2}")
        a(f"s_mul_i32 s{sT}, s{sT}, 1280")
        a(f"v_lshlrev_b32 v{vT[0]}, 7, v{vL}")
        a(f"s_mov_b64 exec, 0x3ff")
        a(f"buffer_load_dword v{vJunk}, v{vT[0]}, s[{SIN}:{SIN+3}], s{sT} offen sc1")
        a(f"s_mov_b64 exec, -1")
    def job_xres():
        L = a.newlabel("ha")
        a(f"s_cmp_ge_u32 s{sW_}, 4")
        a(f"s_cbranch_scc1 {L}")
        for f in range(5):
            a(f"buffer_load_dwordx2 v[{vRes+2*f}:{vRes+2*f+1}], v{vNat}, s[{SIN}:{SIN+3}], s{sNat} offen offset:{32*f} sc1")
        a.label(L)
    def job_flag():
        L = a.newlabel("ha")
        a(f"s_cmp_lg_u32 s{sW_}, 7")
        a(f"s_cbranch_scc1 {L}")
        a(f"s_lshl_b32 s{sT}, s{sB}, 5")
        a(f"s_add_u32 s{sT}, s{sT}, s{sM}")
        a(f"s_lshl_b32 s{sT}, s{sT}, 2")
        a(f"s_add_u32 s{sT}, s{sT}, {OFF_PF}")
        a(f"s_getreg_b32 s{sT2}, hwreg(HW_REG_XCC_ID, 0, 4)")
        a(f"s_add_u32 s{sT2}, s{sT2}, 1")
        a(f"v_mov_b32 v{vT[5]}, s{sT2}")
        a("s_mov_b64 exec, 1")
        a(f"buffer_store_dword v{vT[5]}, v{vZero}, {ws}, s{sT} offen sc1")
        a("s_mov_b64 exec, -1")
        a.label(L)
    def job_poll():
        a(f"s_mov_b32 s{sT}, {OFF_PF}")
        a(f"buffer_load_dwordx4 v[{PF}:{PF+3}], v{vL16}, {ws}, s{sT} offen sc1")
    def job_check():
        Lq, Lq2 = a.newlabel("ha"), a.newlabel("ha")
        a(f"s_mov_b32 s{sT2}, 0")
        a(f"s_mov_b32 s{sT}, {OFF_PF}")
        a.label(Lq)
        a(f"v_min3_u32 v{vT[0]}, v{PF}, v{PF+1}, v{PF+2}")
        a(f"v_min_u32 v{vT[0]}, v{vT[0]}, v{PF+3}")
        a(f"v_cmp_eq_u32 vcc, 0, v{vT[0]}")
        a(f"s_cbranch_vccz {Lq2}")
        a(f"buffer_load_dwordx4 v[{PF}:{PF+3}], v{vL16}, {ws}, s{sT} offen sc1")
        a(f"s_add_u32 s{sT2}, s{sT2}, 1")
        a(f"s_cmp_gt_u32 s{sT2}, {TIMEOUT}")
        a("s_waitcnt vmcnt(0)")
        a(f"s_cbranch_scc0 {Lq}")
        a.label(Lq2)
        a(f"v_max3_u32 v{vT[1]}, v{PF}, v{PF+1}, v{PF+2}")
        a(f"v_max_u32 v{vT[1]}, v{vT[1]}, v{PF+3}")
        a(f"s_getreg_b32 s{sT2}, hwreg(HW_REG_XCC_ID, 0, 4)")
        a(f"s_add_u32 s{sT2}, s{sT2}, 1")
        a(f"v_cmp_ne_u32 vcc, s{sT2}, v{vT[0]}")
        a(f"v_cmp_ne_u32 s[{sCmp}:{sCmp+1}], s{sT2}, v{vT[1]}")
        a(f"s_lshl_b32 s{sT}, s{sB}, 3")
        a("s_nop 1")
        a(f"s_or_b64 s[{sCmp}:{sCmp+1}], s[{sCmp}:{sCmp+1}], vcc")
        a(f"s_lshr_b64 s[{sCmp}:{sCmp+1}], s[{sCmp}:{sCmp+1}], s{sT}")
        a(f"s_and_b32 s{sT}, s{sCmp}, 0xff")
        a(f"s_cselect_b32 s{sFast}, 0, {0 if FORCE_SLOW else 1}")
    def job_w():
        a(f"s_mov_b32 m0, s{sDstW}")
        a(f"s_add_u32 s{sDstW}, s{sDstW}, {SLOT}")
        for k in range(3):
            dma_piece(k, sSrcW, "sc1")
        a(f"s_add_u32 s{sSrcW}, s{sSrcW}, {SLOT}")
    def job_stage(ks):
        def fn():
            L = a.newlabel("ha")
            a(f"s_cmp_lt_u32 s{sW_}, 4")
            a(f"s_cbranch_scc1 {L}")
            a(f"s_mul_i32 s{sT2}, s{sCt}, {54*5120}")
            for k in ks:
                a(f"s_add_u32 s{sT}, s{sT2}, {OFF_W2 + k*SLOT}")
                for j_ in range(4):
                    a(f"buffer_load_dwordx4 v[{STG+20*k+4*j_}:{STG+20*k+4*j_+3}], v{vWp}, {ws}, s{sT} offen offset:{1024*j_} sc1")
                a(f"s_add_u32 s{sT}, s{sT}, 4096")
                a(f"buffer_load_dwordx4 v[{STG+20*k+16}:{STG+20*k+19}], v{vWp}, {ws}, s{sT} offen sc1")
            a.label(L)
        return fn
    def job_w_lo():
        L = a.newlabel("ha")
        a(f"s_cmp_ge_u32 s{sW_}, 4")
        a(f"s_cbranch_scc1 {L}")
        a(f"s_add_u32 m0, s{sDstW}, s{sWoff}")
        a(f"s_add_u32 s{sT}, s{sSrcW}, 4096")
        for k in range(4):
            a(f"buffer_load_dwordx4 v{vWp}, {ws}, s{sSrcW} offen offset:{1024*k} sc1 lds")
        a(f"s_add_u32 m0, m0, 4096")
        a("s_nop 0")
        a(f"buffer_load_dwordx4 v{vWp}, {ws}, s{sT} offen sc1 lds")
        a.label(L)
        a(f"s_add_u32 s{sDstW}, s{sDstW}, {SLOT}")
        a(f"s_add_u32 s{sSrcW}, s{sSrcW}, {SLOT}")
    def job_redirect():
        a(f"s_sub_u32 s{sSrcA}, s{sSrcW}, {SLOT}")
        a(f"s_add_u32 s{sWoff}, s{sWoff}, {7*SLOT}")
    def job_gp_off():
        a(f"v_mov_b32 v{vGp}, 0")
        a(f"s_mov_b32 s{sGp}, s{sKVb}")
        a(f"s_mov_b32 s{sGi}, 0")
    def job_gp_w():
        a(f"s_lshl_b32 s{sT}, s{sM}, 3")
        a(f"s_add_u32 s{sT}, s{sT}, s{sW_}")
        a(f"s_mul_i32 s{sT}, s{sT}, {PFN*128}")
        a(f"s_add_u32 s{sGp}, s{sT}, {OFF_W1}")
        a(f"s_mov_b32 s{sGi}, {256*PFN*128}")
        a(f"v_min_u32 v{vGp}, {PFN-1}, v{vL}")
        a(f"v_lshlrev_b32 v{vGp}, 7, v{vGp}")
        a(f"buffer_load_dword v{vJunk}, v{vGp}, {ws}, s{sGp} offen sc1")
        a(f"s_add_u32 s{sGp}, s{sGp}, s{sGi}")
    jobs = {t: [] for t in range(8)}
    k0 = max([t for t in SCHED if SCHED[t]]) + 1
    for t in range(k0):
        if SCHED.get(t): jobs[t].append(lambda t=t: prep_dma(SCHED[t]))
    jobs[k0].append(job_prep2)
    jobs[k0+1] += [job_flag, job_xwarm]
    jobs[k0+2] += [job_poll, job_xres]
    jobs[k0+3].append(job_check)
    nw = {3: [1, 1, 1, 1], 4: [2, 1, 1], 5: [2, 2]}[k0+3]
    for i_, n_ in enumerate(nw):
        jobs[k0+3+i_] += [job_w_lo]*n_
        ks_ = [k for k in range(NST) if k*len(nw)//NST == i_]
        if ks_: jobs[k0+3+i_].append(job_stage(ks_))
    jobs[6].append(job_redirect)
    if PRETOUCH: jobs[4].append(job_gp_off)
    if PFN:
        jobs[k0+3].append(job_gp_w)
        assert (8 - (k0+3))*256*PFN*128 <= SZ_W1 + SZ_W2
    a.label(LhA)
    labs = {t: a.newlabel("job") for t in range(8) if jobs[t]}
    for t in labs:
        a(f"s_cmp_eq_u32 s{sTrip}, {t}")
        a(f"s_cbranch_scc1 {labs[t]}")
    a(f"s_branch {LhAr}")
    for t in labs:
        a.label(labs[t])
        for jb in jobs[t]: jb()
        a(f"s_branch {LhAr}")
    for f in ool:
        f()

    a.label(Lslow)
    vM, vMn, vAl = vT[0], vT[1], vT[4]
    a(f"s_mov_b32 s{sRedo}, 1")
    a(f"s_mul_i32 s{sT}, s{sKh}, 1280")
    a(f"v_subrev_u32 v{vK1a}, s{sT}, v{vK1b}")
    a(f"v_subrev_u32 v{vK2a}, s{sT}, v{vK2b}")
    a(f"v_subrev_u32 v{vVa}, s{sT}, v{vVb}")
    a(f"v_mov_b32 v{vM}, {f2u(-3.0e38):#x}")
    for r in range(16):
        a(f"v_mov_b32 v{O[1]+r}, 0")
    a(f"s_mov_b32 s{sTrip}, 0")
    Ls = a.newlabel("sl")
    a.label(Ls)
    a(f"s_mul_i32 s{sT}, s{sTrip}, 1280")
    a(f"s_lshr_b32 s{sT2}, s{sTrip}, 3")
    a(f"s_mul_i32 s{sT2}, s{sT2}, 10240")
    a(f"s_add_u32 s{sT}, s{sT}, s{sT2}")
    a(f"s_add_u32 s{sT}, s{sT}, s{sKVb}")
    a(f"buffer_load_dwordx4 v[{K1}:{K1+3}], v{vK1a}, {ws}, s{sT} offen")
    a(f"buffer_load_dwordx2 v[{K2}:{K2+1}], v{vK2a}, {ws}, s{sT} offen")
    a(f"s_mov_b64 exec, s[{sVm}:{sVm+1}]")
    a(f"buffer_load_dwordx4 v[{V[0]}:{V[0]+3}], v{vVa}, {ws}, s{sT} offen")
    a(f"buffer_load_dwordx4 v[{V[1]}:{V[1]+3}], v{vVa}, {ws}, s{sT} offen offset:640")
    a(f"s_mov_b64 exec, -1")
    a("s_waitcnt vmcnt(0)")
    a(qk1(1)); a(qk2(1))
    a("s_nop 7"); a("s_nop 4")
    s0 = Sx[1]
    a(f"v_max3_f32 v{vMn}, v{s0}, v{s0+1}, v{vM}")
    for r in range(2, 16, 2):
        a(f"v_max3_f32 v{vMn}, v{s0+r}, v{s0+r+1}, v{vMn}")
    a(f"v_mov_b32 v{vAl}, v{vMn}")
    a("s_nop 1")
    a(f"v_permlane32_swap_b32 v{vMn}, v{vAl}")
    a(f"v_max_f32 v{vMn}, v{vMn}, v{vAl}")
    a(f"v_sub_f32 v{vAl}, v{vM}, v{vMn}")
    a(f"v_exp_f32 v{vAl}, v{vAl}")
    a(f"v_mov_b32 v{vM}, v{vMn}")
    for r in range(16):
        a(f"v_sub_f32 v{s0+r}, v{s0+r}, v{vMn}")
        a(f"v_mul_f32 v{O[1]+r}, v{O[1]+r}, v{vAl}")
    for g in range(4):
        vgroup(1, g)
    a("s_nop 1")
    a(pv(1, 0)); a(pv(1, 1))
    a(f"s_add_u32 s{sTrip}, s{sTrip}, 1")
    a(f"s_cmp_lt_u32 s{sTrip}, 64")
    a("s_nop 7"); a("s_nop 3")
    a(f"s_cbranch_scc1 {Ls}")
    a(f"s_branch {Lfin}")
    return max(R.hi, G.hi), 8*SLOT

assert all((t*6554) >> 16 == t//10 for t in range(600))
assert all((t*2428) >> 16 == t//27 for t in range(560))
```

```python
from asmlib import *
import asmlib, os
from layout import *

ROT = int(os.environ.get('K1ROT', '0'))
K1PF = int(os.environ.get('K1PF', '2'))
K1SC = os.environ.get('K1SC', 'sc1')
K1NOMF = int(os.environ.get('K1NOMF', '0'))
K1NODMA = int(os.environ.get('K1NODMA', '0'))
K1NOST = int(os.environ.get('K1NOST', '0'))
CODEPF = int(os.environ.get('CODEPF', '1'))
K1SPLIT = int(os.environ.get('K1SPLIT', '5'))

def gen_k1(a, name):
    kernel_header(a, name)
    END = f"{name}_end"
    sW_, sI, sJ, sC, sXo, sWo, sSt, sT, sCnt, sMask = 20, 21, 22, 23, 24, 25, 26, 27, 28, 29
    sWf, sWt, sXb, sWb, sSc, sT2, sHS, sT3, sPo, sOc = 30, 31, 36, 37, 38, 39, 40, 41, 42, 43
    SX, SWq, SO, SP = 12, 16, 32, 44
    sOff = list(range(48, 56))
    XB = 131072
    Lhelp = a.newlabel("k1help")
    a(f"s_cmp_ge_u32 s2, 240")
    a(f"s_cbranch_scc1 {Lhelp}")
    prof_start(a)
    a("s_load_dwordx4 s[4:7], s[0:1], 0")
    a("s_load_dwordx2 s[8:9], s[0:1], 64")
    R = Regs(1)
    vL = R.alloc()
    vT = [R.alloc() for _ in range(8)]
    vXa = [R.alloc() for _ in range(4)]
    vWa = [R.alloc() for _ in range(4)]
    vJ, vPf, vS16, vS8, vH = [R.alloc() for _ in range(5)]
    vSel = R.alloc(4, 4)
    vCs = R.alloc(4, 4)
    B = [[R.alloc(4, 4) for _ in range(4)] for _ in range(2)]
    acc = [[R.alloc(16, 4) for _ in range(2)] for _ in range(2)]
    E = R.alloc(32, 4)
    a(f"v_lshrrev_b32 v{vT[0]}, 6, v0")
    a(f"v_and_b32 v{vL}, 63, v0")
    a(f"v_readfirstlane_b32 s{sW_}, v{vT[0]}")
    a(f"s_and_b32 s{sT}, s2, 1")
    a(f"s_mul_i32 s{sT}, s{sT}, 30")
    a(f"s_lshr_b32 s{sC}, s2, 3")
    a(f"s_add_u32 s{sT}, s{sT}, s{sC}")
    a(f"s_lshr_b32 s{sJ}, s{sT}, 2")
    a(f"s_and_b32 s{sT}, s{sT}, 3")
    a(f"s_bfe_u32 s{sI}, s2, 0x20001")
    a(f"s_lshl_b32 s{sI}, s{sI}, 2")
    a(f"s_add_u32 s{sI}, s{sI}, s{sT}")
    Lcons, Lstat = a.newlabel("k1cons"), a.newlabel("k1stat")
    a(f"s_cmp_lt_u32 s{sW_}, 8")
    a(f"s_cbranch_scc1 {Lcons}")
    vXo = vXa
    vWo = vWa
    if ROT:
        a(f"s_mul_i32 s{sT}, s{sT}, 3")
        a(f"s_add_u32 s{sC}, s{sJ}, s{sT}")
        for _ in range(2):
            a(f"s_sub_u32 s{sT}, s{sC}, 10")
            a(f"s_cmp_ge_u32 s{sC}, 10")
            a(f"s_cselect_b32 s{sC}, s{sT}, s{sC}")
    else:
        a(f"s_mov_b32 s{sC}, 0")
    a(f"s_mul_i32 s{sXb}, s{sI}, 163840")
    a(f"s_lshl_b32 s{sWb}, s{sJ}, 8")
    a(f"s_sub_u32 s{sSt}, s{sW_}, 8")
    a(f"s_lshl_b32 s{sSt}, s{sSt}, 10")
    a(f"v_and_b32 v{vT[7]}, 255, v0")
    a(f"v_lshrrev_b32 v{vT[0]}, 3, v{vT[7]}")
    a(f"v_mul_u32_u24 v{vXo[0]}, 1280, v{vT[0]}")
    a(f"v_lshrrev_b32 v{vT[1]}, 4, v{vT[7]}")
    a(f"v_xor_b32 v{vT[2]}, v{vT[7]}, v{vT[1]}")
    a(f"v_and_b32 v{vT[2]}, 7, v{vT[2]}")
    a(f"v_lshl_add_u32 v{vXo[0]}, v{vT[2]}, 4, v{vXo[0]}")
    a(f"v_mul_u32_u24 v{vWo[0]}, 3840, v{vT[1]}")
    a(f"v_lshlrev_b32 v{vT[2]}, 2, v{vT[1]}")
    a(f"v_xor_b32 v{vT[2]}, v{vT[7]}, v{vT[2]}")
    a(f"v_and_b32 v{vT[2]}, 15, v{vT[2]}")
    a(f"v_lshl_add_u32 v{vWo[0]}, v{vT[2]}, 4, v{vWo[0]}")
    for k in range(1, 4):
        a(f"v_add_u32 v{vXo[k]}, {40960*k}, v{vXo[0]}")
        a(f"v_add_u32 v{vWo[k]}, {61440*k}, v{vWo[0]}")
    a("s_waitcnt lgkmcnt(0)")
    srd(a, SX, 4, 5, S*D*2)
    srd(a, SWq, 6, 7, D*3*D*2)
    if K1NODMA:
        a(f"s_mov_b32 s{SX+2}, 0")
        a(f"s_mov_b32 s{SWq+2}, 0")
    def dma_chunk():
        a(f"s_lshl_b32 s{sXo}, s{sC}, 7")
        a(f"s_mul_i32 s{sWo}, s{sC}, 245760")
        a(f"s_mov_b32 m0, s{sSt}")
        a(f"s_add_u32 s{sXo}, s{sXo}, s{sXb}")
        a(f"s_add_u32 s{sWo}, s{sWo}, s{sWb}")
        for k in range(4):
            a(f"buffer_load_dwordx4 v{vXo[k]}, s[{SX}:{SX+3}], s{sXo} offen lds")
            a(f"s_add_u32 m0, s{sSt}, {16384 + 4096*k}")
            a("s_nop 0")
            a(f"buffer_load_dwordx4 v{vWo[k]}, s[{SWq}:{SWq+3}], s{sWo} offen lds")
            if k < 3:
                a(f"s_add_u32 m0, s{sSt}, {4096*(k+1)}")
                a("s_nop 0")
        a(f"s_add_u32 s{sC}, s{sC}, 1")
        a(f"s_cmp_eq_u32 s{sC}, 10")
        a(f"s_cselect_b32 s{sC}, 0, s{sC}")
        a(f"s_add_u32 s{sSt}, s{sSt}, 32768")
        a(f"s_and_b32 s{sSt}, s{sSt}, 0x1ffff")
    Lp, Lpb = a.newlabel("k1p"), a.newlabel("k1p")
    a(f"s_mov_b32 s{sCnt}, 0")
    a.label(Lp)
    dma_chunk()
    a(f"s_add_u32 s{sCnt}, s{sCnt}, 1")
    a(f"s_cmp_eq_u32 s{sCnt}, 1")
    a(f"s_cbranch_scc1 {Lp}")
    a("s_waitcnt vmcnt(8)")
    a("s_barrier")
    a(f"s_cmp_lt_u32 s{sCnt}, 10")
    a(f"s_cbranch_scc1 {Lp}")
    a("s_waitcnt vmcnt(0)")
    a("s_barrier")
    a("s_endpgm")
    a.label(Lcons)

    a(f"s_lshl_b32 s{sT}, s{sC}, 3")
    a(f"s_add_u32 s{sT}, s{sT}, s{sW_}")
    a(f"s_mul_i32 s{sC}, s{sT}, 2731")
    a(f"s_lshr_b32 s{sC}, s{sC}, 16")
    a(f"s_mul_i32 s{sT2}, s{sC}, 24")
    a(f"s_sub_u32 s{sT}, s{sT}, s{sT2}")
    a(f"s_and_b32 s{sT2}, s{sI}, 12")
    a(f"s_lshl_b32 s{sT2}, s{sT2}, 1")
    a(f"s_add_u32 s{sT2}, s{sT2}, s{sT}")
    a(f"s_mul_i32 s{sXo}, s{sT2}, {64*1280}")
    a(f"s_lshl_b32 s{sT2}, s{sC}, 7")
    a(f"s_add_u32 s{sXo}, s{sXo}, s{sT2}")
    a(f"s_lshl_b32 s{sT2}, s{sC}, 4")
    a(f"s_add_u32 s{sT2}, s{sT2}, s{sT}")
    a(f"s_sub_u32 s{sT2}, s{sT2}, 8")
    a(f"s_mul_i32 s{sWo}, s{sT2}, {4*3840}")
    a(f"s_and_b32 s{sT2}, s2, 1")
    a(f"s_mul_i32 s{sT2}, s{sT2}, {7*256}")
    a(f"s_add_u32 s{sWo}, s{sWo}, s{sT2}")
    a(f"v_mul_u32_u24 v{vT[0]}, 1280, v{vL}")
    a(f"v_lshrrev_b32 v{vT[1]}, 4, v{vL}")
    a(f"v_mul_u32_u24 v{vT[3]}, 3840, v{vT[1]}")
    a(f"v_and_b32 v{vT[2]}, 15, v{vL}")
    a(f"v_lshl_add_u32 v{vT[3]}, v{vT[2]}, 7, v{vT[3]}")
    a(f"s_cmp_lt_u32 s{sT}, 8")
    a(f"s_cselect_b64 vcc, -1, 0")
    a(f"s_cselect_b32 s{sPo}, s{sXo}, s{sWo}")
    a(f"v_cndmask_b32 v{vPf}, v{vT[3]}, v{vT[0]}, vcc")
    a("s_waitcnt lgkmcnt(0)")
    a(f"s_cselect_b32 s{SP}, s4, s6")
    a(f"s_cselect_b32 s{SP+1}, s5, s7")
    a(f"s_mov_b32 s{SP+2}, {D*3*D*2}")
    a(f"s_cselect_b32 s{SP+2}, {S*D*2}, s{SP+2}")
    a(f"s_mov_b32 s{SP+3}, 0x20000")
    def warm(late):
        if K1PF == 0 or (K1PF == 1 and late): return
        L = a.newlabel("k1w")
        if K1PF == 2:
            a(f"s_cmp_lt_u32 s{sC}, {K1SPLIT}")
            a(f"s_cbranch_scc{1 if late else 0} {L}")
        a(f"buffer_load_dword v{vJ}, v{vPf}, s[{SP}:{SP+3}], s{sPo} offen sc1")
        a.label(L)
    warm(False)
    srd(a, SO, 8, 9, WS_END)
    Lz = a.newlabel("k1z")
    a(f"s_cmp_ge_u32 s2, {SZ_Z//8192}")
    a(f"s_cbranch_scc1 {Lz}")
    for r in range(4):
        a(f"v_mov_b32 v{E+r}, 0")
    a(f"v_lshlrev_b32 v{vT[0]}, 4, v0")
    a(f"s_lshl_b32 s{sT}, s2, 13")
    a(f"s_add_u32 s{sT}, s{sT}, {OFF_Z}")
    a(f"buffer_store_dwordx4 v[{E}:{E+3}], v{vT[0]}, s[{SO}:{SO+3}], s{sT} offen sc1")
    a.label(Lz)
    a(f"s_and_b32 s{sWf}, s{sW_}, 1")
    a(f"s_bfe_u32 s{sWt}, s{sW_}, 0x10001")
    a(f"s_lshl_b32 s{sT}, s{sWt}, 13")
    a(f"s_and_b32 s{sT2}, s{sW_}, 3")
    a(f"s_lshl_b32 s{sT2}, s{sT2}, 12")
    a(f"s_cmp_ge_u32 s{sW_}, 4")
    a(f"s_cselect_b32 s{sT}, s{sT2}, s{sT}")
    a(f"v_and_b32 v{vT[0]}, 31, v{vL}")
    a(f"v_lshlrev_b32 v{vS16}, 4, v{vT[0]}")
    a(f"v_lshlrev_b32 v{vS8}, 3, v{vT[0]}")
    a(f"v_lshrrev_b32 v{vH}, 5, v{vL}")
    a(f"v_bfe_u32 v{vT[2]}, v{vL}, 1, 3")
    a(f"v_xor_b32 v{vT[2]}, v{vT[2]}, v{vH}")
    a(f"v_lshl_add_u32 v{vT[0]}, v{vT[0]}, 7, s{sT}")
    for sp in range(4):
        a(f"v_xor_b32 v{vT[3]}, {2*sp}, v{vT[2]}")
        a(f"v_lshl_add_u32 v{vXa[sp]}, v{vT[3]}, 4, v{vT[0]}")
    a(f"s_mov_b32 s{sCnt}, 0")
    a(f"s_cbranch_scc1 {Lstat}")

    a("s_setprio 2")
    a(f"s_lshl_b32 s{sOc}, s{sWf}, 1")
    a(f"s_add_u32 s{sOc}, s{sOc}, s{sWt}")
    a(f"v_bfe_u32 v{vT[3]}, v{vL}, 2, 2")
    a(f"v_lshl_add_u32 v{vT[4]}, v{vH}, 3, v{vT[3]}")
    a(f"v_lshlrev_b32 v{vT[4]}, 8, v{vT[4]}")
    a(f"v_xor_b32 v{vT[3]}, s{sOc}, v{vT[3]}")
    a(f"v_lshl_add_u32 v{vT[4]}, v{vT[3]}, 6, v{vT[4]}")
    a(f"v_and_b32 v{vT[3]}, 1, v{vT[1]}")
    a(f"v_lshl_add_u32 v{vT[4]}, v{vT[3]}, 5, v{vT[4]}")
    a(f"v_and_b32 v{vT[5]}, 3, v{vL}")
    a(f"v_lshl_add_u32 v{vT[4]}, v{vT[5]}, 3, v{vT[4]}")
    a(f"v_add_u32 v{vWa[0]}, 16384, v{vT[4]}")
    a(f"v_xor_b32 v{vWa[1]}, 64, v{vWa[0]}")
    a(f"v_xor_b32 v{vT[3]}, v{vT[3]}, v{vL}")
    a(f"v_and_b32 v{vT[3]}, 1, v{vT[3]}")
    a(f"v_sub_u32 v{vT[3]}, v{vT[3]}, 1" .replace(f"v_sub_u32 v{vT[3]}, v{vT[3]}, 1", f"v_add_u32 v{vT[3]}, -1, v{vT[3]}"))
    for r in range(4):
        a(f"v_and_b32 v{vSel+r}, 0x3f803f80, v{vT[3]}")
        a(f"v_mov_b32 v{vCs+r}, 0")
    for f in range(2):
        for t in range(2):
            for r in range(16):
                a(f"v_mov_b32 v{acc[f][t]+r}, 0")

    def rd(sp, b, off):
        w0, w1, x0, x1 = B[b]
        o = off + sp*4096
        return [[f"ds_read_b64_tr_b16 v[{w0}:{w0+1}], v{vWa[0]} offset:{o}", f"ds_read_b64_tr_b16 v[{w0+2}:{w0+3}], v{vWa[0]} offset:{o+1024}"],
                [f"ds_read_b128 v[{x0}:{x0+3}], v{vXa[sp]} offset:{off}"],
                [f"ds_read_b128 v[{x1}:{x1+3}], v{vXa[sp]} offset:{off+4096}"],
                [f"ds_read_b64_tr_b16 v[{w1}:{w1+1}], v{vWa[1]} offset:{o}", f"ds_read_b64_tr_b16 v[{w1+2}:{w1+3}], v{vWa[1]} offset:{o+1024}"]]
    def mf(d, w, x, vtype):
        p, q = (w, x) if not vtype else (x, w)
        return f"v_mfma_f32_32x32x16_bf16 v[{d}:{d+15}], v[{p}:{p+3}], v[{q}:{q+3}], v[{d}:{d+15}]"
    def flip(regs):
        for r in regs:
            a(f"v_xor_b32 v{r}, 0x10000, v{r}")
    def mainloop(vtype, addr):
        addr()
        prof_mark(a, 0)
        a("s_barrier")
        prof_mark(a, 1)
        a("s_waitcnt lgkmcnt(0)") if asmlib.PROF else None
        for g in rd(0, 0, 0):
            for x in g: a(x)
        warm(True)
        Lm = a.newlabel("k1m")
        a.label(Lm)
        for half in range(2):
            off = half*32768
            for sp in range(4):
                b = sp & 1
                w0, w1, x0, x1 = B[b]
                r = rd(0, b ^ 1, 32768 - off) if sp == 3 else rd(sp+1, b ^ 1, off)
                ms = [mf(acc[0][0], w0, x0, vtype), mf(acc[0][1], w0, x1, vtype), mf(acc[1][0], w1, x0, vtype), mf(acc[1][1], w1, x1, vtype),
                      f"v_mfma_f32_16x16x32_bf16 v[{vCs}:{vCs+3}], v[{w0}:{w0+3}], v[{vSel}:{vSel+3}], v[{vCs}:{vCs+3}]"]
                waits = [3, 4, 3, None, None]
                for k, m in enumerate(ms):
                    if waits[k] is not None:
                        a(f"s_waitcnt lgkmcnt({waits[k]})")
                    if not K1NOMF: a(m)
                    if sp == 3 and k == 0:
                        a("s_barrier")
                    if sp == 2 and half == 1 and k == 4:
                        flip(vXa + vWa[:2])
                    if k < 4:
                        for x in r[k]: a(x)
        if asmlib.PROF and os.environ.get('K1PAIR'):
            for i in range(3, 7):
                a(f"s_mov_b32 s{60+2*i}, s{62+2*i}")
            a("s_memtime s[74:75]")
            a("s_waitcnt lgkmcnt(0)")
        a(f"s_add_u32 s{sCnt}, s{sCnt}, 1")
        a(f"s_cmp_lt_u32 s{sCnt}, 5")
        a(f"s_cbranch_scc1 {Lm}")
        prof_mark(a, 2)
        a(f"s_lshl_b32 s{sT}, s{sOc}, 7")
        a(f"s_add_u32 s{sT}, s{sT}, {XB+1024}")
        a(f"v_and_b32 v{vT[0]}, 1, v{vL}")
        a(f"v_lshl_add_u32 v{vT[0]}, v{vT[0]}, 6, s{sT}")
        a(f"v_lshl_add_u32 v{vT[0]}, v{vT[1]}, 4, v{vT[0]}")
        a("s_mov_b32 exec_lo, 0x00030003")
        a("s_mov_b32 exec_hi, 0x00030003")
        a(f"ds_write_b128 v{vT[0]}, v[{vCs}:{vCs+3}]")
        a("s_mov_b64 exec, -1")
        a("s_waitcnt lgkmcnt(0)")
        a("s_barrier")

    LV = a.newlabel("k1v")
    a(f"s_cmp_ge_u32 s{sJ}, 10")
    a(f"s_cbranch_scc1 {LV}")
    vO16 = [vT[4], vT[5], vT[6], vT[7]]
    def qk_addr():
        a(f"s_lshl_b32 s{sT}, s{sI}, 2")
        a(f"s_lshl_b32 s{sT2}, s{sWt}, 1")
        a(f"s_add_u32 s{sT}, s{sT}, s{sT2}")
        a(f"s_mul_i32 s{sXo}, s{sT}, 1280")
        a(f"s_lshr_b32 s{sT}, s{sT}, 3")
        a(f"s_mul_i32 s{sT}, s{sT}, 10240")
        a(f"s_add_u32 s{sT}, s{sT}, {OFF_KV}")
        a(f"s_cmp_lt_u32 s{sJ}, 5")
        a(f"s_cselect_b32 s{sT}, {OFF_Q}, s{sT}")
        a(f"s_mov_b32 s{sHS}, 163840")
        a(f"s_cselect_b32 s{sHS}, 81920, s{sHS}")
        a(f"s_cselect_b32 s{sT2}, 0, 5")
        a(f"s_cselect_b32 s{sSc}, {f2u(QSCALE):#x}, 1.0")
        a(f"s_add_u32 s{sXo}, s{sXo}, s{sT}")
        a(f"s_add_u32 s{sWo}, s{sXo}, s{sHS}")
        a(f"s_sub_u32 s{sT2}, s{sJ}, s{sT2}")
        a(f"s_lshl_b32 s{sSt}, s{sT2}, 4")
        for g in range(8):
            a(f"s_xor_b32 s{sT}, s{sOc}, {g >> 2}")
            a(f"s_lshl_b32 s{sT}, s{sT}, 2")
            a(f"s_add_u32 s{sT}, s{sT}, s{sSt}")
            a(f"s_add_u32 s{sT}, s{sT}, {g & 3}")
            a(f"s_mul_i32 s{sT2}, s{sT}, 13108")
            a(f"s_lshr_b32 s{sT2}, s{sT2}, 16")
            a(f"s_mul_i32 s{sT3}, s{sT2}, 5")
            a(f"s_sub_u32 s{sT}, s{sT}, s{sT3}")
            a(f"s_lshl_b32 s{sT2}, s{sT2}, 1")
            a(f"s_cmp_gt_u32 s{sT}, 2")
            a(f"s_cselect_b32 s{sT3}, 3, 0")
            a(f"s_addc_u32 s{sT2}, s{sT2}, 0")
            a(f"s_sub_u32 s{sT}, s{sT}, s{sT3}")
            a(f"s_mul_i32 s{sT2}, s{sT2}, s{sHS}")
            a(f"s_lshl_b32 s{sT3}, s{sT}, 9")
            a(f"s_add_u32 s{sT2}, s{sT2}, s{sT3}")
            a(f"s_lshr_b32 s{sT}, s{sT}, 1")
            a(f"s_add_u32 s{sOff[g]}, s{sT2}, s{sT}")
        a("s_mov_b32 vcc_lo, 0")
        a("s_mov_b32 vcc_hi, -1")
        for k in range(4):
            a(f"v_mov_b32 v{vT[2]}, s{sOff[2*k]}")
            a(f"v_mov_b32 v{vT[3]}, s{sOff[2*k+1]}")
            a(f"v_cndmask_b32 v{vT[2]}, v{vT[2]}, v{vT[3]}, vcc")
            a(f"v_and_b32 v{vT[2]}, -2, v{vT[2]}")
            a(f"v_add_u32 v{vO16[k]}, v{vT[2]}, v{vS16}")
        a(f"s_lshl_b32 s{sT}, s{sWt}, 8")
        a(f"s_add_u32 s{sT}, s{sT}, {XB}")
        a(f"v_lshrrev_b32 v{vWa[2]}, 1, v{vS8}")
        a(f"v_add_u32 v{vWa[2]}, s{sT}, v{vWa[2]}")
        a(f"s_lshl_b32 s{sT}, s{sOc}, 7")
        a(f"s_add_u32 s{sT}, s{sT}, {XB+1024}")
        a(f"v_lshl_add_u32 v{vWa[3]}, v{vH}, 4, s{sT}")
    mainloop(False, qk_addr)
    q = B[0][0]
    a(f"ds_read2_b32 v[{q}:{q+1}], v{vWa[2]} offset0:0 offset1:128")
    a(f"ds_read2_b32 v[{q+2}:{q+3}], v{vWa[2]} offset0:32 offset1:160")
    a(f"v_xor_b32 v{vT[0]}, 128, v{vWa[3]}")
    for f in range(2):
        for g in range(4):
            a(f"ds_read_b128 v[{E+16*f+4*g}:{E+16*f+4*g+3}], v{vWa[3] if f == 0 else vT[0]} offset:{32*g}")
    a("s_waitcnt lgkmcnt(4)")
    a(f"v_mul_f32 v{q+1}, s{sSc}, v{q+1}")
    a(f"v_mul_f32 v{q+3}, s{sSc}, v{q+3}")
    for f in range(2):
        if f == 1: a("s_waitcnt lgkmcnt(0)")
        for tb in range(2):
            nm = q + 2*tb
            A_ = acc[f][tb]
            for r in range(0, 16, 2):
                a(f"v_pk_fma_f32 v[{A_+r}:{A_+r+1}], v[{E+16*f+r}:{E+16*f+r+1}], v[{nm}:{nm+1}], v[{A_+r}:{A_+r+1}] op_sel_hi:[1,0,1]")
            for r in range(0, 16, 2):
                a(f"v_pk_mul_f32 v[{A_+r}:{A_+r+1}], v[{A_+r}:{A_+r+1}], v[{nm}:{nm+1}] op_sel:[0,1] op_sel_hi:[1,1]")
            for k in range(8):
                a(f"v_cvt_pk_bf16_f32 v{A_+k}, v{A_+2*k}, v{A_+2*k+1}")
            for p in range(2):
                pp = A_ + 4*p
                if p == 1: a("s_nop 0")
                a(f"v_permlane32_swap_b32 v{pp}, v{pp+2}")
                a(f"v_permlane32_swap_b32 v{pp+1}, v{pp+3}")
        for p in range(2):
            k = 2*f + p
            Ln = a.newlabel("k1n")
            a(f"s_bitcmp1_b32 s{sOff[2*k]}, 0")
            a(f"s_cselect_b32 exec_lo, 0, -1")
            a(f"s_bitcmp1_b32 s{sOff[2*k+1]}, 0")
            a(f"s_cselect_b32 exec_hi, 0, -1")
            for tb in range(2):
                pp = acc[f][tb] + 4*p
                a(f"buffer_store_dwordx4 v[{pp}:{pp+3}], v{vO16[k]}, s[{SO}:{SO+3}], s{sXo} offen offset:{1280*tb} {K1SC}")
            a(f"s_not_b64 exec, exec")
            a(f"s_cbranch_execz {Ln}")
            a(f"v_sub_u32 v{vT[2]}, v{vO16[k]}, v{vS8}")
            for tb in range(2):
                pp = acc[f][tb] + 4*p
                a(f"buffer_store_dwordx2 v[{pp}:{pp+1}], v{vT[2]}, s[{SO}:{SO+3}], s{sXo} offen offset:{1280*tb} {K1SC}")
                a(f"buffer_store_dwordx2 v[{pp+2}:{pp+3}], v{vT[2]}, s[{SO}:{SO+3}], s{sWo} offen offset:{1280*tb} {K1SC}")
            a.label(Ln)
        a("s_mov_b64 exec, -1")
    prof_end(a, 0)
    a("s_endpgm")

    a.label(LV)
    def v_addr():
        a(f"s_sub_u32 s{sT2}, s{sJ}, 10")
        a(f"s_lshl_b32 s{sT2}, s{sT2}, 7")
        a(f"v_mul_u32_u24 v{vT[6]}, 320, v{vH}")
        for f in range(2):
            a(f"s_xor_b32 s{sT}, s{sOc}, {f}")
            a(f"s_lshl_b32 s{sT}, s{sT}, 5")
            a(f"s_add_u32 s{sT}, s{sT}, s{sT2}")
            a(f"v_and_b32 v{vT[2]}, 31, v{vL}")
            a(f"v_add_u32 v{vT[2]}, s{sT}, v{vT[2]}")
            a(f"v_mul_u32_u24 v{vT[3]}, 3277, v{vT[2]}")
            a(f"v_lshrrev_b32 v{vT[3]}, 16, v{vT[3]}")
            a(f"v_mul_u32_u24 v{vT[7]}, 20, v{vT[3]}")
            a(f"v_sub_u32 v{vT[2]}, v{vT[2]}, v{vT[7]}")
            a(f"v_mul_u32_u24 v{vT[3]}, 163840, v{vT[3]}")
            a(f"v_lshl_add_u32 v{vT[3]}, v{vT[2]}, 4, v{vT[3]}")
            a(f"v_add_u32 v{vT[4+f]}, v{vT[3]}, v{vT[6]}")
        a(f"s_lshr_b32 s{sT}, s{sI}, 1")
        a(f"s_mul_i32 s{sT}, s{sT}, 20480")
        a(f"s_and_b32 s{sT2}, s{sI}, 1")
        a(f"s_lshl_b32 s{sT2}, s{sT2}, 1")
        a(f"s_add_u32 s{sT2}, s{sT2}, s{sWt}")
        a(f"s_mul_i32 s{sT2}, s{sT2}, 2560")
        a(f"s_add_u32 s{sXo}, s{sT}, s{sT2}")
        a(f"s_add_u32 s{sXo}, s{sXo}, {OFF_KV+10240}")
        a(f"s_lshl_b32 s{sT}, s{sWt}, 8")
        a(f"s_add_u32 s{sT}, s{sT}, {XB}")
        a(f"v_lshl_add_u32 v{vWa[2]}, v{vH}, 4, s{sT}")
        a(f"s_lshl_b32 s{sT}, s{sOc}, 7")
        a(f"s_add_u32 s{sT}, s{sT}, {XB+1024}")
        a(f"v_lshrrev_b32 v{vWa[3]}, 1, v{vS8}")
        a(f"v_add_u32 v{vWa[3]}, s{sT}, v{vWa[3]}")
    mainloop(True, v_addr)
    a(f"v_xor_b32 v{vT[0]}, 128, v{vWa[3]}")
    a(f"ds_read_b32 v{vCs}, v{vWa[3]}")
    a(f"ds_read_b32 v{vCs+1}, v{vT[0]}")
    NMs = [E, B[0][0]]
    for tb in range(2):
        for g in range(4):
            a(f"ds_read_b128 v[{NMs[tb]+4*g}:{NMs[tb]+4*g+3}], v{vWa[2]} offset:{tb*128 + g*32}")
        for g in range(4):
            a(f"ds_read_b128 v[{NMs[tb]+16+4*g}:{NMs[tb]+16+4*g+3}], v{vWa[2]} offset:{512 + tb*128 + g*32}")
        if tb == 0: a("s_waitcnt lgkmcnt(6)")
    for tb in range(2):
        NM, RS = NMs[tb], NMs[tb] + 16
        a(f"s_waitcnt lgkmcnt({8 if tb == 0 else 0})")
        for f in range(2):
            A_ = acc[f][tb]
            sel = "op_sel_hi:[1,0,1]" if f == 0 else "op_sel:[0,1,0] op_sel_hi:[1,1,1]"
            for r in range(0, 16, 2):
                a(f"v_pk_fma_f32 v[{A_+r}:{A_+r+1}], v[{NM+r}:{NM+r+1}], v[{vCs}:{vCs+1}], v[{A_+r}:{A_+r+1}] {sel}")
            for r in range(0, 16, 2):
                a(f"v_pk_mul_f32 v[{A_+r}:{A_+r+1}], v[{A_+r}:{A_+r+1}], v[{RS+r}:{RS+r+1}]")
            for k in range(8):
                a(f"v_cvt_pk_bf16_f32 v{A_+k}, v{A_+2*k}, v{A_+2*k+1}")
            for gp in range(2):
                pp = A_ + 4*gp
                if gp == 1: a("s_nop 0")
                a(f"v_permlane32_swap_b32 v{pp}, v{pp+2}")
                a(f"v_permlane32_swap_b32 v{pp+1}, v{pp+3}")
            for gp in range(2):
                pp = A_ + 4*gp
                a(f"buffer_store_dwordx4 v[{pp}:{pp+3}], v{vT[4+f]}, s[{SO}:{SO+3}], s{sXo} offen offset:{tb*1280 + gp*640} {K1SC}")
    prof_end(a, 0)
    a.label(END)
    a("s_endpgm")

    a.label(Lstat)
    su, sq = [vCs, vCs+1], [vCs+2, vCs+3]
    for r in range(4):
        a(f"v_mov_b32 v{vCs+r}, 0")
    a(f"s_mov_b32 s{sMask}, 0xffff0000")
    a("s_barrier")
    warm(True)
    Ls = a.newlabel("k1s")
    def sreads(half):
        for sp in range(4):
            x = B[half][sp]
            a(f"ds_read_b128 v[{x}:{x+3}], v{vXa[sp]} offset:{half*32768}")
    sreads(0)
    a.label(Ls)
    for half in range(2):
        if half == 1:
            flip(vXa)
        for sp in range(4):
            a(f"s_waitcnt lgkmcnt({3-sp})")
            if sp == 3:
                a("s_barrier")
                sreads(half ^ 1)
            for r in range(0 if K1NOST else 4):
                x = B[half][sp] + r
                t0, t1 = vT[(2*r) % 8], vT[(2*r+1) % 8]
                a(f"v_lshlrev_b32 v{t0}, 16, v{x}")
                a(f"v_and_b32 v{t1}, s{sMask}, v{x}")
                a(f"v_add_f32 v{su[0]}, v{su[0]}, v{t0}")
                a(f"v_fmac_f32 v{sq[0]}, v{t0}, v{t0}")
                a(f"v_add_f32 v{su[1]}, v{su[1]}, v{t1}")
                a(f"v_fmac_f32 v{sq[1]}, v{t1}, v{t1}")
    a(f"s_add_u32 s{sCnt}, s{sCnt}, 1")
    a(f"s_cmp_lt_u32 s{sCnt}, 5")
    a(f"s_cbranch_scc1 {Ls}")
    a(f"v_add_f32 v{vT[0]}, v{su[0]}, v{su[1]}")
    a(f"v_add_f32 v{vT[1]}, v{sq[0]}, v{sq[1]}")
    a(f"v_mov_b32 v{vT[2]}, v{vT[0]}")
    a(f"v_mov_b32 v{vT[3]}, v{vT[1]}")
    a(f"s_and_b32 s{sT}, s{sW_}, 3")
    a(f"s_lshl_b32 s{sT}, s{sT}, 7")
    a(f"v_permlane32_swap_b32 v{vT[0]}, v{vT[2]}")
    a(f"v_permlane32_swap_b32 v{vT[1]}, v{vT[3]}")
    a(f"v_add_f32 v{vT[0]}, v{vT[0]}, v{vT[2]}")
    a(f"v_add_f32 v{vT[1]}, v{vT[1]}, v{vT[3]}")
    a(f"v_mul_f32 v{vT[0]}, {f2u(-1.0/D):#x}, v{vT[0]}")
    a(f"v_mul_f32 v{vT[1]}, {f2u(1.0/D):#x}, v{vT[1]}")
    a(f"v_fma_f32 v{vT[1]}, -v{vT[0]}, v{vT[0]}, v{vT[1]}")
    a(f"v_max_f32 v{vT[1]}, 0, v{vT[1]}")
    a(f"v_add_f32 v{vT[1]}, {f2u(EPS):#x}, v{vT[1]}")
    a(f"v_rsq_f32 v{vT[1]}, v{vT[1]}")
    a(f"s_add_u32 s{sT}, s{sT}, {XB}")
    a(f"v_lshrrev_b32 v{vT[2]}, 1, v{vS8}")
    a(f"v_add_u32 v{vT[2]}, s{sT}, v{vT[2]}")
    a("s_mov_b32 exec_hi, 0")
    a(f"ds_write2_b32 v{vT[2]}, v{vT[0]}, v{vT[1]} offset0:0 offset1:128")
    a("s_waitcnt lgkmcnt(0)")
    a("s_barrier")
    a("s_endpgm")

    a.label(Lhelp)
    a(f"s_cmp_ge_u32 s2, 256")
    a(f"s_cbranch_scc1 {END}")
    if CODEPF:
        a("s_getpc_b64 s[4:5]")
        Lpc = a.newlabel("k1pc")
        a.label(Lpc)
        a(f"s_sub_u32 s4, s4, {Lpc}-{name}")
        a("s_subb_u32 s5, s5, 0")
        a("v_lshlrev_b32 v1, 7, v0")
        a(f"v_cmp_gt_u32 vcc, code_end-{name}, v1")
        a("s_and_saveexec_b64 s[6:7], vcc")
        a(f"s_cbranch_execz {END}")
        a("global_load_dword v2, v1, s[4:5]")
        a("s_waitcnt vmcnt(0)")
    a("s_endpgm")
    return R.hi, 131072 + 2048

assert all((q*13108) >> 16 == q//5 for q in range(200))
assert all((f*3277) >> 16 == f//20 for f in range(700))
assert all((n*2731) >> 16 == n//24 for n in range(260))
```

```python
import sys, os
import asmlib
asmlib.PROF = bool(os.environ.get('PROF'))
from asmlib import *
from layout import *
from k1d import gen_k1
from k2 import gen_k2
from kg import gen_gemm
from mega3 import gen_mega

HEAD = open("sequential_preLN__mha_block__dense_activation_relu__prompt.s.ref").read().split("; Override launch")[0]

def build(extra_empty=0, diag=None):
    a = Asm()
    ks = []
    v, l = gen_k1(a, "qkv_kernel");        ks.append(("qkv_kernel", 256, 512, v, l))
    v, l = gen_mega(a, "mega_kernel");     ks.append(("mega_kernel", 256, 512, v, l))
    a.label('code_end')
    a('s_endpgm')
    launches = list(ks)
    if extra_empty:
        kernel_header(a, "nop_kernel"); a("s_endpgm")
        ks.append(("nop_kernel", 256, 256, 8, 0))
        launches = launches + [ks[-1]]*extra_empty
    if diag is not None:
        kidx, which = diag
        kernel_header(a, "diag_kernel")
        a("s_cmp_ge_u32 s2, 1")
        a("s_cbranch_scc1 diag_end")
        a("s_load_dwordx2 s[4:5], s[0:1], 64")
        a("s_waitcnt lgkmcnt(0)")
        a(f"s_add_u32 s4, s4, {asmlib.PROF_OFF + kidx*256*16*64 + 4*which}")
        a("s_addc_u32 s5, s5, 0")
        a("s_load_dword s6, s[4:5], 0")
        a("s_waitcnt lgkmcnt(0)")
        a("s_mov_b32 s10, 0")
        a.label("diag_loop")
        a("s_memrealtime s[8:9]")
        a("s_waitcnt lgkmcnt(0)")
        a("s_add_u32 s10, s10, 1")
        a("s_cmp_gt_u32 s10, 100000")
        a("s_cbranch_scc1 diag_end")
        a("s_sub_u32 s8, s8, s6")
        a("s_cmp_lt_u32 s8, 10000")
        a("s_cbranch_scc1 diag_loop")
        a.label("diag_end")
        a("s_endpgm")
        ks.append(("diag_kernel", 1, 64, 8, 0))
        launches = launches + [ks[-1]]
    out = HEAD
    for n, g, b, v, l in launches:
        out += f"; @launch kernel={n} grid=({g},1,1) block=({b},1,1) lds={l}\n"
    out += '.amdgcn_target "amdgcn-amd-amdhsa--gfx950"\n'
    out += a.text()
    for n, g, b, v, l in ks:
        out += kernel_desc(n, v)
    return out

if __name__ == "__main__":
    path = sys.argv[1] if len(sys.argv) > 1 else "sequential_preLN__mha_block__dense_activation_relu__prompt.s"
    extra = int(sys.argv[2]) if len(sys.argv) > 2 else 0
    diag = tuple(int(x) for x in sys.argv[3].split(',')) if len(sys.argv) > 3 else None
    open(path, "w").write(build(extra, diag))
    print("wrote", path)
```

```python
from asmlib import *
import asmlib, os
from layout import *

ROT = int(os.environ.get('K1ROT', '1'))
K1PF = int(os.environ.get('K1PF', '2'))
K1SC = os.environ.get('K1SC', 'sc1')
K1NOMF = int(os.environ.get('K1NOMF', '0'))
K1NODMA = int(os.environ.get('K1NODMA', '0'))
K1NOST = int(os.environ.get('K1NOST', '0'))
CODEPF = int(os.environ.get('CODEPF', '1'))
SLD = int(os.environ.get('SLD', '0'))
SL0 = int(os.environ.get('SL0', '1'))
K1SPLIT = int(os.environ.get('K1SPLIT', '5'))

def gen_k1(a, name):
    kernel_header(a, name)
    END = f"{name}_end"
    sW_, sI, sJ, sC, sXo, sWo, sSt, sT, sCnt, sMask = 20, 21, 22, 23, 24, 25, 26, 27, 28, 29
    sWf, sWt, sXb, sWb, sSc, sT2, sHS, sT3, sPo, sOc = 30, 31, 36, 37, 38, 39, 40, 41, 42, 43
    SX, SWq, SO, SP = 12, 16, 32, 44
    sOff = list(range(48, 56))
    XB = 131072
    sSr = 56
    def stats_issue(XR, vt, sx):
        a(f"s_and_b32 s{sSr}, s2, 7")
        a(f"s_lshl_b32 s{sSr}, s{sSr}, 5")
        a(f"s_lshr_b32 s{sT2}, s2, 3")
        a(f"s_add_u32 s{sSr}, s{sSr}, s{sT2}")
        a(f"s_mul_i32 s{sT2}, s{sSr}, {8*1280}")
        a(f"v_lshrrev_b32 v{vt}, 3, v0")
        a(f"v_mul_u32_u24 v{vt+1}, 1280, v{vt}")
        a(f"v_and_b32 v{vt+2}, 7, v0")
        a(f"v_lshl_add_u32 v{vt+1}, v{vt+2}, 4, v{vt+1}")
        for k in range(10):
            a(f"buffer_load_dwordx4 v[{XR+4*k}:{XR+4*k+3}], v{vt+1}, s[{sx}:{sx+3}], s{sT2} offen offset:{128*k}")
    def stats_finish(XR, vt):
        su, sq, one = vt+1, vt+2, vt+3
        a(f"v_mov_b32 v{one}, 0x3f803f80")
        a(f"v_mov_b32 v{su}, 0")
        a(f"v_mov_b32 v{sq}, 0")
        a(f"s_lshr_b32 s{sT2}, s{sSr}, 4")
        a(f"s_lshl_b32 s{sT2}, s{sT2}, 10")
        a(f"s_and_b32 s{sT3}, s{sSr}, 15")
        a(f"s_lshl_b32 s{sT3}, s{sT3}, 5")
        a(f"s_add_u32 s{sT2}, s{sT2}, s{sT3}")
        a(f"s_add_u32 s{sT2}, s{sT2}, {OFF_S1}")
        a(f"v_lshlrev_b32 v{vt}, 2, v{vt}")
        a("s_waitcnt vmcnt(0)")
        for k in range(40):
            a(f"v_dot2c_f32_bf16 v{su}, v{XR+k}, v{one}")
            a(f"v_dot2c_f32_bf16 v{sq}, v{XR+k}, v{XR+k}")
        a("s_nop 2")
        for m in ("quad_perm:[1,0,3,2]", "quad_perm:[2,3,0,1]", "row_half_mirror"):
            a(f"v_add_f32_dpp v{su}, v{su}, v{su} {m} row_mask:0xf bank_mask:0xf")
            a(f"v_add_f32_dpp v{sq}, v{sq}, v{sq} {m} row_mask:0xf bank_mask:0xf")
            a("s_nop 0")
        a(f"v_mul_f32 v{su}, {f2u(-1.0/D):#x}, v{su}")
        a(f"v_mul_f32 v{sq}, {f2u(1.0/D):#x}, v{sq}")
        a(f"v_fma_f32 v{sq}, -v{su}, v{su}, v{sq}")
        a(f"v_max_f32 v{sq}, 0, v{sq}")
        a(f"v_add_f32 v{sq}, {f2u(EPS):#x}, v{sq}")
        a(f"v_rsq_f32 v{sq}, v{sq}")
        a("s_mov_b32 exec_lo, 0x01010101")
        a("s_mov_b32 exec_hi, 0x01010101")
        a(f"buffer_store_dword v{su}, v{vt}, s[{SO}:{SO+3}], s{sT2} offen sc1")
        a(f"buffer_store_dword v{sq}, v{vt}, s[{SO}:{SO+3}], s{sT2} offen offset:512 sc1")
        a("s_mov_b64 exec, 1")
        a(f"buffer_load_dword v{vt+4}, v0, s[{SP}:{SP+3}], 0 offen sc1")
        a("s_mov_b64 exec, -1")
    def stats_flag(vt):
        Lq, Lk, Lj = [a.newlabel("k1f") for _ in range(3)]
        a(f"s_lshr_b32 s{sT2}, s{sSr}, 4")
        a(f"s_lshl_b32 s{sT2}, s{sT2}, 8")
        a(f"s_and_b32 s{sT3}, s{sSr}, 15")
        a(f"s_lshl_b32 s{sT3}, s{sT3}, 2")
        a(f"s_add_u32 s{sT2}, s{sT2}, s{sT3}")
        a(f"s_add_u32 s{sT2}, s{sT2}, {OFF_F1}")
        a(f"s_mov_b32 s{sT3}, 0")
        a("s_mov_b64 exec, 1")
        a(f"s_branch {Lk}")
        a.label(Lq)
        a(f"buffer_load_dword v{vt+4}, v0, s[{SP}:{SP+3}], 0 offen sc1")
        a(f"s_add_u32 s{sT3}, s{sT3}, 1")
        a(f"s_cmp_gt_u32 s{sT3}, 200000")
        a(f"s_cbranch_scc1 {Lj}")
        a.label(Lk)
        a("s_waitcnt vmcnt(0)")
        a(f"v_cmp_ne_u32 vcc, 1, v{vt+4}")
        a(f"s_cbranch_vccnz {Lq}")
        a(f"buffer_store_dword v{vt+4}, v0, s[{SO}:{SO+3}], s{sT2} offen sc1")
        a.label(Lj)
        a("s_mov_b64 exec, -1")
    Lhelp = a.newlabel("k1help")
    a(f"s_cmp_ge_u32 s2, 240")
    a(f"s_cbranch_scc1 {Lhelp}")
    prof_start(a)
    a("s_load_dwordx4 s[4:7], s[0:1], 0")
    a("s_load_dwordx4 s[8:11], s[0:1], 56")
    R = Regs(1)
    vL = R.alloc()
    vT = [R.alloc() for _ in range(8)]
    vXa = [R.alloc() for _ in range(4)]
    vWa = [R.alloc() for _ in range(4)]
    vJ, vPf, vS16, vS8, vH = [R.alloc() for _ in range(5)]
    vSel = R.alloc(4, 4)
    vCs = R.alloc(4, 4)
    B = [[R.alloc(4, 4) for _ in range(4)] for _ in range(2)]
    acc = [[R.alloc(16, 4) for _ in range(2)] for _ in range(2)]
    E = R.alloc(32, 4)
    ST = R.alloc(64, 4)
    a(f"v_lshrrev_b32 v{vT[0]}, 6, v0")
    a(f"v_and_b32 v{vL}, 63, v0")
    a(f"v_readfirstlane_b32 s{sW_}, v{vT[0]}")
    a(f"s_and_b32 s{sT}, s2, 1")
    a(f"s_mul_i32 s{sT}, s{sT}, 30")
    a(f"s_lshr_b32 s{sC}, s2, 3")
    a(f"s_add_u32 s{sT}, s{sT}, s{sC}")
    a(f"s_lshr_b32 s{sJ}, s{sT}, 2")
    a(f"s_and_b32 s{sT}, s{sT}, 3")
    a(f"s_bfe_u32 s{sI}, s2, 0x20001")
    a(f"s_lshl_b32 s{sI}, s{sI}, 2")
    a(f"s_add_u32 s{sI}, s{sI}, s{sT}")
    Lcons, Lstat = a.newlabel("k1cons"), a.newlabel("k1stat")
    a(f"s_cmp_lt_u32 s{sW_}, 4")
    a(f"s_cbranch_scc1 {Lcons}")
    vXo = vXa
    vWo = vWa
    if ROT:
        a(f"s_mul_i32 s{sT}, s{sT}, 3")
        a(f"s_add_u32 s{sC}, s{sJ}, s{sT}")
        for _ in range(2):
            a(f"s_sub_u32 s{sT}, s{sC}, 10")
            a(f"s_cmp_ge_u32 s{sC}, 10")
            a(f"s_cselect_b32 s{sC}, s{sT}, s{sC}")
    else:
        a(f"s_mov_b32 s{sC}, 0")
    a(f"s_mul_i32 s{sXb}, s{sI}, 163840")
    a(f"s_lshl_b32 s{sWb}, s{sJ}, 8")
    a(f"s_sub_u32 s{sSt}, s{sW_}, 4")
    a(f"s_lshl_b32 s{sSt}, s{sSt}, 10")
    a(f"v_and_b32 v{vT[7]}, 255, v0")
    a(f"v_lshrrev_b32 v{vT[0]}, 3, v{vT[7]}")
    a(f"v_mul_u32_u24 v{vXo[0]}, 1280, v{vT[0]}")
    a(f"v_lshrrev_b32 v{vT[1]}, 4, v{vT[7]}")
    a(f"v_xor_b32 v{vT[2]}, v{vT[7]}, v{vT[1]}")
    a(f"v_and_b32 v{vT[2]}, 7, v{vT[2]}")
    a(f"v_lshl_add_u32 v{vXo[0]}, v{vT[2]}, 4, v{vXo[0]}")
    a(f"v_mul_u32_u24 v{vWo[0]}, 3840, v{vT[1]}")
    a(f"v_lshlrev_b32 v{vT[2]}, 2, v{vT[1]}")
    a(f"v_xor_b32 v{vT[2]}, v{vT[7]}, v{vT[2]}")
    a(f"v_and_b32 v{vT[2]}, 15, v{vT[2]}")
    a(f"v_lshl_add_u32 v{vWo[0]}, v{vT[2]}, 4, v{vWo[0]}")
    for k in range(1, 4):
        a(f"v_add_u32 v{vXo[k]}, {40960*k}, v{vXo[0]}")
        a(f"v_add_u32 v{vWo[k]}, {61440*k}, v{vWo[0]}")
    if SLD:
        a(f"s_lshr_b32 s{sT}, s2, 3")
        a(f"v_lshrrev_b32 v{vT[3]}, 6, v{vT[7]}")
        a(f"v_and_b32 v{vT[4]}, 15, v{vT[7]}")
        a(f"v_lshl_add_u32 v{vT[5]}, v{vT[3]}, 4, v{vT[4]}")
        a(f"v_mul_u32_u24 v{vT[5]}, 1280, v{vT[5]}")
        a(f"v_mul_u32_u24 v{vT[6]}, 3840, v{vT[3]}")
        a(f"v_lshl_add_u32 v{vT[6]}, v{vT[4]}, 7, v{vT[6]}")
        a(f"s_and_b32 s{sT2}, s{sI}, 12")
        a(f"s_lshl_b32 s{sT2}, s{sT2}, 1")
        a(f"s_add_u32 s{sT2}, s{sT2}, s{sT}")
        a(f"s_mul_i32 s{sXo}, s{sT2}, {64*1280}")
        a(f"s_sub_u32 s{sT2}, s{sT}, 8")
        a(f"s_mul_i32 s{sWo}, s{sT2}, {4*3840}")
        a(f"s_and_b32 s{sT2}, s2, 1")
        a(f"s_mul_i32 s{sT2}, s{sT2}, {7*256}")
        a(f"s_add_u32 s{sWo}, s{sWo}, s{sT2}")
        a(f"s_mov_b32 s{sHS}, 245760")
        a(f"s_mov_b32 s{SP+2}, {D*3*D*2}")
        a(f"s_cmp_lt_u32 s{sT}, 8")
        a(f"s_cselect_b64 vcc, -1, 0")
        a(f"s_cselect_b32 s{sPo}, s{sXo}, s{sWo}")
        a(f"s_cselect_b32 s{sHS}, 128, s{sHS}")
        a(f"s_cselect_b32 s{SP+2}, {S*D*2}, s{SP+2}")
        a(f"v_cndmask_b32 v{vPf}, v{vT[6]}, v{vT[5]}, vcc")
    a("s_waitcnt lgkmcnt(0)")
    if SLD:
        a(f"s_cselect_b32 s{SP}, s4, s6")
        a(f"s_cselect_b32 s{SP+1}, s5, s7")
        a(f"s_mov_b32 s{SP+3}, 0x20000")
    srd(a, SX, 4, 5, S*D*2)
    srd(a, SWq, 6, 7, D*3*D*2)
    if K1NODMA:
        a(f"s_mov_b32 s{SX+2}, 0")
        a(f"s_mov_b32 s{SWq+2}, 0")
    def dma_chunk():
        a(f"s_lshl_b32 s{sXo}, s{sC}, 7")
        a(f"s_mul_i32 s{sWo}, s{sC}, 245760")
        a(f"s_mov_b32 m0, s{sSt}")
        a(f"s_add_u32 s{sXo}, s{sXo}, s{sXb}")
        a(f"s_add_u32 s{sWo}, s{sWo}, s{sWb}")
        for k in range(4):
            a(f"buffer_load_dwordx4 v{vXo[k]}, s[{SX}:{SX+3}], s{sXo} offen lds")
            a(f"s_add_u32 m0, s{sSt}, {16384 + 4096*k}")
            a("s_nop 0")
            a(f"buffer_load_dwordx4 v{vWo[k]}, s[{SWq}:{SWq+3}], s{sWo} offen lds")
            if k < 3:
                a(f"s_add_u32 m0, s{sSt}, {4096*(k+1)}")
                a("s_nop 0")
        a(f"s_add_u32 s{sC}, s{sC}, 1")
        a(f"s_cmp_eq_u32 s{sC}, 10")
        a(f"s_cselect_b32 s{sC}, 0, s{sC}")
        a(f"s_add_u32 s{sSt}, s{sSt}, 32768")
        a(f"s_and_b32 s{sSt}, s{sSt}, 0x1ffff")
    Lp, Lpb = a.newlabel("k1p"), a.newlabel("k1p")
    a(f"s_mov_b32 s{sCnt}, 0")
    def slice_():
        a(f"s_add_u32 s{sPo}, s{sPo}, s{sHS}")
        a("s_mov_b64 exec, 0xffff")
        a(f"buffer_load_dword v{vJ}, v{vPf}, s[{SP}:{SP+3}], s{sPo} offen sc1")
        a("s_mov_b64 exec, -1")
    a.label(Lp)
    dma_chunk()
    a(f"s_add_u32 s{sCnt}, s{sCnt}, 1")
    if SLD:
        L1 = a.newlabel("k1p")
        a(f"s_cmp_eq_u32 s{sCnt}, 1")
        a(f"s_cbranch_scc0 {L1}")
        a(f"s_cmp_ge_u32 s{sT}, 24")
        a(f"s_cselect_b32 s{SP+2}, 0, s{SP+2}")
        for k in range(1, SLD):
            if k >= SL0: slice_()
            else: a(f"s_add_u32 s{sPo}, s{sPo}, s{sHS}")
        a.label(L1)
        a(f"s_cmp_gt_u32 s{sCnt}, {10 - SLD}")
        a(f"s_cselect_b32 s{SP+2}, 0, s{SP+2}")
        slice_()
    a(f"s_cmp_eq_u32 s{sCnt}, 1")
    a(f"s_cbranch_scc1 {Lp}")
    if SLD:
        L2 = a.newlabel("k1p")
        a(f"s_cmp_eq_u32 s{sCnt}, 2")
        a(f"s_cbranch_scc1 {L2}")
        a("s_waitcnt vmcnt(10)")
        a.label(L2)
        a(f"s_waitcnt vmcnt({10 + max(SLD - SL0, 0)})")
    else:
        a("s_waitcnt vmcnt(8)")
    a("s_barrier")
    a(f"s_cmp_lt_u32 s{sCnt}, 10")
    a(f"s_cbranch_scc1 {Lp}")
    a("s_waitcnt vmcnt(0)")
    a("s_barrier")
    a("s_endpgm")
    a.label(Lcons)

    a(f"v_lshrrev_b32 v{vT[1]}, 4, v{vL}")
    a("s_waitcnt lgkmcnt(0)")
    srd(a, SX, 4, 5, S*D*2)
    L_ = a.newlabel("k1t")
    a(f"s_cmp_lg_u32 s{sW_}, 0")
    a(f"s_cbranch_scc1 {L_}")
    stats_issue(ST, E, SX)
    a.label(L_)
    srd(a, SO, 10, 11, WS_END)
    srd(a, SP, 8, 9, 256)
    a(f"s_lshl_b32 s{sT}, s{sI}, 8")
    a(f"s_add_u32 s{sT}, s{sT}, {OFF_F1}")
    a(f"v_and_b32 v{vPf}, 15, v{vL}")
    a(f"v_lshl_add_u32 v{vPf}, v{vPf}, 2, s{sT}")
    a(f"s_lshl_b32 s{sPo}, s{sI}, 10")
    a(f"s_add_u32 s{sPo}, s{sPo}, {OFF_S1 - XB}")
    a(f"s_and_b32 s{sWf}, s{sW_}, 1")
    a(f"s_bfe_u32 s{sWt}, s{sW_}, 0x10001")
    a(f"s_lshl_b32 s{sT}, s{sWt}, 13")
    a(f"v_and_b32 v{vT[0]}, 31, v{vL}")
    a(f"v_lshlrev_b32 v{vS16}, 4, v{vT[0]}")
    a(f"v_lshlrev_b32 v{vS8}, 3, v{vT[0]}")
    a(f"v_lshrrev_b32 v{vH}, 5, v{vL}")
    a(f"v_bfe_u32 v{vT[2]}, v{vL}, 1, 3")
    a(f"v_xor_b32 v{vT[2]}, v{vT[2]}, v{vH}")
    a(f"v_lshl_add_u32 v{vT[0]}, v{vT[0]}, 7, s{sT}")
    for sp in range(4):
        a(f"v_xor_b32 v{vT[3]}, {2*sp}, v{vT[2]}")
        a(f"v_lshl_add_u32 v{vXa[sp]}, v{vT[3]}, 4, v{vT[0]}")
    a(f"s_mov_b32 s{sCnt}, 0")

    a("s_setprio 2")
    a(f"s_lshl_b32 s{sOc}, s{sWf}, 1")
    a(f"s_add_u32 s{sOc}, s{sOc}, s{sWt}")
    a(f"v_bfe_u32 v{vT[3]}, v{vL}, 2, 2")
    a(f"v_lshl_add_u32 v{vT[4]}, v{vH}, 3, v{vT[3]}")
    a(f"v_lshlrev_b32 v{vT[4]}, 8, v{vT[4]}")
    a(f"v_xor_b32 v{vT[3]}, s{sOc}, v{vT[3]}")
    a(f"v_lshl_add_u32 v{vT[4]}, v{vT[3]}, 6, v{vT[4]}")
    a(f"v_and_b32 v{vT[3]}, 1, v{vT[1]}")
    a(f"v_lshl_add_u32 v{vT[4]}, v{vT[3]}, 5, v{vT[4]}")
    a(f"v_and_b32 v{vT[5]}, 3, v{vL}")
    a(f"v_lshl_add_u32 v{vT[4]}, v{vT[5]}, 3, v{vT[4]}")
    a(f"v_add_u32 v{vWa[0]}, 16384, v{vT[4]}")
    a(f"v_xor_b32 v{vWa[1]}, 64, v{vWa[0]}")
    a(f"v_xor_b32 v{vT[3]}, v{vT[3]}, v{vL}")
    a(f"v_and_b32 v{vT[3]}, 1, v{vT[3]}")
    a(f"v_sub_u32 v{vT[3]}, v{vT[3]}, 1" .replace(f"v_sub_u32 v{vT[3]}, v{vT[3]}, 1", f"v_add_u32 v{vT[3]}, -1, v{vT[3]}"))
    for r in range(4):
        a(f"v_and_b32 v{vSel+r}, 0x3f803f80, v{vT[3]}")
        a(f"v_mov_b32 v{vCs+r}, 0")
    for f in range(2):
        for t in range(2):
            for r in range(16):
                a(f"v_mov_b32 v{acc[f][t]+r}, 0")

    def rd(sp, b, off):
        w0, w1, x0, x1 = B[b]
        o = off + sp*4096
        return [[f"ds_read_b64_tr_b16 v[{w0}:{w0+1}], v{vWa[0]} offset:{o}", f"ds_read_b64_tr_b16 v[{w0+2}:{w0+3}], v{vWa[0]} offset:{o+1024}"],
                [f"ds_read_b128 v[{x0}:{x0+3}], v{vXa[sp]} offset:{off}"],
                [f"ds_read_b128 v[{x1}:{x1+3}], v{vXa[sp]} offset:{off+4096}"],
                [f"ds_read_b64_tr_b16 v[{w1}:{w1+1}], v{vWa[1]} offset:{o}", f"ds_read_b64_tr_b16 v[{w1+2}:{w1+3}], v{vWa[1]} offset:{o+1024}"]]
    def mf(d, w, x, vtype):
        p, q = (w, x) if not vtype else (x, w)
        return f"v_mfma_f32_32x32x16_bf16 v[{d}:{d+15}], v[{p}:{p+3}], v[{q}:{q+3}], v[{d}:{d+15}]"
    def flip(regs):
        for r in regs:
            a(f"v_xor_b32 v{r}, 0x10000, v{r}")
    Lsf = a.newlabel('k1t')
    def mainloop(vtype, addr, stat_loads):
        addr()
        L_ = a.newlabel("k1t")
        a(f"s_cmp_lg_u32 s{sW_}, 0")
        a(f"s_cbranch_scc1 {L_}")
        a(f"s_getpc_b64 s[58:59]")
        a(f"s_branch {Lsf}")
        a.label(L_)
        prof_mark(a, 0)
        a("s_barrier")
        prof_mark(a, 1)
        a("s_waitcnt lgkmcnt(0)") if asmlib.PROF else None
        for g in rd(0, 0, 0):
            for x in g: a(x)
        Lm = a.newlabel("k1m")
        a.label(Lm)
        for half in range(2):
            off = half*32768
            for sp in range(4):
                b = sp & 1
                w0, w1, x0, x1 = B[b]
                r = rd(0, b ^ 1, 32768 - off) if sp == 3 else rd(sp+1, b ^ 1, off)
                ms = [mf(acc[0][0], w0, x0, vtype), mf(acc[0][1], w0, x1, vtype), mf(acc[1][0], w1, x0, vtype), mf(acc[1][1], w1, x1, vtype),
                      f"v_mfma_f32_16x16x32_bf16 v[{vCs}:{vCs+3}], v[{w0}:{w0+3}], v[{vSel}:{vSel+3}], v[{vCs}:{vCs+3}]"]
                waits = [3, 4, 3, None, None]
                for k, m in enumerate(ms):
                    if waits[k] is not None:
                        a(f"s_waitcnt lgkmcnt({waits[k]})")
                    if not K1NOMF: a(m)
                    if sp == 3 and k == 0:
                        a("s_barrier")
                    if sp == 2 and half == 1 and k == 4:
                        flip(vXa + vWa[:2])
                    if k < 4:
                        for x in r[k]: a(x)
        if asmlib.PROF and os.environ.get('K1PAIR'):
            for i in range(3, 7):
                a(f"s_mov_b32 s{60+2*i}, s{62+2*i}")
            a("s_memtime s[74:75]")
            a("s_waitcnt lgkmcnt(0)")
        a(f"s_add_u32 s{sCnt}, s{sCnt}, 1")
        Lj, Lk, Lq, Lx = [a.newlabel("k1j") for _ in range(4)]
        Lf = a.newlabel("k1j")
        a(f"s_cmp_eq_u32 s{sCnt}, 1")
        a(f"s_cbranch_scc0 {Lf}")
        a(f"s_cmp_lg_u32 s{sW_}, 0")
        a(f"s_cbranch_scc1 {Lm}")
        stats_flag(E)
        a.label(Lf)
        a(f"s_cmp_lt_u32 s{sCnt}, 3")
        a(f"s_cbranch_scc1 {Lm}")
        a(f"s_cmp_eq_u32 s{sCnt}, 5")
        a(f"s_cbranch_scc1 {Lx}")
        a(f"s_cmp_eq_u32 s{sCnt}, 4")
        a(f"s_cbranch_scc1 {Lk}")
        a(f"buffer_load_dword v{vJ}, v{vPf}, s[{SO}:{SO+3}], 0 offen sc1")
        a(f"s_mov_b32 s{sMask}, 0")
        a(f"s_branch {Lm}")
        a.label(Lq)
        a(f"buffer_load_dword v{vJ}, v{vPf}, s[{SO}:{SO+3}], 0 offen sc1")
        a(f"s_add_u32 s{sMask}, s{sMask}, 1")
        a(f"s_cmp_gt_u32 s{sMask}, 200000")
        a(f"s_cbranch_scc1 {Lj}")
        a.label(Lk)
        a("s_waitcnt vmcnt(0)")
        a(f"v_cmp_ne_u32 vcc, 1, v{vJ}")
        a(f"s_cbranch_vccnz {Lq}")
        a.label(Lj)
        stat_loads()
        a(f"s_branch {Lm}")
        a.label(Lx)
        prof_mark(a, 2)
        a(f"s_lshl_b32 s{sT}, s{sOc}, 7")
        a(f"s_add_u32 s{sT}, s{sT}, {XB+1024}")
        a(f"v_and_b32 v{vT[0]}, 1, v{vL}")
        a(f"v_lshl_add_u32 v{vT[0]}, v{vT[0]}, 6, s{sT}")
        a(f"v_lshl_add_u32 v{vT[0]}, v{vT[1]}, 4, v{vT[0]}")
        a("s_mov_b32 exec_lo, 0x00030003")
        a("s_mov_b32 exec_hi, 0x00030003")
        a(f"ds_write_b128 v{vT[0]}, v[{vCs}:{vCs+3}]")
        a("s_mov_b64 exec, -1")
        a("s_waitcnt lgkmcnt(0)")
        a("s_barrier")

    LV = a.newlabel("k1v")
    a(f"s_cmp_ge_u32 s{sJ}, 10")
    a(f"s_cbranch_scc1 {LV}")
    vO16 = [vT[4], vT[5], vT[6], vT[7]]
    def qk_addr():
        a(f"s_lshl_b32 s{sT}, s{sI}, 2")
        a(f"s_lshl_b32 s{sT2}, s{sWt}, 1")
        a(f"s_add_u32 s{sT}, s{sT}, s{sT2}")
        a(f"s_mul_i32 s{sXo}, s{sT}, 1280")
        a(f"s_lshr_b32 s{sT}, s{sT}, 3")
        a(f"s_mul_i32 s{sT}, s{sT}, 10240")
        a(f"s_add_u32 s{sT}, s{sT}, {OFF_KV}")
        a(f"s_cmp_lt_u32 s{sJ}, 5")
        a(f"s_cselect_b32 s{sT}, {OFF_Q}, s{sT}")
        a(f"s_mov_b32 s{sHS}, 163840")
        a(f"s_cselect_b32 s{sHS}, 81920, s{sHS}")
        a(f"s_cselect_b32 s{sT2}, 0, 5")
        a(f"s_cselect_b32 s{sSc}, {f2u(QSCALE):#x}, 1.0")
        a(f"s_add_u32 s{sXo}, s{sXo}, s{sT}")
        a(f"s_add_u32 s{sWo}, s{sXo}, s{sHS}")
        a(f"s_sub_u32 s{sT2}, s{sJ}, s{sT2}")
        a(f"s_lshl_b32 s{sSt}, s{sT2}, 4")
        for g in range(8):
            a(f"s_xor_b32 s{sT}, s{sOc}, {g >> 2}")
            a(f"s_lshl_b32 s{sT}, s{sT}, 2")
            a(f"s_add_u32 s{sT}, s{sT}, s{sSt}")
            a(f"s_add_u32 s{sT}, s{sT}, {g & 3}")
            a(f"s_mul_i32 s{sT2}, s{sT}, 13108")
            a(f"s_lshr_b32 s{sT2}, s{sT2}, 16")
            a(f"s_mul_i32 s{sT3}, s{sT2}, 5")
            a(f"s_sub_u32 s{sT}, s{sT}, s{sT3}")
            a(f"s_lshl_b32 s{sT2}, s{sT2}, 1")
            a(f"s_cmp_gt_u32 s{sT}, 2")
            a(f"s_cselect_b32 s{sT3}, 3, 0")
            a(f"s_addc_u32 s{sT2}, s{sT2}, 0")
            a(f"s_sub_u32 s{sT}, s{sT}, s{sT3}")
            a(f"s_mul_i32 s{sT2}, s{sT2}, s{sHS}")
            a(f"s_lshl_b32 s{sT3}, s{sT}, 9")
            a(f"s_add_u32 s{sT2}, s{sT2}, s{sT3}")
            a(f"s_lshr_b32 s{sT}, s{sT}, 1")
            a(f"s_add_u32 s{sOff[g]}, s{sT2}, s{sT}")
        a("s_mov_b32 vcc_lo, 0")
        a("s_mov_b32 vcc_hi, -1")
        for k in range(4):
            a(f"v_mov_b32 v{vT[2]}, s{sOff[2*k]}")
            a(f"v_mov_b32 v{vT[3]}, s{sOff[2*k+1]}")
            a(f"v_cndmask_b32 v{vT[2]}, v{vT[2]}, v{vT[3]}, vcc")
            a(f"v_and_b32 v{vT[2]}, -2, v{vT[2]}")
            a(f"v_add_u32 v{vO16[k]}, v{vT[2]}, v{vS16}")
        a(f"s_lshl_b32 s{sT}, s{sWt}, 8")
        a(f"s_add_u32 s{sT}, s{sT}, {XB}")
        a(f"v_lshrrev_b32 v{vWa[2]}, 1, v{vS8}")
        a(f"v_add_u32 v{vWa[2]}, s{sT}, v{vWa[2]}")
        a(f"s_lshl_b32 s{sT}, s{sOc}, 7")
        a(f"s_add_u32 s{sT}, s{sT}, {XB+1024}")
        a(f"v_lshl_add_u32 v{vWa[3]}, v{vH}, 4, s{sT}")
    q = ST
    def qk_stats():
        for k, o in enumerate((0, 512, 128, 640)):
            a(f"buffer_load_dword v{q+k}, v{vWa[2]}, s[{SO}:{SO+3}], s{sPo} offen offset:{o} sc1")
    mainloop(False, qk_addr, qk_stats)
    a(f"v_xor_b32 v{vT[0]}, 128, v{vWa[3]}")
    for f in range(2):
        for g in range(4):
            a(f"ds_read_b128 v[{E+16*f+4*g}:{E+16*f+4*g+3}], v{vWa[3] if f == 0 else vT[0]} offset:{32*g}")
    a("s_waitcnt lgkmcnt(4) vmcnt(0)")
    a(f"v_mul_f32 v{q+1}, s{sSc}, v{q+1}")
    a(f"v_mul_f32 v{q+3}, s{sSc}, v{q+3}")
    for f in range(2):
        if f == 1: a("s_waitcnt lgkmcnt(0)")
        for tb in range(2):
            nm = q + 2*tb
            A_ = acc[f][tb]
            for r in range(0, 16, 2):
                a(f"v_pk_fma_f32 v[{A_+r}:{A_+r+1}], v[{E+16*f+r}:{E+16*f+r+1}], v[{nm}:{nm+1}], v[{A_+r}:{A_+r+1}] op_sel_hi:[1,0,1]")
            for r in range(0, 16, 2):
                a(f"v_pk_mul_f32 v[{A_+r}:{A_+r+1}], v[{A_+r}:{A_+r+1}], v[{nm}:{nm+1}] op_sel:[0,1] op_sel_hi:[1,1]")
            for k in range(8):
                a(f"v_cvt_pk_bf16_f32 v{A_+k}, v{A_+2*k}, v{A_+2*k+1}")
            for p in range(2):
                pp = A_ + 4*p
                if p == 1: a("s_nop 0")
                a(f"v_permlane32_swap_b32 v{pp}, v{pp+2}")
                a(f"v_permlane32_swap_b32 v{pp+1}, v{pp+3}")
        for p in range(2):
            k = 2*f + p
            Ln = a.newlabel("k1n")
            a(f"s_bitcmp1_b32 s{sOff[2*k]}, 0")
            a(f"s_cselect_b32 exec_lo, 0, -1")
            a(f"s_bitcmp1_b32 s{sOff[2*k+1]}, 0")
            a(f"s_cselect_b32 exec_hi, 0, -1")
            for tb in range(2):
                pp = acc[f][tb] + 4*p
                a(f"buffer_store_dwordx4 v[{pp}:{pp+3}], v{vO16[k]}, s[{SO}:{SO+3}], s{sXo} offen offset:{1280*tb} {K1SC}")
            a(f"s_not_b64 exec, exec")
            a(f"s_cbranch_execz {Ln}")
            a(f"v_sub_u32 v{vT[2]}, v{vO16[k]}, v{vS8}")
            for tb in range(2):
                pp = acc[f][tb] + 4*p
                a(f"buffer_store_dwordx2 v[{pp}:{pp+1}], v{vT[2]}, s[{SO}:{SO+3}], s{sXo} offen offset:{1280*tb} {K1SC}")
                a(f"buffer_store_dwordx2 v[{pp+2}:{pp+3}], v{vT[2]}, s[{SO}:{SO+3}], s{sWo} offen offset:{1280*tb} {K1SC}")
            a.label(Ln)
        a("s_mov_b64 exec, -1")
    prof_end(a, 0)
    a("s_endpgm")

    a.label(LV)
    def v_addr():
        a(f"s_sub_u32 s{sT2}, s{sJ}, 10")
        a(f"s_lshl_b32 s{sT2}, s{sT2}, 7")
        a(f"v_mul_u32_u24 v{vT[6]}, 320, v{vH}")
        for f in range(2):
            a(f"s_xor_b32 s{sT}, s{sOc}, {f}")
            a(f"s_lshl_b32 s{sT}, s{sT}, 5")
            a(f"s_add_u32 s{sT}, s{sT}, s{sT2}")
            a(f"v_and_b32 v{vT[2]}, 31, v{vL}")
            a(f"v_add_u32 v{vT[2]}, s{sT}, v{vT[2]}")
            a(f"v_mul_u32_u24 v{vT[3]}, 3277, v{vT[2]}")
            a(f"v_lshrrev_b32 v{vT[3]}, 16, v{vT[3]}")
            a(f"v_mul_u32_u24 v{vT[7]}, 20, v{vT[3]}")
            a(f"v_sub_u32 v{vT[2]}, v{vT[2]}, v{vT[7]}")
            a(f"v_mul_u32_u24 v{vT[3]}, 163840, v{vT[3]}")
            a(f"v_lshl_add_u32 v{vT[3]}, v{vT[2]}, 4, v{vT[3]}")
            a(f"v_add_u32 v{vT[4+f]}, v{vT[3]}, v{vT[6]}")
        a(f"s_lshr_b32 s{sT}, s{sI}, 1")
        a(f"s_mul_i32 s{sT}, s{sT}, 20480")
        a(f"s_and_b32 s{sT2}, s{sI}, 1")
        a(f"s_lshl_b32 s{sT2}, s{sT2}, 1")
        a(f"s_add_u32 s{sT2}, s{sT2}, s{sWt}")
        a(f"s_mul_i32 s{sT2}, s{sT2}, 2560")
        a(f"s_add_u32 s{sXo}, s{sT}, s{sT2}")
        a(f"s_add_u32 s{sXo}, s{sXo}, {OFF_KV+10240}")
        a(f"s_lshl_b32 s{sT}, s{sWt}, 8")
        a(f"s_add_u32 s{sT}, s{sT}, {XB}")
        a(f"v_lshl_add_u32 v{vWa[2]}, v{vH}, 4, s{sT}")
        a(f"s_lshl_b32 s{sT}, s{sOc}, 7")
        a(f"s_add_u32 s{sT}, s{sT}, {XB+1024}")
        a(f"v_lshrrev_b32 v{vWa[3]}, 1, v{vS8}")
        a(f"v_add_u32 v{vWa[3]}, s{sT}, v{vWa[3]}")
    NMs = [ST, ST + 32]
    def v_stats():
        for tb in range(2):
            for k in range(2):
                for g in range(4):
                    r = NMs[tb] + 16*k + 4*g
                    a(f"buffer_load_dwordx4 v[{r}:{r+3}], v{vWa[2]}, s[{SO}:{SO+3}], s{sPo} offen offset:{512*k + tb*128 + g*32} sc1")
    mainloop(True, v_addr, v_stats)
    a(f"v_xor_b32 v{vT[0]}, 128, v{vWa[3]}")
    a(f"ds_read_b32 v{vCs}, v{vWa[3]}")
    a(f"ds_read_b32 v{vCs+1}, v{vT[0]}")
    a("s_waitcnt lgkmcnt(0) vmcnt(0)")
    for tb in range(2):
        NM, RS = NMs[tb], NMs[tb] + 16
        for f in range(2):
            A_ = acc[f][tb]
            sel = "op_sel_hi:[1,0,1]" if f == 0 else "op_sel:[0,1,0] op_sel_hi:[1,1,1]"
            for r in range(0, 16, 2):
                a(f"v_pk_fma_f32 v[{A_+r}:{A_+r+1}], v[{NM+r}:{NM+r+1}], v[{vCs}:{vCs+1}], v[{A_+r}:{A_+r+1}] {sel}")
            for r in range(0, 16, 2):
                a(f"v_pk_mul_f32 v[{A_+r}:{A_+r+1}], v[{A_+r}:{A_+r+1}], v[{RS+r}:{RS+r+1}]")
            for k in range(8):
                a(f"v_cvt_pk_bf16_f32 v{A_+k}, v{A_+2*k}, v{A_+2*k+1}")
            for gp in range(2):
                pp = A_ + 4*gp
                if gp == 1: a("s_nop 0")
                a(f"v_permlane32_swap_b32 v{pp}, v{pp+2}")
                a(f"v_permlane32_swap_b32 v{pp+1}, v{pp+3}")
            for gp in range(2):
                pp = A_ + 4*gp
                a(f"buffer_store_dwordx4 v[{pp}:{pp+3}], v{vT[4+f]}, s[{SO}:{SO+3}], s{sXo} offen offset:{tb*1280 + gp*640} {K1SC}")
    prof_end(a, 0)
    a.label(END)
    a("s_endpgm")

    a.label(Lhelp)
    a(f"s_cmp_ge_u32 s2, 256")
    a(f"s_cbranch_scc1 {END}")
    a("s_load_dwordx2 s[4:5], s[0:1], 0")
    a("s_load_dwordx4 s[8:11], s[0:1], 56")
    if CODEPF:
        a("s_getpc_b64 s[6:7]")
        Lpc, Lpd = a.newlabel("k1pc"), a.newlabel("k1pc")
        a.label(Lpc)
        a(f"s_sub_u32 s6, s6, {Lpc}-{name}")
        a("s_subb_u32 s7, s7, 0")
        a("v_subrev_u32 v1, 64, v0")
        a("v_lshlrev_b32 v1, 7, v1")
        a(f"v_cmp_gt_u32 vcc, code_end-{name}, v1")
        a("s_and_saveexec_b64 s[52:53], vcc")
        a(f"s_cbranch_execz {Lpd}")
        a("global_load_dword v2, v1, s[6:7]")
        a.label(Lpd)
        a("s_mov_b64 exec, -1")
    a("v_lshrrev_b32 v3, 6, v0")
    a("s_waitcnt lgkmcnt(0)")
    a(f"v_readfirstlane_b32 s{sW_}, v3")
    srd(a, SX, 4, 5, S*D*2)
    srd(a, SO, 10, 11, WS_END)
    srd(a, SP, 8, 9, 256)
    Ly = a.newlabel("k1z")
    a(f"s_lshl_b32 s{sT}, s{sW_}, 8")
    a(f"s_add_u32 s{sT}, s{sT}, s2")
    a(f"s_cmp_lg_u32 s{sT}, 255")
    a(f"s_cbranch_scc1 {Ly}")
    for r in range(4):
        a(f"v_mov_b32 v{12+r}, 0")
    a("v_lshrrev_b32 v4, 2, v0")
    a("v_lshlrev_b32 v4, 8, v4")
    a("v_and_b32 v5, 3, v0")
    a("v_lshl_add_u32 v4, v5, 4, v4")
    a(f"s_mov_b32 s{sT}, {OFF_F1}")
    a(f"buffer_store_dwordx4 v[12:15], v4, s[{SO}:{SO+3}], s{sT} offen sc1")
    a("v_mov_b32 v5, 1")
    a("s_waitcnt vmcnt(0)")
    a("s_mov_b64 exec, 1")
    a(f"buffer_store_dword v5, v0, s[{SP}:{SP+3}], 0 offen sc1")
    a("s_mov_b64 exec, -1")
    a.label(Ly)
    Lz = a.newlabel("k1z")
    a(f"s_cmp_ge_u32 s2, {240 + SZ_Z//8192}")
    a(f"s_cbranch_scc1 {Lz}")
    for r in range(4):
        a(f"v_mov_b32 v{12+r}, 0")
    a("v_lshlrev_b32 v4, 4, v0")
    a(f"s_lshl_b32 s{sT}, s2, 13")
    a(f"s_add_u32 s{sT}, s{sT}, {OFF_Z - 240*8192}")
    a(f"buffer_store_dwordx4 v[12:15], v4, s[{SO}:{SO+3}], s{sT} offen sc1")
    a.label(Lz)
    a(f"s_cmp_lg_u32 s{sW_}, 0")
    a(f"s_cbranch_scc1 {END}")
    stats_issue(ST, E, SX)
    a(f"s_getpc_b64 s[58:59]")
    a(f"s_branch {Lsf}")
    stats_flag(E)
    a("s_endpgm")
    a.label(Lsf)
    stats_finish(ST, E)
    a("s_add_u32 s58, s58, 4")
    a("s_addc_u32 s59, s59, 0")
    a("s_setpc_b64 s[58:59]")
    return R.hi, 131072 + 2048

assert all((q*13108) >> 16 == q//5 for q in range(200))
assert all((f*3277) >> 16 == f//20 for f in range(700))
assert all((n*2731) >> 16 == n//24 for n in range(260))
```
